```python
import torch

def _softmax(x, axis=-1):
    return torch.softmax(x, dim=axis)
def _gelu(x):
    return torch.nn.functional.gelu(x, approximate="tanh")
def _silu(x):
    return torch.nn.functional.silu(x)
def _sigmoid(x):
    return torch.sigmoid(x)
def _layernorm(x, axis=-1, eps=1e-5):
    m = x.mean(dim=axis, keepdim=True)
    v = x.var(dim=axis, keepdim=True, unbiased=False)
    return (x - m) / torch.sqrt(v + eps)
def _scatter_add(tgt, idx, src, axis=0):
    return tgt.clone().index_add_(axis, idx, src)
def _segment_sum(src, seg, n):
    out = torch.zeros((n,) + src.shape[1:], dtype=src.dtype)
    return out.index_add_(0, seg, src)
def _pad(x, pw):
    flat = tuple(v for pair in reversed(pw) for v in pair)
    return torch.nn.functional.pad(x, flat)

kernel_name = 'parallel_sum__ssm_conv_h3__glu_gated_swiglu__prompt'

def setup_inputs():

    _w = (lambda a: (lambda t: t.to(torch.bfloat16) if t.is_floating_point() else t)(torch.as_tensor(a)))
    def _A_setup():
        B, S, D = 1, 2048, 448
        ks = 4
        return {
            "q": _w((lambda *s: torch.randn(*s, dtype=torch.bfloat16) * 0.05)(B, S, D)),
            "k": _w((lambda *s: torch.randn(*s, dtype=torch.bfloat16) * 0.2)(B, S, D)),
            "v": _w((lambda *s: torch.randn(*s, dtype=torch.bfloat16) * 0.2)(B, S, D)),
            "shift_k": _w((lambda *s: torch.randn(*s, dtype=torch.bfloat16) * 0.2)(D, ks) * 0.5),
            "ssm_k": _w((lambda *s: torch.randn(*s, dtype=torch.bfloat16) * 0.4)(D, S) * (1.0 / S ** 0.5)),
            "ssm_D": _w((lambda *s: torch.randn(*s, dtype=torch.bfloat16) * 0.2)(D)),
        }
    _A_in = _A_setup()

    def _B_setup():
        B, S, D, F = 1, 2048, 448, 1792
        return {
            "x": _w((lambda *s: torch.randn(*s, dtype=torch.bfloat16) * 0.05)(B, S, D)),
            "w1": _w((lambda *s: torch.randn(*s, dtype=torch.bfloat16) * 0.2)(D, F) * (2.0 / D) ** 0.5),
            "w3": _w((lambda *s: torch.randn(*s, dtype=torch.bfloat16) * 0.2)(D, F) * (2.0 / D) ** 0.5),
            "w2": _w((lambda *s: torch.randn(*s, dtype=torch.bfloat16) * 0.2)(F, D) * (2.0 / F) ** 0.5),
        }
    _B_in = _B_setup()

    return {
        "A_q": _A_in["q"],
        "A_k": _A_in["k"],
        "A_v": _A_in["v"],
        "A_shift_k": _A_in["shift_k"],
        "A_ssm_k": _A_in["ssm_k"],
        "A_ssm_D": _A_in["ssm_D"],
        "B_x": _B_in["x"],
        "B_w1": _B_in["w1"],
        "B_w3": _B_in["w3"],
        "B_w2": _B_in["w2"],
    }

def reference(A_q, A_k, A_v, A_shift_k, A_ssm_k, A_ssm_D, B_x, B_w1, B_w3, B_w2):
    def _A_ref(q, k, v, shift_k, ssm_k, ssm_D):
        B, S, D = q.shape
        ks = shift_k.shape[-1]
        k_pad = _pad(k, ((0, 0), (ks - 1, 0), (0, 0)))
        k_shift = torch.zeros_like(k)
        for t in range(ks):
            k_shift = k_shift + k_pad[:, t:t + S, :] * shift_k[:, ks - 1 - t][None, None, :]
        kv = k_shift * v
        L = 2 * S
        kv_pad = _pad(kv, ((0, 0), (0, S), (0, 0)))
        kf_pad = _pad(ssm_k, ((0, 0), (0, S)))
        kv_f = (lambda x, axes=(-2,-1): torch.fft.rfft2(x.float(), dim=axes))(kv_pad[:, None, :, :], axes=(1, 2))
        kf_f = (lambda x, axes=(-2,-1): torch.fft.rfft2(x.float(), dim=axes))(kf_pad[:, None, :], axes=(1, 2))
        kf_f = (lambda x, *d: x.permute(*d))(kf_f, 1, 2, 0)
        y_f = kv_f * kf_f[None, :, :, :]
        y = (lambda x, s, axes=(-2,-1): torch.fft.irfft2(x, s=s, dim=axes).to(torch.bfloat16))(y_f, (1, L), axes=(1, 2))[:, 0, :S, :]
        y = y + kv * ssm_D[None, None, :]
        return q * y

    def _B_ref(x, w1, w3, w2):
        gate = torch.einsum("bsd,df->bsf", x, w1)
        up = torch.einsum("bsd,df->bsf", x, w3)
        h = _silu(gate) * up
        out = torch.einsum("bsf,fd->bsd", h, w2)
        return out

    x = A_q
    xn = _layernorm(x, axis=-1)
    return x + _A_ref(xn, A_k, A_v, A_shift_k, A_ssm_k, A_ssm_D) + _B_ref(xn, B_w1, B_w3, B_w2)
```

```python
import re

def _regs(tok):
    tok = tok.strip()
    tok = re.sub(r"^(neg|abs)\((.*)\)$", r"\2", tok)
    tok = tok.lstrip("-").strip("|")
    m = re.fullmatch(r"([vsa])(\d+)", tok)
    if m:
        return [(m.group(1), int(m.group(2)))]
    m = re.fullmatch(r"([vsa])\[(\d+):(\d+)\]", tok)
    if m:
        return [(m.group(1), i) for i in range(int(m.group(2)), int(m.group(3)) + 1)]
    if tok == "vcc":
        return [("s", 106), ("s", 107)]
    if tok == "vcc_lo":
        return [("s", 106)]
    if tok == "vcc_hi":
        return [("s", 107)]
    if tok == "exec":
        return [("s", 126), ("s", 127)]
    if tok == "exec_lo":
        return [("s", 126)]
    if tok == "exec_hi":
        return [("s", 127)]
    if tok == "m0":
        return [("s", 124)]
    return []

TRANS = ("v_exp_f32", "v_log_f32", "v_rcp_f32", "v_rsq_f32", "v_sqrt_f32", "v_sin_f32", "v_cos_f32")

class Ins:
    def __init__(self, text):
        self.text = text
        t = text.split(";")[0].strip()
        self.label = t.endswith(":")
        self.directive = t.startswith(".")
        self.op = ""
        self.dst = []; self.src = []
        self.kind = "other"
        self.srcA = []; self.srcB = []; self.srcC = []
        self.dpp = False
        self.lds_dma = False
        self.wide_store_data = []
        self.states = 1
        if self.label or self.directive or not t:
            self.states = 0
            return
        parts = t.split(None, 1)
        self.op = op = parts[0]
        rest = parts[1] if len(parts) > 1 else ""
        ops = [o.strip() for o in rest.split(",")]
        mods = ""
        if ops:
            joined = rest
            m = re.search(r"\s(offset|offen|idxen|lds|sc0|sc1|nt|op_sel|op_sel_hi|neg_lo|neg_hi|quad_perm|row_shr|row_shl|row_ror|row_mirror|row_half_mirror|row_bcast|wave_shr|row_mask|bank_mask|bound_ctrl|dst_sel|src0_sel|src1_sel|dst_unused|offset0|offset1|glc|clamp|cbsz|abid|blgp|row_newbcast)\b", joined)
            if m:
                mods = joined[m.start():]
                joined = joined[:m.start()]
            ops = [o.strip() for o in joined.split(",")] if joined.strip() else []
        self.ops = ops; self.mods = mods
        R = [_regs(o) for o in ops]
        flat = lambda xs: [r for x in xs for r in x]
        if op == "s_nop":
            self.states = int(ops[0], 0) + 1
            self.kind = "salu"
        elif op.startswith("v_mfma"):
            self.kind = "mfma"
            self.dst = R[0]; self.srcA = R[1]; self.srcB = R[2]; self.srcC = R[3] if len(R) > 3 else []
            self.src = flat(R[1:])
            self.passes = 8 if "32x32x16" in op else 4 if "16x16x32" in op else 16
        elif op.startswith("v_"):
            self.kind = "valu"
            self.dst = R[0]; self.src = flat(R[1:])
            if "permlane" in op and "swap" in op:
                self.dst = R[0] + R[1]; self.src = R[0] + R[1]
            if op.startswith(("v_fmac", "v_dot2c", "v_pk_fmac", "v_writelane")):
                self.src = self.src + R[0]
            if op.startswith(("v_add_co", "v_sub_co", "v_addc_co", "v_subb_co")):
                self.dst = R[0] + R[1]; self.src = flat(R[2:])
            if re.search(r"quad_perm|row_shr|row_shl|row_ror|row_mirror|row_half_mirror|row_bcast|wave_shr|row_newbcast", mods):
                self.dpp = True
                self.src = self.src + R[0]
            if "dst_sel" in mods:
                self.src = self.src + R[0]
        elif op.startswith("ds_"):
            self.kind = "ds"
            if op.startswith(("ds_read", "ds_bpermute", "ds_permute", "ds_swizzle")):
                self.dst = R[0]; self.src = flat(R[1:])
                if "d16" in op:
                    self.src = self.src + R[0]
            else:
                self.src = flat(R)
        elif op.startswith(("buffer_", "global_")):
            self.kind = "vmem"
            if re.search(r"\blds\b", mods) or "load_lds" in op:
                self.lds_dma = True
                self.src = flat(R) + [("s", 124)]
            elif "load" in op:
                self.dst = R[0]; self.src = flat(R[1:])
            else:
                self.src = flat(R)
                if "x4" in op or "x3" in op:
                    self.wide_store_data = R[0] if op.startswith("buffer_") else R[1]
        elif op.startswith("s_"):
            self.kind = "salu"
            if op.startswith(("s_load", "s_memtime", "s_memrealtime", "s_buffer_load")):
                self.kind = "smem"
                self.dst = R[0]; self.src = flat(R[1:])
            elif op.startswith(("s_cmp", "s_waitcnt", "s_barrier", "s_branch", "s_cbranch", "s_endpgm", "s_setprio", "s_sleep", "s_bitcmp")):
                self.src = flat(R)
            else:
                self.dst = R[0]; self.src = flat(R[1:])
                if "saveexec" in op:
                    self.dst = self.dst + [("s", 126), ("s", 127)]

def need_states(p, c):
    n = 0
    pd = set(p.dst)
    if p.kind == "valu":
        pv = {r for r in pd if r[0] in "va"}
        ps = {r for r in pd if r[0] == "s"}
        if c.kind == "mfma" and pv & set(c.src):
            n = max(n, 2)
        if c.kind == "valu":
            if c.dpp and pv & set(c.src):
                n = max(n, 2)
            if "permlane" in c.op and pv & set(c.src):
                n = max(n, 2)
            if c.op.startswith(("v_readlane", "v_readfirstlane")) and pv & set(c.src):
                n = max(n, 1)
            if p.op in TRANS and pv & set(c.src):
                n = max(n, 1)
            if ("dst_sel" in p.mods or "op_sel" in p.mods) and pv & (set(c.src) | set(c.dst)):
                n = max(n, 1)
            if ps & set(c.src):
                n = max(n, 4 if c.op.startswith(("v_readlane", "v_writelane")) else 2)
            if ps & {("s", 126), ("s", 127)}:
                n = max(n, 5 if c.dpp else 4)
        if c.kind == "vmem" and ps & set(c.src):
            n = max(n, 5)
        if c.kind == "mfma" and ps & {("s", 126), ("s", 127)}:
            n = max(n, 4)
        if c.kind in ("salu", "smem") and ps & set(c.src):
            n = max(n, 1)
    if p.kind == "salu":
        if ("s", 124) in pd and c.kind == "vmem" and c.lds_dma:
            n = max(n, 1)
    if p.kind == "mfma":
        P = p.passes
        full = {2: 5, 4: 8, 8: 12, 16: 20}[P]
        if c.kind == "mfma":
            if pd & (set(c.srcA) | set(c.srcB)):
                n = max(n, full)
            if pd & set(c.srcC):
                if c.srcC == p.dst and c.passes == P:
                    n = max(n, 0 if P >= 4 else 2)
                else:
                    n = max(n, {2: 4, 4: 6, 8: 10, 16: 18}[P])
            elif pd & set(c.dst):
                n = max(n, full)
        elif c.kind in ("valu", "vmem", "ds"):
            if pd & (set(c.src) | set(c.dst)):
                n = max(n, full)
            if c.kind == "valu" and set(p.srcC) & set(c.dst):
                n = max(n, {2: 1, 4: 3, 8: 7, 16: 15}[P])
    if p.kind == "vmem" and p.wide_store_data:
        if set(p.wide_store_data) & set(c.dst):
            n = max(n, 2 if c.kind == "valu" else 1)
    return n

class Asm:
    def __init__(self):
        self.ins = []
        self.vm = 0
        self.lg = 0
        self._lab = 0
    def __call__(self, text):
        for line in text.split("\n"):
            line = line.strip()
            if not line:
                continue
            i = Ins(line)
            if i.kind != "other":
                dist = 0; need = 0
                for p in reversed(self.ins):
                    if p.states == 0 and not p.label:
                        continue
                    if p.label:
                        continue
                    ns = need_states(p, i)
                    if ns - dist > need:
                        need = ns - dist
                    dist += p.states
                    if dist >= 20:
                        break
                while need > 0:
                    k = min(need, 16)
                    self.ins.append(Ins(f"s_nop {k-1}"))
                    need -= k
            self.ins.append(i)
            if i.kind == "vmem":
                self.vm += 1
            if i.kind == "ds":
                self.lg += 1
        return self
    def vm_tag(self):
        return self.vm
    def lg_tag(self):
        return self.lg
    def wait_vm(self, tag):
        n = self.vm - tag
        assert n >= 0
        self(f"s_waitcnt vmcnt({min(n, 63)})")
    def wait_lg(self, tag):
        n = self.lg - tag
        assert n >= 0
        self(f"s_waitcnt lgkmcnt({min(n, 15)})")
    def label(self, base="L"):
        self._lab += 1
        return f"{base}_{self._lab}"
    def text(self):
        out = []
        for i in self.ins:
            out.append(i.text if (i.label or i.directive) else "    " + i.text)
        return "\n".join(out) + "\n"

def vr(a, n=1):
    return f"v{a}" if n == 1 else f"v[{a}:{a+n-1}]"
def sr(a, n=1):
    return f"s{a}" if n == 1 else f"s[{a}:{a+n-1}]"
```

```python
import sys
from asmlib import *

NAME = "parallel_sum__ssm_conv_h3__glu_gated_swiglu__prompt"
S, D, F = 2048, 448, 1792
WS_KVR = 0
WS_H = 2 << 20
WS_ZT = 10 << 20
WS_STATS = 12 << 20
WS_CS = (12 << 20) + (64 << 10)
WS_SIZE = 16 << 20

Q, Kb, Vb, SSMK, W13, W2, OUT, WS, DBG, SHK = 4, 8, 12, 16, 20, 24, 28, 32, 36, 40
SD = 44
SW3 = 46
WV = 3
def srd(x): return f"s[{x}:{x+3}]"

def prologue(A, nwg, exit_label):
    A(f"s_cmp_ge_u32 s2, {nwg}")
    A(f"s_cbranch_scc1 {exit_label}")
    for reg, slot in ((Q, 0), (Kb, 1), (Vb, 2), (SHK, 3), (SSMK, 4), (SD, 5), (W13, 7), (SW3, 8), (W2, 9), (OUT, 10), (DBG, 11), (WS, 12)):
        A(f"s_load_dwordx2 s[{reg}:{reg+1}], s[0:1], {slot*8}")
    A("v_and_b32 v1, 63, v0")
    A("v_lshrrev_b32 v2, 6, v0")
    A(f"v_readfirstlane_b32 s{WV}, v2")
    for reg, size in ((Q, S*D*2), (Kb, S*D*2), (Vb, S*D*2), (SHK, D*8), (SSMK, D*S*2), (W13, D*F*2), (W2, F*D*2), (OUT, S*D*2), (DBG, 256), (WS, WS_SIZE)):
        A(f"s_mov_b32 s{reg+2}, {size}")
        A(f"s_mov_b32 s{reg+3}, 0x00020000")
    A("s_waitcnt lgkmcnt(0)")

def div7(A, dst, src, tmp=None):
    A(f"s_mul_i32 s{dst}, s{src}, 37")
    A(f"s_lshr_b32 s{dst}, s{dst}, 8")

def unpack(A, lo, hi, src):
    A(f"v_lshlrev_b32 v{lo}, 16, v{src}")
    A(f"v_and_b32 v{hi}, 0xffff0000, v{src}")

def allreduce32(A, v, t):
    for m in ("quad_perm:[1,0,3,2]", "quad_perm:[2,3,0,1]", "row_half_mirror", "row_mirror"):
        A(f"v_add_f32_dpp v{v}, v{v}, v{v} {m} row_mask:0xf bank_mask:0xf")
    A(f"v_mov_b32 v{t}, v{v}")
    A(f"v_permlane16_swap_b32 v{t}, v{v}")
    A(f"v_add_f32 v{v}, v{v}, v{t}")

def round_bf16(A, dst, src):
    A(f"v_cvt_pk_bf16_f32 v{dst}, v{src}, v{src}")
    A(f"v_and_b32 v{dst}, 0xffff0000, v{dst}")

def prep_stats(A):
    A("v_and_b32 v2, 31, v1")
    A("v_lshrrev_b32 v3, 5, v1")
    A(f"s_lshl_b32 s50, s2, 3")
    A(f"s_lshl_b32 s51, s{WV}, 1")
    A("s_add_u32 s50, s50, s51")
    A("s_sub_u32 s50, s50, 8")
    A("v_add_u32 v3, s50, v3")
    A("v_mul_u32_u24 v4, 896, v3")
    A("v_lshl_add_u32 v4, v2, 5, v4")
    A("v_cmp_gt_u32 vcc, 28, v2")
    A("v_mov_b32 v5, 0x7fffff00")
    A("v_cndmask_b32 v4, v5, v4, vcc")
    A("v_cndmask_b32 v6, 0, 1.0, vcc")
    A(f"buffer_load_dwordx4 v[8:11], v4, {srd(Q)}, 0 offen")
    A(f"buffer_load_dwordx4 v[12:15], v4, {srd(Q)}, 0 offen offset:16")
    A("s_waitcnt vmcnt(0)")
    for e in range(8):
        unpack(A, 16 + 2*e, 17 + 2*e, 8 + e)
    A("v_add_f32 v32, v16, v17")
    for e in range(2, 16):
        A(f"v_add_f32 v32, v32, v{16+e}")
    allreduce32(A, 32, 33)
    A(f"v_mul_f32 v32, {1.0/448!r}, v32".replace(repr(1.0/448), hex(f2u(1.0/448))))
    A("v_mov_b32 v34, 0")
    for e in range(16):
        A(f"v_sub_f32 v35, v{16+e}, v32")
        A("v_fmac_f32 v34, v35, v35")
    A("v_mul_f32 v34, v34, v6")
    allreduce32(A, 34, 33)
    A(f"v_mul_f32 v34, {hex(f2u(1.0/448))}, v34")
    round_bf16(A, 34, 34)
    A(f"v_add_f32 v34, {hex(f2u(1e-5))}, v34")
    round_bf16(A, 34, 34)
    A("v_sqrt_f32 v34, v34")
    round_bf16(A, 34, 34)
    A("v_rcp_f32 v37, v34")
    round_bf16(A, 36, 32)
    A("v_lshlrev_b32 v3, 3, v3")
    A("v_cmp_eq_u32 vcc, 0, v2")
    A("v_cndmask_b32 v3, v5, v3, vcc")
    A(f"s_mov_b32 s50, {WS_STATS}")
    A(f"buffer_store_dwordx2 v[36:37], v3, {srd(WS)}, s50 offen sc1")

import struct
def f2u(x): return struct.unpack("<I", struct.pack("<f", x))[0]

def prep_kv(A):
    A("s_mul_i32 s50, s2, 9363")
    A("s_lshr_b32 s50, s50, 16")
    A("s_mul_i32 s51, s50, 7")
    A("s_sub_u32 s51, s2, s51")
    A("v_lshrrev_b32 v2, 3, v1")
    A("v_and_b32 v3, 7, v1")
    A("s_lshl_b32 s52, s51, 6")
    A(f"s_lshl_b32 s53, s{WV}, 4")
    A("s_add_u32 s52, s52, s53")
    A("v_lshl_add_u32 v3, v3, 1, s52")
    A("s_lshl_b32 s53, s50, 6")
    A("v_lshl_add_u32 v2, v2, 3, s53")
    A("v_mul_u32_u24 v4, 896, v2")
    A("v_lshl_add_u32 v4, v3, 1, v4")
    A("v_subrev_u32 v5, 2688, v4")
    A("v_lshlrev_b32 v6, 3, v3")
    A("s_movk_i32 s54, 4480")
    A(f"buffer_load_dwordx4 v[8:11], v6, {srd(SHK)}, 0 offen")
    KR = 12
    for r in range(3):
        A(f"buffer_load_dword v{KR+r}, v5, {srd(Kb)}, 0 offen offset:{r*896}")
    for r in range(8):
        so, off = ("0", r*896) if r < 5 else ("s54", (r-5)*896)
        A(f"buffer_load_dword v{KR+3+r}, v4, {srd(Kb)}, {so} offen offset:{off}")
    VR = 24
    for r in range(8):
        so, off = ("0", r*896) if r < 5 else ("s54", (r-5)*896)
        A(f"buffer_load_dword v{VR+r}, v4, {srd(Vb)}, {so} offen offset:{off}")
    A("v_lshlrev_b32 v6, 12, v3")
    A("v_sub_u32 v7, 2040, v2")
    A("v_lshl_add_u32 v6, v7, 1, v6")
    A("s_waitcnt vmcnt(8)")
    W = 32
    unpack(A, W+0, W+1, 8); unpack(A, W+2, W+3, 9); unpack(A, W+4, W+5, 10); unpack(A, W+6, W+7, 11)
    K0, K1 = 40, 52
    for r in range(11):
        unpack(A, K0 + r, K1 + r, KR + r)
    O0, O1 = 64, 72
    for c, (Kc, Oc) in enumerate(((K0, O0), (K1, O1))):
        for s in range(8):
            A(f"v_mul_f32 v{Oc+s}, v{W+4*c+3}, v{Kc+s}")
            A(f"v_fmac_f32 v{Oc+s}, v{W+4*c+2}, v{Kc+s+1}")
            A(f"v_fmac_f32 v{Oc+s}, v{W+4*c+1}, v{Kc+s+2}")
            A(f"v_fmac_f32 v{Oc+s}, v{W+4*c+0}, v{Kc+s+3}")
    A("s_waitcnt vmcnt(0)")
    for s in range(8):
        unpack(A, 80, 81, VR + s)
        A(f"v_mul_f32 v{O0+s}, v{O0+s}, v80")
        A(f"v_mul_f32 v{O1+s}, v{O1+s}, v81")
    for c, Oc in enumerate((O0, O1)):
        for q in range(4):
            A(f"v_cvt_pk_bf16_f32 v{84+4*c+q}, v{Oc+7-2*q}, v{Oc+6-2*q}")
    A(f"buffer_store_dwordx4 v[84:87], v6, {srd(WS)}, 0 offen sc1")
    A("s_movk_i32 s54, 4096")
    A(f"buffer_store_dwordx4 v[88:91], v6, {srd(WS)}, s54 offen sc1")

def prep_colsum(A):
    A("s_sub_u32 s50, s2, 224")
    A("s_cmp_ge_u32 s50, 14")
    A(f"s_cselect_b32 s{W13}, s{SW3}, s{W13}")
    A(f"s_cselect_b32 s{W13+1}, s{SW3+1}, s{W13+1}")
    A("s_cselect_b32 s51, 14, 0")
    A("s_sub_u32 s51, s50, s51")
    A("v_lshrrev_b32 v2, 4, v0")
    A("v_and_b32 v3, 15, v0")
    A("v_mul_u32_u24 v4, 3584, v2")
    A("v_lshl_add_u32 v4, v3, 4, v4")
    A("s_lshl_b32 s52, s51, 8")
    tags = []
    for it in range(14):
        A(f"buffer_load_dwordx4 v[{100+4*it}:{103+4*it}], v4, {srd(W13)}, s52 offen")
        tags.append(A.vm_tag())
        if it < 13:
            A(f"s_add_u32 s52, s52, {32*3584}")
    for e in range(8):
        A(f"v_mov_b32 v{8+e}, 0")
    for it in range(14):
        A.wait_vm(tags[it])
        for e in range(4):
            unpack(A, 16, 17, 100 + 4*it + e)
            A(f"v_add_f32 v{8+2*e}, v{8+2*e}, v16")
            A(f"v_add_f32 v{9+2*e}, v{9+2*e}, v17")
    A("v_lshlrev_b32 v5, 5, v0")
    A("ds_write_b128 v5, v[8:11]")
    A("ds_write_b128 v5, v[12:15] offset:16")
    A("s_waitcnt lgkmcnt(0)")
    A("s_barrier")
    lab = A.label("L_cs_done")
    A(f"s_cmp_ge_u32 s{WV}, 2")
    A(f"s_cbranch_scc1 {lab}")
    A("v_lshlrev_b32 v5, 2, v0")
    for r in range(32):
        A(f"ds_read_b32 v{32+r}, v5 offset:{r*512}")
    A("s_waitcnt lgkmcnt(0)")
    for r in range(1, 32):
        A(f"v_add_f32 v32, v32, v{32+r}")
    A("s_lshl_b32 s52, s50, 9")
    A(f"s_add_u32 s52, s52, {WS_CS}")
    A(f"buffer_store_dword v32, v5, {srd(WS)}, s52 offen sc1")
    A(f"{lab}:")

def phase_prep(A):
    l_stats = A.label("L_stats"); l_join = A.label("L_pjoin"); l_end = A.label("L_pend")
    A(f"s_cmp_ge_u32 s{WV}, 4")
    A(f"s_cbranch_scc1 {l_stats}")
    A("s_cmp_ge_u32 s2, 224")
    A(f"s_cbranch_scc1 {l_join}")
    prep_kv(A)
    A(f"s_branch {l_join}")
    A(f"{l_stats}:")
    prep_stats(A)
    A(f"{l_join}:")
    A("s_cmp_lt_u32 s2, 224")
    A(f"s_cbranch_scc1 {l_end}")
    A("s_cmp_ge_u32 s2, 252")
    A(f"s_cbranch_scc1 {l_end}")
    A("s_waitcnt vmcnt(0)")
    prep_colsum(A)
    A(f"{l_end}:")

def phase_g1(A):
    SI, SJ, SC, SOX, SOW, SMX, SMW, ST = 50, 51, 52, 53, 54, 55, 56, 57
    A("s_and_b32 s58, s2, 7")
    A("s_lshr_b32 s59, s2, 3")
    div7(A, 60, 59)
    A("s_mul_i32 s61, s60, 7")
    A("s_sub_u32 s61, s59, s61")
    A("s_and_b32 s62, s58, 3")
    A("s_lshl_b32 s62, s62, 2")
    A(f"s_add_u32 s{SI}, s62, s60")
    A("s_lshr_b32 s62, s58, 2")
    A("s_mul_i32 s62, s62, 7")
    A(f"s_add_u32 s{SJ}, s62, s61")
    A("s_lshl_b32 s62, s60, 1")
    A("s_add_u32 s62, s62, s61")
    A("s_add_u32 s62, s62, s58")
    div7(A, 63, 62)
    A("s_mul_i32 s63, s63, 7")
    A(f"s_sub_u32 s{SC}, s62, s63")
    A(f"s_cmp_ge_u32 s{WV}, 4")
    A(f"s_cselect_b32 s{W13}, s{SW3}, s{W13}")
    A(f"s_cselect_b32 s{W13+1}, s{SW3+1}, s{W13+1}")
    A("s_cselect_b32 s62, 4, 0")
    A(f"s_lshl_b32 s63, s{SI}, 7")
    A(f"s_lshl_b32 s{ST}, s{WV}, 4")
    A(f"s_add_u32 s63, s63, s{ST}")
    A(f"s_mul_i32 s{SOX}, s63, 896")
    A(f"s_and_b32 s63, s{WV}, 3")
    A(f"s_mul_i32 s{SOW}, s63, {16*3584}")
    A(f"s_lshl_b32 s63, s{SJ}, 8")
    A(f"s_add_u32 s{SOW}, s{SOW}, s63")
    A(f"s_lshl_b32 s{SMX}, s{WV}, 11")
    A(f"s_and_b32 s63, s{WV}, 3")
    A(f"s_lshl_b32 s{SMW}, s63, 12")
    A(f"s_mul_i32 s63, s62, {49152//4}")
    A(f"s_add_u32 s{SMW}, s{SMW}, s63")
    A(f"s_add_u32 s{SMW}, s{SMW}, 49152")
    VX, VW = 2, 4
    A("v_lshrrev_b32 v8, 3, v1")
    A("v_and_b32 v9, 7, v1")
    A("v_lshrrev_b32 v10, 1, v8")
    A("v_xor_b32 v10, v9, v10")
    A("v_mul_u32_u24 v11, 896, v8")
    A(f"v_lshl_add_u32 v{VX}, v10, 4, v11")
    A("v_xor_b32 v10, 4, v10")
    A(f"v_lshl_add_u32 v{VX+1}, v10, 4, v11")
    A(f"v_add_u32 v{VX+1}, {8*896-1024}, v{VX+1}")
    A("v_lshrrev_b32 v8, 4, v1")
    A("v_bfe_u32 v9, v1, 1, 3")
    A("v_xor_b32 v9, v9, v8")
    A("v_xor_b32 v9, s62, v9")
    A("v_and_b32 v10, 1, v1")
    A("v_lshlrev_b32 v10, 4, v10")
    A("v_lshl_add_u32 v10, v9, 5, v10")
    A("v_mul_u32_u24 v11, 3584, v8")
    A(f"v_add_u32 v{VW}, v10, v11")
    for e in range(1, 4):
        A(f"v_add_u32 v{VW+e}, {e*(14336-1024)}, v{VW}")
    dma_tag = {}
    def dma(stage):
        slot = stage % 3
        A(f"s_lshl_b32 s62, s{SC}, 7")
        A(f"s_add_u32 s62, s62, s{SOX}")
        A(f"s_mul_i32 s63, s{SC}, {64*3584}")
        A(f"s_add_u32 s63, s63, s{SOW}")
        A(f"s_add_u32 m0, s{SMW}, {slot*16384}")
        for e in range(4):
            A(f"buffer_load_dwordx4 v{VW+e}, {srd(W13)}, s63 offen offset:{e*1024} lds")
        A(f"s_add_u32 m0, s{SMX}, {slot*16384}")
        for e in range(2):
            A(f"buffer_load_dwordx4 v{VX+e}, {srd(Q)}, s62 offen offset:{e*1024} lds")
        dma_tag[stage] = A.vm_tag()
        A(f"s_add_u32 s{SC}, s{SC}, 1")
        A(f"s_cmp_ge_u32 s{SC}, 7")
        A(f"s_cselect_b32 s{SC}, 0, s{SC}")
    for s in range(3):
        dma(s)
    XA, WA = 8, 12
    A(f"s_and_b32 s62, s{WV}, 1")
    A(f"s_lshr_b32 s63, s{WV}, 1")
    A("v_and_b32 v14, 31, v1")
    A("v_lshrrev_b32 v15, 5, v1")
    A("v_bfe_u32 v16, v1, 1, 3")
    A("v_xor_b32 v16, v16, v15")
    A("s_lshl_b32 s58, s62, 13")
    A("v_lshl_add_u32 v17, v14, 7, s58")
    for ks in range(4):
        A(f"v_xor_b32 v18, {2*ks}, v16")
        A(f"v_lshl_add_u32 v{XA+ks}, v18, 4, v17")
    A("v_bfe_u32 v16, v1, 4, 1")
    A("v_bfe_u32 v17, v1, 2, 2")
    A("v_lshl_add_u32 v18, v15, 3, v17")
    A("v_lshlrev_b32 v18, 8, v18")
    A("v_mul_u32_u24 v19, 49152, v16")
    A("v_add_u32 v18, v18, v19")
    A("v_add_u32 v18, 49152, v18")
    A("v_and_b32 v19, 1, v1")
    A("v_lshlrev_b32 v19, 4, v19")
    A("v_bfe_u32 v20, v1, 1, 1")
    A("v_lshl_add_u32 v19, v20, 3, v19")
    A("v_add_u32 v18, v18, v19")
    A("v_lshlrev_b32 v16, 2, v16")
    A("v_xor_b32 v16, v16, v17")
    A("s_lshl_b32 s58, s63, 1")
    A("v_xor_b32 v16, s58, v16")
    A(f"v_lshl_add_u32 v{WA}, v16, 5, v18")
    A("v_xor_b32 v16, 1, v16")
    A(f"v_lshl_add_u32 v{WA+1}, v16, 5, v18")
    FR = [16, 32]
    ACC = 64
    def reads(stage, ks, fs):
        slot = stage % 3
        b = FR[fs]
        for tt in range(2):
            for sec in range(2):
                A(f"ds_read_b64_tr_b16 v[{b+8+4*tt+2*sec}:{b+9+4*tt+2*sec}], v{WA+tt} offset:{slot*16384 + ks*4096 + sec*1024}")
        for nt in range(2):
            A(f"ds_read_b128 v[{b+4*nt}:{b+4*nt+3}], v{XA+ks} offset:{slot*16384 + nt*4096}")
        return A.lg_tag()
    def mfmas(first, fs):
        b = FR[fs]
        for tt in range(2):
            for nt in range(2):
                a = ACC + (tt*2 + nt)*16
                c = "0" if first else f"v[{a}:{a+15}]"
                A(f"v_mfma_f32_32x32x16_bf16 v[{a}:{a+15}], v[{b+8+4*tt}:{b+11+4*tt}], v[{b+4*nt}:{b+4*nt+3}], {c}")
    A.wait_vm(dma_tag[0])
    A("s_barrier")
    tag = reads(0, 0, 0)
    fs = 0
    CS, STT = 128, 160
    for s in range(7):
        for ks in range(4):
            if ks < 3:
                ntag = reads(s, ks + 1, fs ^ 1)
                A.wait_lg(tag)
            else:
                A.wait_lg(tag)
                if s < 6:
                    A.wait_vm(dma_tag[s+1])
                    A("s_barrier")
                    ntag = reads(s + 1, 0, fs ^ 1)
                    if s + 3 < 7:
                        dma(s + 3)
                    if s == 4:
                        A(f"s_lshl_b32 s58, s{SI}, 10")
                        A(f"s_and_b32 s59, s{WV}, 1")
                        A("s_lshl_b32 s59, s59, 9")
                        A("s_add_u32 s58, s58, s59")
                        A(f"s_add_u32 s58, s58, {WS_STATS}")
                        A("v_lshlrev_b32 v48, 3, v14")
                        for nt in range(2):
                            A(f"buffer_load_dwordx2 v[{STT+2*nt}:{STT+2*nt+1}], v48, {srd(WS)}, s58 offen offset:{nt*256} sc1")
                        A(f"s_lshl_b32 s58, s{SJ}, 9")
                        A(f"s_lshr_b32 s59, s{WV}, 1")
                        A("s_lshl_b32 s59, s59, 7")
                        A("s_add_u32 s58, s58, s59")
                        A(f"s_add_u32 s58, s58, {WS_CS}")
                        A(f"s_add_u32 s59, s58, {F*4}")
                        A("v_lshlrev_b32 v49, 5, v15")
                        for tt in range(2):
                            for mat in range(2):
                                for hf in range(2):
                                    r = CS + tt*16 + mat*8 + hf*4
                                    A(f"buffer_load_dwordx4 v[{r}:{r+3}], v49, {srd(WS)}, s{58+mat} offen offset:{tt*64+hf*16} sc1")
            mfmas(s == 0 and ks == 0, fs)
            tag = ntag
            fs ^= 1
    A("s_waitcnt vmcnt(0)")
    K1, KQ = 164, 166
    for nt in range(2):
        A(f"v_mul_f32 v{K1+nt}, {hex(f2u(-1.4426950408889634))}, v{STT+2*nt+1}")
        A(f"v_mul_f32 v{KQ+nt}, v{STT+2*nt+1}, v{STT+2*nt+1}")
        A(f"v_rcp_f32 v{KQ+nt}, v{KQ+nt}")
    A(f"s_lshl_b32 s58, s{SI}, 2")
    A(f"s_and_b32 s59, s{WV}, 1")
    A("s_lshl_b32 s59, s59, 1")
    A("s_add_u32 s58, s58, s59")
    A("s_mul_i32 s58, s58, 112")
    A(f"s_lshl_b32 s59, s{SJ}, 3")
    A("s_add_u32 s58, s58, s59")
    A(f"s_lshr_b32 s59, s{WV}, 1")
    A("s_lshl_b32 s59, s59, 1")
    A("s_add_u32 s58, s58, s59")
    A("s_lshl_b32 s58, s58, 10")
    A(f"s_add_u32 s58, s58, {WS_H}")
    A(f"s_add_u32 s59, s58, {112*1024}")
    A("v_lshlrev_b32 v48, 4, v1")
    T = 168
    for tt in range(2):
        for nt in range(2):
            a = ACC + (tt*2 + nt)*16
            cs = CS + tt*16
            for r in range(16):
                A(f"v_fma_f32 v{a+r}, -v{STT+2*nt}, v{cs+r}, v{a+r}")
            for r in range(8):
                A(f"v_mul_f32 v{T+r}, v{K1+nt}, v{a+r}")
            for r in range(8):
                A(f"v_exp_f32 v{T+r}, v{T+r}")
            for r in range(8):
                A(f"v_mul_f32 v{a+r}, v{a+r}, v{a+8+r}")
            for r in range(8):
                A(f"v_fma_f32 v{T+r}, v{T+r}, v{KQ+nt}, v{KQ+nt}")
            for r in range(8):
                A(f"v_rcp_f32 v{T+r}, v{T+r}")
            for r in range(8):
                A(f"v_mul_f32 v{a+r}, v{a+r}, v{T+r}")
            for q in range(4):
                A(f"v_cvt_pk_bf16_f32 v{a+8+q}, v{a+2*q}, v{a+2*q+1}")
            A(f"buffer_store_dwordx4 v[{a+8}:{a+11}], v48, {srd(WS)}, s{58+nt} offen offset:{tt*1024} sc1")

CH_STRIDE = 17664
R0_OFF, R1_OFF, H0_OFF, H1A_OFF = 0, 4640, 9280, 13520
CX_OFF = 36864
def phase_conv(A):
    A("s_lshl_b32 s50, s2, 13")
    A("v_lshlrev_b32 v2, 4, v0")
    A("v_and_b32 v3, 255, v0")
    A("v_add_u32 v4, 16, v2")
    A("v_cmp_eq_u32 vcc, 255, v3")
    A("v_mov_b32 v5, 0x7fffff00")
    A("v_cndmask_b32 v4, v4, v5, vcc")
    A(f"buffer_load_dwordx4 v[8:11], v2, {srd(WS)}, s50 offen sc1")
    A(f"buffer_load_dword v12, v4, {srd(WS)}, s50 offen sc1")
    A("s_lshl_b32 s51, s2, 2")
    A(f"s_load_dword s52, s[{SD}:{SD+1}], s51")
    A(f"s_lshr_b32 s53, s{WV}, 2")
    A(f"s_mul_i32 s53, s53, {CH_STRIDE}")
    A(f"s_and_b32 s54, s{WV}, 3")
    A("s_lshl_b32 s54, s54, 10")
    A("s_add_u32 s54, s54, s53")
    A(f"s_add_u32 m0, s54, {H0_OFF}")
    A(f"buffer_load_dwordx4 v2, {srd(SSMK)}, s50 offen lds")
    A(f"s_add_u32 m0, s54, {H1A_OFF}")
    A("s_add_u32 s55, s50, 4")
    A(f"buffer_load_dwordx4 v2, {srd(SSMK)}, s55 offen lds")
    A("v_mov_b32 v16, 0"); A("v_mov_b32 v17, 0"); A("v_mov_b32 v18, 0"); A("v_mov_b32 v19, 0")
    A(f"s_bfe_u32 s55, s{WV}, 0x10001")
    A(f"s_mul_i32 s55, s55, {CH_STRIDE}")
    A(f"s_and_b32 s56, s{WV}, 1")
    A(f"s_mul_i32 s57, s56, {R1_OFF-R0_OFF}")
    A(f"s_add_u32 s57, s57, {R0_OFF+4096}")
    A(f"s_mul_i32 s58, s56, {13376-9216}")
    A(f"s_add_u32 s58, s58, 9216")
    A("s_cmp_eq_u32 s56, 1")
    A(f"s_cselect_b32 s59, 9, 4")
    A(f"s_cmp_ge_u32 s{WV}, 4")
    A("s_cselect_b32 s57, s58, s57")
    A("s_cselect_b32 s59, s59, 28")
    A("s_add_u32 s57, s57, s55")
    A("v_lshl_add_u32 v6, v1, 4, s57")
    A("v_cmp_gt_u32 vcc, s59, v1")
    A("s_and_saveexec_b64 s[60:61], vcc")
    A("ds_write_b128 v6, v[16:19]")
    A("s_mov_b64 exec, s[60:61]")
    A("s_waitcnt lgkmcnt(0)")
    A("s_barrier")
    lab = A.label("L_nod0")
    A(f"s_and_b32 s56, s{WV}, 3")
    A("s_cmp_lg_u32 s56, 0")
    A(f"s_cbranch_scc1 {lab}")
    A(f"s_add_u32 m0, s53, {H1A_OFF-4}")
    A("s_mov_b64 exec, 1")
    A(f"buffer_load_dword v2, {srd(SSMK)}, s50 offen lds")
    A("s_mov_b64 exec, -1")
    A(f"{lab}:")
    A("v_lshrrev_b32 v6, 8, v0")
    A(f"v_mul_u32_u24 v6, {CH_STRIDE}, v6")
    A("v_lshl_add_u32 v6, v3, 4, v6")
    A("s_waitcnt vmcnt(0)")
    for q in range(4):
        A(f"v_alignbit_b32 v{16+q}, v{9+q}, v{8+q}, 16")
    A(f"ds_write_b128 v6, v[8:11] offset:{R1_OFF}")
    A(f"ds_write_b128 v6, v[16:19] offset:{R0_OFF}")
    A(f"s_and_b32 s53, s{WV}, 1")
    A(f"s_mul_i32 s54, s53, {CH_STRIDE}")
    A(f"s_lshr_b32 s55, s{WV}, 1")
    A("s_lshl_b32 s56, s55, 7")
    A("s_add_u32 s56, s56, s54")
    A("v_and_b32 v2, 15, v1")
    A("v_lshrrev_b32 v3, 4, v1")
    A("v_and_b32 v4, 1, v1")
    A(f"v_mul_u32_u24 v5, {H1A_OFF-4-H0_OFF}, v4")
    A(f"v_sub_u32 v5, {H1A_OFF-4-60}, v5")
    A("v_lshl_add_u32 v5, v2, 2, v5")
    A("v_lshl_add_u32 v5, v3, 4, v5")
    A("v_add_u32 v5, s56, v5")
    A(f"v_mul_u32_u24 v6, {R1_OFF-R0_OFF}, v4")
    A(f"v_add_u32 v6, {R0_OFF+4032-3584}, v6")
    A("v_lshl_add_u32 v6, v3, 4, v6")
    A("v_lshrrev_b32 v7, 1, v2")
    A("v_lshlrev_b32 v13, 6, v7")
    A("v_sub_u32 v6, v6, v13")
    A("v_add_u32 v6, s56, v6")
    A("s_waitcnt lgkmcnt(0)")
    A("s_barrier")
    AF, BF, Y = [64, 128], [96, 160], 32
    order = []
    for t in range(8):
        order.append(("A", t)); order.append(("B", t))
    tags = {}
    for rr in range(2):
        for kind, t in order:
            if kind == "A":
                for h in range(2):
                    A(f"ds_read_b64 v[{AF[rr]+4*t+2*h}:{AF[rr]+4*t+2*h+1}], v5 offset:{64*rr + 512*t + 8*h}")
            else:
                A(f"ds_read_b128 v[{BF[rr]+4*t}:{BF[rr]+4*t+3}], v6 offset:{64*rr + 512*(7-t)}")
            tags[(rr, kind, t)] = A.lg_tag()
    seen = set()
    for rr in range(2):
        for t in range(8):
            pairs = [(p, t) for p in range(t)] + [(t, q) for q in range(t + 1)]
            pairs = [(p, q) for p, q in pairs if p + q <= 7]
            if not pairs:
                continue
            A.wait_lg(tags[(rr, "B", t)])
            for p, q in pairs:
                j = p + q
                c = f"v[{Y+4*j}:{Y+4*j+3}]" if j in seen else "0"
                seen.add(j)
                A(f"v_mfma_f32_16x16x32_bf16 v[{Y+4*j}:{Y+4*j+3}], v[{AF[rr]+4*p}:{AF[rr]+4*p+3}], v[{BF[rr]+4*q}:{BF[rr]+4*q+3}], {c}")
    TS = 1088
    A(f"s_mul_i32 s57, s{WV}, {8*TS}")
    A(f"s_add_u32 s57, s57, {CX_OFF}")
    A("v_mul_u32_u24 v8, 544, v4")
    A("v_lshl_add_u32 v8, v7, 6, v8")
    A("v_lshl_add_u32 v8, v3, 4, v8")
    A("v_add_u32 v8, s57, v8")
    for j in range(8):
        A(f"ds_write_b128 v8, v[{Y+4*j}:{Y+4*j+3}] offset:{j*TS}")
    A("v_lshrrev_b32 v9, 5, v1")
    A("v_and_b32 v10, 31, v1")
    A(f"v_mul_u32_u24 v11, {TS}, v9")
    A("v_lshl_add_u32 v11, v10, 4, v11")
    A(f"s_mul_i32 s57, s55, {2*TS}")
    A(f"s_mul_i32 s58, s53, {8*TS}")
    A("s_add_u32 s57, s57, s58")
    A(f"s_add_u32 s57, s57, {CX_OFF}")
    A("v_add_u32 v11, s57, v11")
    A("s_lshl_b32 s57, s55, 10")
    A(f"s_sub_u32 s57, s54, s57")
    A(f"s_add_u32 s57, s57, {R1_OFF+4080}")
    A("v_lshlrev_b32 v12, 4, v1")
    A("v_sub_u32 v13, s57, v12")
    A("s_waitcnt lgkmcnt(0)")
    A("s_barrier")
    A("ds_read_b128 v[16:19], v13")
    for src in range(4):
        for w in range(2):
            A(f"ds_read_b128 v[{64+8*src+4*w}:{67+8*src+4*w}], v11 offset:{src*16*TS + w*544}")
    A("s_cmp_eq_u32 s53, 1")
    A("s_lshl_b32 s57, s52, 16")
    A("s_and_b32 s58, s52, 0xffff0000")
    A("s_cmp_eq_u32 s53, 1")
    A("s_cselect_b32 s57, s58, s57")
    A("s_waitcnt lgkmcnt(0)")
    for e in range(8):
        A(f"v_add_f32 v{64+e}, v{64+e}, v{72+e}")
        A(f"v_add_f32 v{80+e}, v{80+e}, v{88+e}")
    for e in range(8):
        A(f"v_add_f32 v{64+e}, v{64+e}, v{80+e}")
    for q in range(4):
        unpack(A, 20, 21, 16 + q)
        r = 3 - q
        A(f"v_fmac_f32 v{68+r}, s57, v20")
        A(f"v_fmac_f32 v{64+r}, s57, v21")
    for r in range(4):
        A(f"v_cvt_pk_bf16_f32 v{24+r}, v{64+r}, v{68+r}")
    A("s_lshl_b32 s57, s53, 12")
    A("s_add_u32 s57, s57, s50")
    A("s_lshl_b32 s58, s55, 10")
    A("s_add_u32 s57, s57, s58")
    A(f"s_add_u32 s57, s57, {WS_ZT}")
    A(f"buffer_store_dwordx4 v[24:27], v12, {srd(WS)}, s57 offen sc1")

ZB = 131072
def phase_g2(A):
    SSB, SN, SC, SOH, SOW, SM = 50, 51, 52, 53, 54, 55
    A("s_and_b32 s58, s2, 7")
    A("s_lshr_b32 s59, s2, 3")
    div7(A, 60, 59)
    A("s_mul_i32 s61, s60, 7")
    A(f"s_sub_u32 s{SN}, s59, s61")
    A("s_lshl_b32 s61, s58, 2")
    A(f"s_add_u32 s{SSB}, s61, s60")
    A("s_lshl_b32 s62, s60, 1")
    A(f"s_add_u32 s62, s62, s{SN}")
    div7(A, 63, 62)
    A("s_mul_i32 s63, s63, 7")
    A(f"s_sub_u32 s{SC}, s62, s63")
    A(f"s_lshr_b32 s56, s{WV}, 1")
    A(f"s_and_b32 s57, s{WV}, 1")
    A(f"s_lshl_b32 s58, s{SSB}, 1")
    A("s_add_u32 s58, s58, s57")
    A("s_mul_i32 s58, s58, 112")
    A("s_mul_i32 s59, s56, 28")
    A("s_add_u32 s58, s58, s59")
    A("s_lshl_b32 s58, s58, 10")
    A(f"s_add_u32 s{SOH}, s58, {WS_H}")
    A("s_mul_i32 s58, s56, 448")
    A("s_lshl_b32 s59, s57, 3")
    A("s_add_u32 s58, s58, s59")
    A("s_mul_i32 s58, s58, 896")
    A(f"s_lshl_b32 s59, s{SN}, 7")
    A(f"s_add_u32 s{SOW}, s58, s59")
    A(f"s_lshl_b32 s{SM}, s{WV}, 12")
    VH, VW = 2, 4
    A(f"v_lshlrev_b32 v{VH}, 4, v1")
    A("v_lshrrev_b32 v8, 3, v1")
    A("v_and_b32 v9, 7, v1")
    A("v_bfe_u32 v10, v1, 4, 1")
    A("v_lshlrev_b32 v10, 2, v10")
    A("v_xor_b32 v9, v9, v10")
    A("v_mul_u32_u24 v10, 896, v8")
    A(f"v_lshl_add_u32 v{VW}, v9, 4, v10")
    for e in range(1, 4):
        A(f"v_add_u32 v{VW+e}, {e*(14336-1024)}, v{VW}")
    HF = 128
    for sg in range(7):
        A(f"s_mov_b32 s{64+sg}, s{SC}")
        A(f"s_add_u32 s{SC}, s{SC}, 1")
        A(f"s_cmp_ge_u32 s{SC}, 7")
        A(f"s_cselect_b32 s{SC}, 0, s{SC}")
    tagW, tagH = {}, {}
    def dma(sg):
        A(f"s_mul_i32 s58, s{64+sg}, {64*896}")
        A(f"s_add_u32 s58, s58, s{SOW}")
        A(f"s_add_u32 m0, s{SM}, {(sg % 4)*32768}")
        for e in range(4):
            A(f"buffer_load_dwordx4 v{VW+e}, {srd(W2)}, s58 offen offset:{e*1024} lds")
        tagW[sg] = A.vm_tag()
    def hload(sg):
        A(f"s_lshl_b32 s58, s{64+sg}, 12")
        A(f"s_add_u32 s58, s58, s{SOH}")
        for e in range(4):
            r = HF + (sg*4 + e)*4
            A(f"buffer_load_dwordx4 v[{r}:{r+3}], v{VH}, {srd(WS)}, s58 offen offset:{e*1024} sc1")
        tagH[sg] = A.vm_tag()
    for sg in range(4):
        dma(sg); hload(sg)
    for sg in range(4, 7):
        hload(sg)
    XR, STT, ZR = 96, 100, 104
    A(f"s_lshl_b32 s58, s{SSB}, 6")
    A("s_lshl_b32 s59, s57, 5")
    A("s_add_u32 s58, s58, s59")
    A("s_lshl_b32 s59, s56, 3")
    A("s_add_u32 s58, s58, s59")
    A("v_add_u32 v9, s58, v8")
    A("v_mul_u32_u24 v10, 896, v9")
    A("v_and_b32 v11, 7, v1")
    A("v_lshl_add_u32 v3, v11, 4, v10")
    A(f"s_lshl_b32 s71, s{SN}, 7")
    A(f"buffer_load_dwordx4 v[{XR}:{XR+3}], v3, {srd(Q)}, s71 offen")
    A("v_lshlrev_b32 v9, 3, v9")
    A(f"s_mov_b32 s58, {WS_STATS}")
    A(f"buffer_load_dwordx2 v[{STT}:{STT+1}], v9, {srd(WS)}, s58 offen sc1")
    A("v_lshrrev_b32 v9, 3, v0")
    A("v_lshlrev_b32 v9, 12, v9")
    A("v_lshl_add_u32 v9, v11, 4, v9")
    A(f"s_lshl_b32 s58, s{SN}, 18")
    A(f"s_lshl_b32 s59, s{SSB}, 7")
    A("s_add_u32 s58, s58, s59")
    A(f"s_add_u32 s58, s58, {WS_ZT}")
    A(f"buffer_load_dwordx4 v[{ZR}:{ZR+3}], v9, {srd(WS)}, s58 offen sc1")
    tagZ = A.vm_tag()
    A("v_lshrrev_b32 v9, 5, v1")
    A("v_bfe_u32 v10, v1, 2, 2")
    A("v_lshlrev_b32 v12, 12, v9")
    A("v_lshl_add_u32 v12, v10, 7, v12")
    A("v_and_b32 v9, 1, v1")
    A("v_lshl_add_u32 v12, v9, 5, v12")
    A("v_bfe_u32 v9, v1, 4, 1")
    A("v_lshl_add_u32 v12, v9, 4, v12")
    A("v_bfe_u32 v9, v1, 1, 1")
    A("v_lshl_add_u32 v12, v9, 3, v12")
    A("s_lshl_b32 s58, s56, 13")
    A("v_add_u32 v12, s58, v12")
    A("v_bfe_u32 v9, v1, 3, 1")
    A("v_xor_b32 v10, 1, v9")
    A("v_lshl_add_u32 v13, v10, 6, v12")
    A("v_lshl_add_u32 v12, v9, 6, v12")
    A("v_add_u32 v14, 65536, v12")
    A("v_add_u32 v15, 65536, v13")
    FR = [16, 24]
    ACC = 64
    def reads(sg, tl, fs):
        slot = sg % 4
        for dt in range(2):
            for sec in range(2):
                b = FR[fs] + 4*dt + 2*sec
                A(f"ds_read_b64_tr_b16 v[{b}:{b+1}], v{12 + 2*(slot >> 1) + dt} offset:{(slot & 1)*32768 + tl*1024 + sec*512}")
        return A.lg_tag()
    A.wait_vm(max(tagW[0], tagH[0]))
    A("s_barrier")
    tag = reads(0, 0, 0)
    fs = 0
    for sg in range(7):
        for tl in range(4):
            if tl < 3:
                ntag = reads(sg, tl + 1, fs ^ 1)
                A.wait_lg(tag)
            else:
                A.wait_lg(tag)
                if sg < 6:
                    A.wait_vm(max(tagW[sg+1], tagH[sg+1]))
                    A("s_barrier")
                    ntag = reads(sg + 1, 0, fs ^ 1)
                    if sg + 4 < 7:
                        dma(sg + 4)
            h = HF + (sg*4 + tl)*4
            for dt in range(2):
                a = ACC + 16*dt
                c = "0" if (sg == 0 and tl == 0) else f"v[{a}:{a+15}]"
                A(f"v_mfma_f32_32x32x16_bf16 v[{a}:{a+15}], v[{FR[fs]+4*dt}:{FR[fs]+4*dt+3}], v[{h}:{h+3}], {c}")
            tag = ntag
            fs ^= 1
    A("v_and_b32 v9, 7, v1")
    A(f"v_xor_b32 v10, s{WV}, v9")
    A("v_lshlrev_b32 v10, 4, v10")
    A("v_lshl_add_u32 v10, v9, 10, v10")
    A("v_lshl_add_u32 v10, v8, 1, v10")
    A(f"v_add_u32 v10, {ZB}, v10")
    A.wait_vm(tagZ)
    for e in range(8):
        op = "ds_write_b16" if e % 2 == 0 else "ds_write_b16_d16_hi"
        A(f"{op} v10, v{ZR + e//2} offset:{e*128}")
    A("v_and_b32 v9, 31, v1")
    A("v_lshrrev_b32 v10, 5, v1")
    A("v_lshlrev_b32 v10, 2, v10")
    A("v_and_b32 v11, 7, v1")
    A("v_xor_b32 v10, v10, v11")
    A(f"s_lshl_b32 s58, s{WV}, 13")
    A("v_lshl_add_u32 v9, v9, 8, s58")
    for rho in range(4):
        A(f"v_xor_b32 v16, {rho}, v10")
        A(f"v_lshl_add_u32 v{20+rho}, v16, 4, v9")
    for dt in range(2):
        for rho in range(4):
            a = ACC + 16*dt + 4*rho
            A(f"ds_write_b128 v{20+rho}, v[{a}:{a+3}] offset:{dt*128}")
    A("s_lshl_b32 s58, s56, 3")
    A("v_add_u32 v9, s58, v8")
    A("v_lshlrev_b32 v10, 1, v11")
    A("v_xor_b32 v10, v10, v8")
    A("v_lshlrev_b32 v9, 8, v9")
    A("s_lshl_b32 s58, s57, 13")
    A("v_add_u32 v9, s58, v9")
    A("v_lshl_add_u32 v16, v10, 4, v9")
    A("v_xor_b32 v10, 1, v10")
    A("v_lshl_add_u32 v17, v10, 4, v9")
    A("s_lshl_b32 s58, s57, 2")
    A("s_add_u32 s58, s58, s56")
    A("v_xor_b32 v10, s58, v11")
    A("v_lshlrev_b32 v10, 4, v10")
    A("v_lshl_add_u32 v10, v8, 7, v10")
    A("s_lshl_b32 s58, s58, 10")
    A(f"s_add_u32 s58, s58, {ZB}")
    A("v_add_u32 v10, s58, v10")
    A("s_waitcnt lgkmcnt(0)")
    A("s_barrier")
    A(f"ds_read_b128 v[{ZR}:{ZR+3}], v10")
    P = 128
    for src in range(4):
        for hf in range(2):
            A(f"ds_read_b128 v[{P+8*src+4*hf}:{P+8*src+4*hf+3}], v{16+hf} offset:{src*16384}")
    XF, TT, ZF = 32, 40, 48
    for q in range(4):
        unpack(A, XF+2*q, XF+2*q+1, XR+q)
    for e in range(8):
        A(f"v_sub_f32 v{TT+e}, v{XF+e}, v{STT}")
    def rnd(base):
        for q in range(4):
            A(f"v_cvt_pk_bf16_f32 v{56+q}, v{base+2*q}, v{base+2*q+1}")
        for q in range(4):
            unpack(A, base+2*q, base+2*q+1, 56+q)
    rnd(TT)
    for e in range(8):
        A(f"v_mul_f32 v{TT+e}, v{TT+e}, v{STT+1}")
    rnd(TT)
    A("s_waitcnt lgkmcnt(8)")
    for q in range(4):
        unpack(A, ZF+2*q, ZF+2*q+1, ZR+q)
    for e in range(8):
        A(f"v_mul_f32 v{TT+e}, v{TT+e}, v{ZF+e}")
    rnd(TT)
    for e in range(8):
        A(f"v_add_f32 v{TT+e}, v{TT+e}, v{XF+e}")
    rnd(TT)
    A("s_waitcnt lgkmcnt(0)")
    for e in range(8):
        A(f"v_add_f32 v{P+e}, v{P+e}, v{P+8+e}")
        A(f"v_add_f32 v{P+16+e}, v{P+16+e}, v{P+24+e}")
    for e in range(8):
        A(f"v_add_f32 v{P+e}, v{P+e}, v{P+16+e}")
    rnd(P)
    for e in range(8):
        A(f"v_add_f32 v{P+e}, v{P+e}, v{TT+e}")
    for q in range(4):
        A(f"v_cvt_pk_bf16_f32 v{56+q}, v{P+2*q}, v{P+2*q+1}")
    A(f"buffer_store_dwordx4 v[56:59], v3, {srd(OUT)}, s71 offen")

def kd(name, vgpr=256):
    return f""".amdhsa_kernel {name}
  .amdhsa_next_free_vgpr {vgpr}
  .amdhsa_next_free_sgpr 96
  .amdhsa_accum_offset {vgpr}
  .amdhsa_group_segment_fixed_size 0
  .amdhsa_kernarg_size 104
  .amdhsa_user_sgpr_count 2
  .amdhsa_user_sgpr_kernarg_segment_ptr 1
  .amdhsa_system_sgpr_workgroup_id_x 1
.end_amdhsa_kernel
"""

def build_multi():
    ks = [("prep_kernel", 256, phase_prep, 16384), ("g1_kernel", 224, phase_g1, 163840), ("conv_kernel", 224, phase_conv, 163840), ("g2_kernel", 224, phase_g2, 163840)]
    out = []
    for name, nwg, fn, lds in ks:
        out.append(f"; @launch kernel={name} grid=({nwg},1,1) block=(512,1,1) lds={lds}")
    out.append('.amdgcn_target "amdgcn-amd-amdhsa--gfx950"')
    out.append(".text")
    A = Asm()
    for name, nwg, fn, lds in ks:
        A(f".globl {name}"); A(".p2align 8"); A(f".type {name},@function"); A(f"{name}:")
        ex = f"L_exit_{name}"
        prologue(A, nwg, ex)
        fn(A)
        A(f"{ex}:")
        A("s_endpgm")
    out.append(A.text())
    out.append('.section .rodata,"a"')
    for name, nwg, fn, lds in ks:
        out.append(".p2align 6")
        out.append(kd(name))
    return "\n".join(out)

if __name__ == "__main__":
    open(sys.argv[1], "w").write(build_multi())
```

```python
import sys, struct
from asmlib import *

NAME = "parallel_sum__ssm_conv_h3__glu_gated_swiglu__prompt"
S, D, F = 2048, 448, 1792
WS_KVR = 0
WS_H = 2 << 20
WS_ZT = 10 << 20
WS_STATS = 12 << 20
WS_CS = (12 << 20) + (64 << 10)
WS_PROF = 14 << 20
WS_SIZE = 16 << 20
Q, Kb, Vb, SSMK, W13, W2, OUT, WS, DBG, SHK = 4, 8, 12, 16, 20, 24, 28, 32, 36, 40
SD = 44
SW3 = 46
WV = 3
def srd(x): return f"s[{x}:{x+3}]"
def f2u(x): return struct.unpack("<I", struct.pack("<f", x))[0]
OPT = dict(prof=False)

STAMP0 = 72
class Ctx: nstamp = 0; names = []
def stamp(A, name=""):
    if OPT["prof"]:
        r = STAMP0 + 2*Ctx.nstamp
        assert r + 1 < 102
        A(f"s_memtime s[{r}:{r+1}]")
        Ctx.nstamp += 1; Ctx.names.append(name)
def stamp_dump(A):
    if OPT["prof"]:
        A("s_waitcnt lgkmcnt(0)")
        A("s_memrealtime s[48:49]")
        A("s_memtime s[52:53]")
        A(f"s_lshl_b32 s50, s2, 3")
        A(f"s_add_u32 s50, s50, s{WV}")
        A("s_lshl_b32 s50, s50, 7")
        A(f"s_add_u32 s50, s50, {WS_PROF}")
        A("s_waitcnt lgkmcnt(0)")
        A("v_mov_b32 v2, 0")
        A("v_mov_b32 v3, s48")
        A(f"buffer_store_dword v3, v2, {srd(WS)}, s50 offen")
        A("v_mov_b32 v3, s52")
        A(f"buffer_store_dword v3, v2, {srd(WS)}, s50 offen offset:4")
        for q in range(Ctx.nstamp):
            A(f"v_mov_b32 v3, s{STAMP0+2*q}")
            A(f"buffer_store_dword v3, v2, {srd(WS)}, s50 offen offset:{8+4*q}")

class nocount:
    def __init__(self, A): self.A = A
    def __enter__(self): self.vm = self.A.vm
    def __exit__(self, *a): self.A.vm = self.vm

def set_flag(A, val, vt):
    lab = A.label("L_nf")
    with nocount(A):
        A(f"s_cmp_lg_u32 s{WV}, 0")
        A(f"s_cbranch_scc1 {lab}")
        A(f"v_mov_b32 v{vt}, {val}")
        A(f"v_mov_b32 v{vt+1}, s2")
        A("s_mov_b64 exec, 1")
        A(f"buffer_store_byte v{vt}, v{vt+1}, {srd(DBG)}, 0 offen sc1")
        A("s_mov_b64 exec, -1")
        A(f"{lab}:")

def poll(A, mkreq, vt):
    lab = A.label("L_np"); loop = A.label("L_poll")
    with nocount(A):
        A(f"s_cmp_lg_u32 s{WV}, 0")
        A(f"s_cbranch_scc1 {lab}")
        A(f"v_lshlrev_b32 v{vt+1}, 2, v1")
        mkreq(A, vt + 2)
        A("s_mov_b32 s48, 0")
        A(f"{loop}:")
        A(f"buffer_load_dword v{vt}, v{vt+1}, {srd(DBG)}, 0 offen sc1")
        A("s_waitcnt vmcnt(0)")
        A(f"v_add_u32 v{vt}, v{vt}, v{vt+2}")
        A(f"v_and_b32 v{vt}, 0x80808080, v{vt}")
        A(f"v_cmp_ne_u32 vcc, 0x80808080, v{vt}")
        A("s_nop 1")
        A("s_cmp_eq_u64 vcc, 0")
        A(f"s_cbranch_scc1 {lab}")
        A("s_sleep 1")
        A("s_add_u32 s48, s48, 1")
        A("s_cmp_lt_u32 s48, 100000")
        A(f"s_cbranch_scc1 {loop}")
        A(f"{lab}:")

def prologue(A, nwg, exit_label):
    stamp(A, "start")
    A(f"s_cmp_ge_u32 s2, {nwg}")
    A(f"s_cbranch_scc1 {exit_label}")
    for reg, slot in ((Q, 0), (W13, 7), (SW3, 8), (Kb, 1), (Vb, 2), (SHK, 3), (SSMK, 4), (SD, 5), (W2, 9), (OUT, 10), (DBG, 11), (WS, 12)):
        A(f"s_load_dwordx2 s[{reg}:{reg+1}], s[0:1], {slot*8}")
    A("v_and_b32 v1, 63, v0")
    A("v_lshrrev_b32 v2, 6, v0")
    A(f"v_readfirstlane_b32 s{WV}, v2")
    for reg, size in ((Q, S*D*2), (Kb, S*D*2), (Vb, S*D*2), (SHK, D*8), (SSMK, D*S*2), (W13, D*F*2), (W2, F*D*2), (OUT, S*D*2), (DBG, 256), (WS, WS_SIZE)):
        A(f"s_mov_b32 s{reg+2}, {size}")
        A(f"s_mov_b32 s{reg+3}, 0x00020000")

def div7(A, dst, src):
    A(f"s_mul_i32 s{dst}, s{src}, 37")
    A(f"s_lshr_b32 s{dst}, s{dst}, 8")
def unpack(A, lo, hi, src):
    A(f"v_lshlrev_b32 v{lo}, 16, v{src}")
    A(f"v_and_b32 v{hi}, 0xffff0000, v{src}")
def allreduce32(A, v, t):
    for m in ("quad_perm:[1,0,3,2]", "quad_perm:[2,3,0,1]", "row_half_mirror", "row_mirror"):
        A(f"v_add_f32_dpp v{v}, v{v}, v{v} {m} row_mask:0xf bank_mask:0xf")
    A(f"v_mov_b32 v{t}, v{v}")
    A(f"v_permlane16_swap_b32 v{t}, v{v}")
    A(f"v_add_f32 v{v}, v{v}, v{t}")
def round_bf16(A, dst, src):
    A(f"v_cvt_pk_bf16_f32 v{dst}, v{src}, v{src}")
    A(f"v_and_b32 v{dst}, 0xffff0000, v{dst}")

def stats_load(A, B):
    A(f"v_and_b32 v{B+2}, 31, v1")
    A(f"v_lshrrev_b32 v{B+3}, 5, v1")
    A(f"s_lshl_b32 s64, s2, 3")
    A(f"s_lshl_b32 s65, s{WV}, 1")
    A("s_add_u32 s64, s64, s65")
    A("s_sub_u32 s64, s64, 8")
    A(f"v_add_u32 v{B+3}, s64, v{B+3}")
    A(f"v_mul_u32_u24 v{B+4}, 896, v{B+3}")
    A(f"v_lshl_add_u32 v{B+4}, v{B+2}, 5, v{B+4}")
    A(f"v_cmp_gt_u32 vcc, 28, v{B+2}")
    A(f"v_mov_b32 v{B+5}, 0x7fffff00")
    A(f"v_cndmask_b32 v{B+4}, v{B+5}, v{B+4}, vcc")
    A(f"v_cndmask_b32 v{B+6}, 0, 1.0, vcc")
    A(f"buffer_load_dwordx4 v[{B+8}:{B+11}], v{B+4}, {srd(Q)}, 0 offen")
    A(f"buffer_load_dwordx4 v[{B+12}:{B+15}], v{B+4}, {srd(Q)}, 0 offen offset:16")
def stats_compute(A, B, nafter):
    A(f"s_waitcnt vmcnt({nafter})")
    for e in range(8):
        unpack(A, B+16+2*e, B+17+2*e, B+8+e)
    A(f"v_add_f32 v{B+32}, v{B+16}, v{B+17}")
    for e in range(2, 16):
        A(f"v_add_f32 v{B+32}, v{B+32}, v{B+16+e}")
    allreduce32(A, B+32, B+33)
    A(f"v_mul_f32 v{B+32}, {hex(f2u(1.0/448))}, v{B+32}")
    A(f"v_mov_b32 v{B+34}, 0")
    for e in range(16):
        A(f"v_sub_f32 v{B+35}, v{B+16+e}, v{B+32}")
        A(f"v_fmac_f32 v{B+34}, v{B+35}, v{B+35}")
    A(f"v_mul_f32 v{B+34}, v{B+34}, v{B+6}")
    allreduce32(A, B+34, B+33)
    A(f"v_mul_f32 v{B+34}, {hex(f2u(1.0/448))}, v{B+34}")
    round_bf16(A, B+34, B+34)
    A(f"v_add_f32 v{B+34}, {hex(f2u(1e-5))}, v{B+34}")
    round_bf16(A, B+34, B+34)
    A(f"v_sqrt_f32 v{B+34}, v{B+34}")
    round_bf16(A, B+34, B+34)
    A(f"v_rcp_f32 v{B+37}, v{B+34}")
    round_bf16(A, B+36, B+32)
    A(f"v_lshlrev_b32 v{B+3}, 3, v{B+3}")
    A(f"v_cmp_eq_u32 vcc, 0, v{B+2}")
    A(f"v_cndmask_b32 v{B+3}, v{B+5}, v{B+3}, vcc")
    A(f"s_mov_b32 s64, {WS_STATS}")
    A(f"buffer_store_dwordx2 v[{B+36}:{B+37}], v{B+3}, {srd(WS)}, s64 offen sc1")

def kv_load(A, B):
    A("s_mul_i32 s64, s2, 9363")
    A("s_lshr_b32 s64, s64, 16")
    A("s_mul_i32 s65, s64, 7")
    A("s_sub_u32 s65, s2, s65")
    A(f"v_lshrrev_b32 v{B+2}, 3, v1")
    A(f"v_and_b32 v{B+3}, 7, v1")
    A("s_lshl_b32 s66, s65, 6")
    A(f"s_lshl_b32 s67, s{WV}, 4")
    A("s_add_u32 s66, s66, s67")
    A(f"v_lshl_add_u32 v{B+3}, v{B+3}, 1, s66")
    A("s_lshl_b32 s67, s64, 6")
    A(f"v_lshl_add_u32 v{B+2}, v{B+2}, 3, s67")
    A(f"v_mul_u32_u24 v{B+4}, 896, v{B+2}")
    A(f"v_lshl_add_u32 v{B+4}, v{B+3}, 1, v{B+4}")
    A(f"v_subrev_u32 v{B+5}, 2688, v{B+4}")
    A(f"v_lshlrev_b32 v{B+6}, 3, v{B+3}")
    A("s_movk_i32 s64, 4480")
    A(f"buffer_load_dwordx4 v[{B+8}:{B+11}], v{B+6}, {srd(SHK)}, 0 offen")
    KR, VR = B+12, B+24
    for r in range(3):
        A(f"buffer_load_dword v{KR+r}, v{B+5}, {srd(Kb)}, 0 offen offset:{r*896}")
    for r in range(8):
        so, off = ("0", r*896) if r < 5 else ("s64", (r-5)*896)
        A(f"buffer_load_dword v{KR+3+r}, v{B+4}, {srd(Kb)}, {so} offen offset:{off}")
    for r in range(8):
        so, off = ("0", r*896) if r < 5 else ("s64", (r-5)*896)
        A(f"buffer_load_dword v{VR+r}, v{B+4}, {srd(Vb)}, {so} offen offset:{off}")
def kv_compute(A, B, nafter):
    KR, VR = B+12, B+24
    A(f"v_lshlrev_b32 v{B+6}, 12, v{B+3}")
    A(f"v_sub_u32 v{B+7}, 2040, v{B+2}")
    A(f"v_lshl_add_u32 v{B+6}, v{B+7}, 1, v{B+6}")
    A(f"s_waitcnt vmcnt({nafter+8})")
    W = B+32
    for q in range(4):
        unpack(A, W+2*q, W+2*q+1, B+8+q)
    K0, K1 = B+40, B+52
    for r in range(11):
        unpack(A, K0 + r, K1 + r, KR + r)
    O0, O1 = B+64, B+72
    for c, (Kc, Oc) in enumerate(((K0, O0), (K1, O1))):
        for s in range(8):
            A(f"v_mul_f32 v{Oc+s}, v{W+4*c+3}, v{Kc+s}")
        for j in (2, 1, 0):
            for s in range(8):
                A(f"v_fmac_f32 v{Oc+s}, v{W+4*c+j}, v{Kc+s+3-j}")
    A(f"s_waitcnt vmcnt({nafter})")
    for s in range(8):
        unpack(A, K0+s, K1+s, VR + s)
    for s in range(8):
        A(f"v_mul_f32 v{O0+s}, v{O0+s}, v{K0+s}")
        A(f"v_mul_f32 v{O1+s}, v{O1+s}, v{K1+s}")
    for c, Oc in enumerate((O0, O1)):
        for q in range(4):
            A(f"v_cvt_pk_bf16_f32 v{B+84+4*c+q}, v{Oc+7-2*q}, v{Oc+6-2*q}")
    A(f"buffer_store_dwordx4 v[{B+84}:{B+87}], v{B+6}, {srd(WS)}, 0 offen sc1")
    A("s_movk_i32 s64, 4096")
    A(f"buffer_store_dwordx4 v[{B+88}:{B+91}], v{B+6}, {srd(WS)}, s64 offen sc1")

def by_role(A, f_lo, f_hi):
    l1 = A.label("L_hi"); l2 = A.label("L_j")
    with nocount(A):
        A(f"s_cmp_ge_u32 s{WV}, 4")
        A(f"s_cbranch_scc1 {l1}")
        f_lo()
        A(f"s_branch {l2}")
        A(f"{l1}:")
        f_hi()
        A(f"{l2}:")

def free_path(A):
    lab_ns = A.label("L_fs"); lab_nc = A.label("L_fc"); lab_d = A.label("L_fd")
    A("s_waitcnt lgkmcnt(0)")
    A(f"s_cmp_lt_u32 s{WV}, 4")
    A(f"s_cbranch_scc1 {lab_ns}")
    stats_load(A, 180)
    stats_compute(A, 180, 0)
    A(f"{lab_ns}:")
    A("s_cmp_ge_u32 s2, 252")
    A(f"s_cbranch_scc1 {lab_nc}")
    A("s_sub_u32 s50, s2, 224")
    A("s_cmp_ge_u32 s50, 14")
    A(f"s_cselect_b32 s{W13}, s{SW3}, s{W13}")
    A(f"s_cselect_b32 s{W13+1}, s{SW3+1}, s{W13+1}")
    A("s_cselect_b32 s51, 14, 0")
    A("s_sub_u32 s51, s50, s51")
    A("v_lshrrev_b32 v2, 4, v0")
    A("v_and_b32 v3, 15, v0")
    A("v_mul_u32_u24 v4, 3584, v2")
    A("v_lshl_add_u32 v4, v3, 4, v4")
    A("s_lshl_b32 s52, s51, 8")
    tags = []
    for it in range(14):
        A(f"buffer_load_dwordx4 v[{100+4*it}:{103+4*it}], v4, {srd(W13)}, s52 offen")
        tags.append(A.vm_tag())
        if it < 13:
            A(f"s_add_u32 s52, s52, {32*3584}")
    for e in range(8):
        A(f"v_mov_b32 v{8+e}, 0")
    for it in range(14):
        A.wait_vm(tags[it])
        for e in range(4):
            unpack(A, 16, 17, 100 + 4*it + e)
            A(f"v_add_f32 v{8+2*e}, v{8+2*e}, v16")
            A(f"v_add_f32 v{9+2*e}, v{9+2*e}, v17")
    A("v_lshlrev_b32 v5, 5, v0")
    A("ds_write_b128 v5, v[8:11]")
    A("ds_write_b128 v5, v[12:15] offset:16")
    A("s_waitcnt lgkmcnt(0)")
    A("s_barrier")
    A(f"s_cmp_ge_u32 s{WV}, 2")
    A(f"s_cbranch_scc1 {lab_nc}")
    A("v_lshlrev_b32 v5, 2, v0")
    for r in range(32):
        A(f"ds_read_b32 v{32+r}, v5 offset:{r*512}")
    A("s_waitcnt lgkmcnt(0)")
    for r in range(1, 32):
        A(f"v_add_f32 v32, v32, v{32+r}")
    A("s_lshl_b32 s52, s50, 9")
    A(f"s_add_u32 s52, s52, {WS_CS}")
    A(f"buffer_store_dword v32, v5, {srd(WS)}, s52 offen sc1")
    A(f"{lab_nc}:")
    A("s_waitcnt vmcnt(0)")
    A("s_barrier")
    set_flag(A, 1, 2)

def phase_g1(A):
    SI, SJ, SC, SOX, SOW, SMX, SMW, ST = 50, 51, 52, 53, 54, 55, 56, 57
    A("s_and_b32 s58, s2, 7")
    A("s_lshr_b32 s59, s2, 3")
    div7(A, 60, 59)
    A("s_mul_i32 s61, s60, 7")
    A("s_sub_u32 s61, s59, s61")
    A("s_and_b32 s62, s58, 3")
    A("s_lshl_b32 s62, s62, 2")
    A(f"s_add_u32 s{SI}, s62, s60")
    A("s_lshr_b32 s62, s58, 2")
    A("s_mul_i32 s62, s62, 7")
    A(f"s_add_u32 s{SJ}, s62, s61")
    A("s_lshl_b32 s62, s60, 1")
    A("s_add_u32 s62, s62, s61")
    A("s_add_u32 s62, s62, s58")
    div7(A, 63, 62)
    A("s_mul_i32 s63, s63, 7")
    A(f"s_sub_u32 s{SC}, s62, s63")
    A(f"s_cmp_ge_u32 s{WV}, 4")
    A("s_cselect_b32 s62, 4, 0")
    A(f"s_lshl_b32 s63, s{SI}, 7")
    A(f"s_lshl_b32 s{ST}, s{WV}, 4")
    A(f"s_add_u32 s63, s63, s{ST}")
    A(f"s_mul_i32 s{SOX}, s63, 896")
    A(f"s_and_b32 s63, s{WV}, 3")
    A(f"s_mul_i32 s{SOW}, s63, {16*3584}")
    A(f"s_lshl_b32 s63, s{SJ}, 8")
    A(f"s_add_u32 s{SOW}, s{SOW}, s63")
    A(f"s_lshl_b32 s{SMX}, s{WV}, 11")
    A(f"s_and_b32 s63, s{WV}, 3")
    A(f"s_lshl_b32 s{SMW}, s63, 12")
    A(f"s_mul_i32 s63, s62, {49152//4}")
    A(f"s_add_u32 s{SMW}, s{SMW}, s63")
    A(f"s_add_u32 s{SMW}, s{SMW}, 49152")
    VX, VW = 2, 4
    A("v_lshrrev_b32 v8, 3, v1")
    A("v_and_b32 v9, 7, v1")
    A("v_lshrrev_b32 v10, 1, v8")
    A("v_xor_b32 v10, v9, v10")
    A("v_mul_u32_u24 v11, 896, v8")
    A(f"v_lshl_add_u32 v{VX}, v10, 4, v11")
    A("v_xor_b32 v10, 4, v10")
    A(f"v_lshl_add_u32 v{VX+1}, v10, 4, v11")
    A(f"v_add_u32 v{VX+1}, {8*896-1024}, v{VX+1}")
    A("v_lshrrev_b32 v8, 4, v1")
    A("v_bfe_u32 v9, v1, 1, 3")
    A("v_xor_b32 v9, v9, v8")
    A("v_xor_b32 v9, s62, v9")
    A("v_and_b32 v10, 1, v1")
    A("v_lshlrev_b32 v10, 4, v10")
    A("v_lshl_add_u32 v10, v9, 5, v10")
    A("v_mul_u32_u24 v11, 3584, v8")
    A(f"v_add_u32 v{VW}, v10, v11")
    for e in range(1, 4):
        A(f"v_add_u32 v{VW+e}, {e*(14336-1024)}, v{VW}")
    A("s_waitcnt lgkmcnt(0)")
    A(f"s_cmp_ge_u32 s{WV}, 4")
    A(f"s_cselect_b32 s{W13}, s{SW3}, s{W13}")
    A(f"s_cselect_b32 s{W13+1}, s{SW3+1}, s{W13+1}")
    dma_tag = {}
    def dma(stage):
        slot = stage % 3
        A(f"s_lshl_b32 s62, s{SC}, 7")
        A(f"s_add_u32 s62, s62, s{SOX}")
        A(f"s_mul_i32 s63, s{SC}, {64*3584}")
        A(f"s_add_u32 s63, s63, s{SOW}")
        A(f"s_add_u32 m0, s{SMW}, {slot*16384}")
        for e in range(4):
            A(f"buffer_load_dwordx4 v{VW+e}, {srd(W13)}, s63 offen offset:{e*1024} lds")
        A(f"s_add_u32 m0, s{SMX}, {slot*16384}")
        for e in range(2):
            A(f"buffer_load_dwordx4 v{VX+e}, {srd(Q)}, s62 offen offset:{e*1024} lds")
        dma_tag[stage] = A.vm_tag()
        A(f"s_add_u32 s{SC}, s{SC}, 1")
        A(f"s_cmp_ge_u32 s{SC}, 7")
        A(f"s_cselect_b32 s{SC}, 0, s{SC}")
    PB = 128
    npre = OPT.get("dma_before_prep", 1)
    for s in range(npre):
        dma(s)
    by_role(A, lambda: kv_load(A, PB), lambda: stats_load(A, PB))
    for s in range(npre, 3):
        dma(s)
    XA, WA = 8, 12
    A(f"s_and_b32 s62, s{WV}, 1")
    A(f"s_lshr_b32 s63, s{WV}, 1")
    A("v_and_b32 v14, 31, v1")
    A("v_lshrrev_b32 v15, 5, v1")
    A("v_bfe_u32 v16, v1, 1, 3")
    A("v_xor_b32 v16, v16, v15")
    A("s_lshl_b32 s58, s62, 13")
    A("v_lshl_add_u32 v17, v14, 7, s58")
    for ks in range(4):
        A(f"v_xor_b32 v18, {2*ks}, v16")
        A(f"v_lshl_add_u32 v{XA+ks}, v18, 4, v17")
    A("v_bfe_u32 v16, v1, 4, 1")
    A("v_bfe_u32 v17, v1, 2, 2")
    A("v_lshl_add_u32 v18, v15, 3, v17")
    A("v_lshlrev_b32 v18, 8, v18")
    A("v_mul_u32_u24 v19, 49152, v16")
    A("v_add_u32 v18, v18, v19")
    A("v_add_u32 v18, 49152, v18")
    A("v_and_b32 v19, 1, v1")
    A("v_lshlrev_b32 v19, 4, v19")
    A("v_bfe_u32 v20, v1, 1, 1")
    A("v_lshl_add_u32 v19, v20, 3, v19")
    A("v_add_u32 v18, v18, v19")
    A("v_lshlrev_b32 v16, 2, v16")
    A("v_xor_b32 v16, v16, v17")
    A("s_lshl_b32 s58, s63, 1")
    A("v_xor_b32 v16, s58, v16")
    A(f"v_lshl_add_u32 v{WA}, v16, 5, v18")
    A("v_xor_b32 v16, 1, v16")
    A(f"v_lshl_add_u32 v{WA+1}, v16, 5, v18")
    stamp(A, "issued")
    nafter = 6*(3 - npre)
    by_role(A, lambda: kv_compute(A, PB, nafter), lambda: stats_compute(A, PB, nafter))
    stamp(A, "prep_done")
    FR = [16, 32]
    ACC = 64
    def reads(stage, ks, fs):
        slot = stage % 3
        b = FR[fs]
        for tt in range(2):
            for sec in range(2):
                A(f"ds_read_b64_tr_b16 v[{b+8+4*tt+2*sec}:{b+9+4*tt+2*sec}], v{WA+tt} offset:{slot*16384 + ks*4096 + sec*1024}")
        for nt in range(2):
            A(f"ds_read_b128 v[{b+4*nt}:{b+4*nt+3}], v{XA+ks} offset:{slot*16384 + nt*4096}")
        return A.lg_tag()
    def mfmas(first, fs):
        b = FR[fs]
        for tt in range(2):
            for nt in range(2):
                a = ACC + (tt*2 + nt)*16
                c = "0" if first else f"v[{a}:{a+15}]"
                A(f"v_mfma_f32_32x32x16_bf16 v[{a}:{a+15}], v[{b+8+4*tt}:{b+11+4*tt}], v[{b+4*nt}:{b+4*nt+3}], {c}")
    A.wait_vm(dma_tag[0])
    A("s_barrier")
    stamp(A, "g1_start")
    tag = reads(0, 0, 0)
    fs = 0
    CS, STT = 128, 160
    for s in range(7):
        for ks in range(4):
            if ks < 3:
                ntag = reads(s, ks + 1, fs ^ 1)
                A.wait_lg(tag)
            else:
                A.wait_lg(tag)
                if s < 6:
                    A.wait_vm(dma_tag[s+1])
                    if s == 4:
                        def req(A, v):
                            A(f"v_mov_b32 v{v}, 0x7f7f7f7f")
                        poll(A, req, 48)
                    A("s_barrier")
                    ntag = reads(s + 1, 0, fs ^ 1)
                    if s + 3 < 7:
                        dma(s + 3)
                    if s == 1:
                        set_flag(A, 1, 48)
                    if s == 4:
                        A(f"s_lshl_b32 s58, s{SI}, 10")
                        A(f"s_and_b32 s59, s{WV}, 1")
                        A("s_lshl_b32 s59, s59, 9")
                        A("s_add_u32 s58, s58, s59")
                        A(f"s_add_u32 s58, s58, {WS_STATS}")
                        A("v_lshlrev_b32 v48, 3, v14")
                        for nt in range(2):
                            A(f"buffer_load_dwordx2 v[{STT+2*nt}:{STT+2*nt+1}], v48, {srd(WS)}, s58 offen offset:{nt*256} sc1")
                        A(f"s_lshl_b32 s58, s{SJ}, 9")
                        A(f"s_lshr_b32 s59, s{WV}, 1")
                        A("s_lshl_b32 s59, s59, 7")
                        A("s_add_u32 s58, s58, s59")
                        A(f"s_add_u32 s58, s58, {WS_CS}")
                        A(f"s_add_u32 s59, s58, {F*4}")
                        A("v_lshlrev_b32 v49, 5, v15")
                        for tt in range(2):
                            for mat in range(2):
                                for hf in range(2):
                                    r = CS + tt*16 + mat*8 + hf*4
                                    A(f"buffer_load_dwordx4 v[{r}:{r+3}], v49, {srd(WS)}, s{58+mat} offen offset:{tt*64+hf*16} sc1")
                else:
                    A("s_barrier")
            mfmas(s == 0 and ks == 0, fs)
            tag = ntag
            fs ^= 1
    stamp(A, "g1_mfma_end")
    A("s_waitcnt vmcnt(0)")
    K1, KQ = 164, 166
    for nt in range(2):
        A(f"v_mul_f32 v{K1+nt}, {hex(f2u(-1.4426950408889634))}, v{STT+2*nt+1}")
        A(f"v_mul_f32 v{KQ+nt}, v{STT+2*nt+1}, v{STT+2*nt+1}")
        A(f"v_rcp_f32 v{KQ+nt}, v{KQ+nt}")
    A(f"s_lshl_b32 s58, s{SI}, 2")
    A(f"s_and_b32 s59, s{WV}, 1")
    A("s_lshl_b32 s59, s59, 1")
    A("s_add_u32 s58, s58, s59")
    A("s_mul_i32 s58, s58, 112")
    A(f"s_lshl_b32 s59, s{SJ}, 3")
    A("s_add_u32 s58, s58, s59")
    A(f"s_lshr_b32 s59, s{WV}, 1")
    A("s_lshl_b32 s59, s59, 1")
    A("s_add_u32 s58, s58, s59")
    A("s_lshl_b32 s58, s58, 10")
    A(f"s_add_u32 s58, s58, {WS_H}")
    A(f"s_add_u32 s59, s58, {112*1024}")
    A("v_lshlrev_b32 v48, 4, v1")
    T = 168
    for tt in range(2):
        for nt in range(2):
            a = ACC + (tt*2 + nt)*16
            cs = CS + tt*16
            for r in range(16):
                A(f"v_fma_f32 v{a+r}, -v{STT+2*nt}, v{cs+r}, v{a+r}")
            for r in range(8):
                A(f"v_mul_f32 v{T+r}, v{K1+nt}, v{a+r}")
            for r in range(8):
                A(f"v_exp_f32 v{T+r}, v{T+r}")
            for r in range(8):
                A(f"v_mul_f32 v{a+r}, v{a+r}, v{a+8+r}")
            for r in range(8):
                A(f"v_fma_f32 v{T+r}, v{T+r}, v{KQ+nt}, v{KQ+nt}")
            for r in range(8):
                A(f"v_rcp_f32 v{T+r}, v{T+r}")
            for r in range(8):
                A(f"v_mul_f32 v{a+r}, v{a+r}, v{T+r}")
            for q in range(4):
                A(f"v_cvt_pk_bf16_f32 v{a+8+q}, v{a+2*q}, v{a+2*q+1}")
            A(f"buffer_store_dwordx4 v[{a+8}:{a+11}], v48, {srd(WS)}, s{58+nt} offen offset:{tt*1024} sc1")
    stamp(A, "g1_epi_end")

CH_STRIDE = 17664
R0_OFF, R1_OFF, H0_OFF, H1A_OFF = 0, 4640, 9280, 13520
CX_OFF = 36864
def phase_conv(A):
    A("s_lshl_b32 s50, s2, 13")
    A("v_lshlrev_b32 v2, 4, v0")
    A("v_and_b32 v3, 255, v0")
    A("v_add_u32 v4, 16, v2")
    A("v_cmp_eq_u32 vcc, 255, v3")
    A("v_mov_b32 v5, 0x7fffff00")
    A("v_cndmask_b32 v4, v4, v5, vcc")
    A(f"buffer_load_dwordx4 v[8:11], v2, {srd(WS)}, s50 offen sc1")
    A(f"buffer_load_dword v12, v4, {srd(WS)}, s50 offen sc1")
    A("s_lshl_b32 s51, s2, 2")
    A(f"s_load_dword s52, s[{SD}:{SD+1}], s51")
    A(f"s_lshr_b32 s53, s{WV}, 2")
    A(f"s_mul_i32 s53, s53, {CH_STRIDE}")
    A(f"s_and_b32 s54, s{WV}, 3")
    A("s_lshl_b32 s54, s54, 10")
    A("s_add_u32 s54, s54, s53")
    A(f"s_add_u32 m0, s54, {H0_OFF}")
    A(f"buffer_load_dwordx4 v2, {srd(SSMK)}, s50 offen lds")
    A(f"s_add_u32 m0, s54, {H1A_OFF}")
    A("s_add_u32 s55, s50, 4")
    A(f"buffer_load_dwordx4 v2, {srd(SSMK)}, s55 offen lds")
    A("v_mov_b32 v16, 0"); A("v_mov_b32 v17, 0"); A("v_mov_b32 v18, 0"); A("v_mov_b32 v19, 0")
    A(f"s_bfe_u32 s55, s{WV}, 0x10001")
    A(f"s_mul_i32 s55, s55, {CH_STRIDE}")
    A(f"s_and_b32 s56, s{WV}, 1")
    A(f"s_mul_i32 s57, s56, {R1_OFF-R0_OFF}")
    A(f"s_add_u32 s57, s57, {R0_OFF+4096}")
    A(f"s_mul_i32 s58, s56, {13376-9216}")
    A(f"s_add_u32 s58, s58, 9216")
    A("s_cmp_eq_u32 s56, 1")
    A(f"s_cselect_b32 s59, 9, 4")
    A(f"s_cmp_ge_u32 s{WV}, 4")
    A("s_cselect_b32 s57, s58, s57")
    A("s_cselect_b32 s59, s59, 28")
    A("s_add_u32 s57, s57, s55")
    A("v_lshl_add_u32 v6, v1, 4, s57")
    A("v_cmp_gt_u32 vcc, s59, v1")
    A("s_and_saveexec_b64 s[60:61], vcc")
    A("ds_write_b128 v6, v[16:19]")
    A("s_mov_b64 exec, s[60:61]")
    A("s_waitcnt lgkmcnt(0)")
    A("s_barrier")
    lab = A.label("L_nod0")
    A(f"s_and_b32 s56, s{WV}, 3")
    A("s_cmp_lg_u32 s56, 0")
    A(f"s_cbranch_scc1 {lab}")
    A(f"s_add_u32 m0, s53, {H1A_OFF-4}")
    A("s_mov_b64 exec, 1")
    A(f"buffer_load_dword v2, {srd(SSMK)}, s50 offen lds")
    A("s_mov_b64 exec, -1")
    A(f"{lab}:")
    A("v_lshrrev_b32 v6, 8, v0")
    A(f"v_mul_u32_u24 v6, {CH_STRIDE}, v6")
    A("v_lshl_add_u32 v6, v3, 4, v6")
    A("s_waitcnt vmcnt(0)")
    for q in range(4):
        A(f"v_alignbit_b32 v{16+q}, v{9+q}, v{8+q}, 16")
    A(f"ds_write_b128 v6, v[8:11] offset:{R1_OFF}")
    A(f"ds_write_b128 v6, v[16:19] offset:{R0_OFF}")
    A(f"s_and_b32 s53, s{WV}, 1")
    A(f"s_mul_i32 s54, s53, {CH_STRIDE}")
    A(f"s_lshr_b32 s55, s{WV}, 1")
    A("s_lshl_b32 s56, s55, 7")
    A("s_add_u32 s56, s56, s54")
    A("v_and_b32 v2, 15, v1")
    A("v_lshrrev_b32 v3, 4, v1")
    A("v_and_b32 v4, 1, v1")
    A(f"v_mul_u32_u24 v5, {H1A_OFF-4-H0_OFF}, v4")
    A(f"v_sub_u32 v5, {H1A_OFF-4-60}, v5")
    A("v_lshl_add_u32 v5, v2, 2, v5")
    A("v_lshl_add_u32 v5, v3, 4, v5")
    A("v_add_u32 v5, s56, v5")
    A(f"v_mul_u32_u24 v6, {R1_OFF-R0_OFF}, v4")
    A(f"v_add_u32 v6, {R0_OFF+4032-3584}, v6")
    A("v_lshl_add_u32 v6, v3, 4, v6")
    A("v_lshrrev_b32 v7, 1, v2")
    A("v_lshlrev_b32 v13, 6, v7")
    A("v_sub_u32 v6, v6, v13")
    A("v_add_u32 v6, s56, v6")
    A("s_waitcnt lgkmcnt(0)")
    A("s_barrier")
    set_flag(A, 2, 20)
    stamp(A, "conv_start")
    AF, BF, Y = [64, 128], [96, 160], 32
    order = []
    for t in range(8):
        order.append(("A", t)); order.append(("B", t))
    tags = {}
    def creads(rr, lo, hi):
        for kind, t in order[2*lo:2*hi]:
            if kind == "A":
                for h in range(2):
                    A(f"ds_read_b64 v[{AF[rr]+4*t+2*h}:{AF[rr]+4*t+2*h+1}], v5 offset:{64*rr + 512*t + 8*h}")
            else:
                A(f"ds_read_b128 v[{BF[rr]+4*t}:{BF[rr]+4*t+3}], v6 offset:{64*rr + 512*(7-t)}")
            tags[(rr, kind, t)] = A.lg_tag()
    creads(0, 0, 5)
    seen = set()
    sched = {(0, 0): (0, 5, 6), (0, 1): (0, 6, 7), (0, 2): (0, 7, 8), (0, 3): (1, 0, 2), (0, 4): (1, 2, 4), (0, 5): (1, 4, 5), (0, 6): (1, 5, 6), (0, 7): (1, 6, 7), (1, 0): (1, 7, 8)}
    for rr in range(2):
        for t in range(8):
            pairs = [(p, t) for p in range(t)] + [(t, q) for q in range(t + 1)]
            pairs = [(p, q) for p, q in pairs if p + q <= 7]
            A.wait_lg(tags[(rr, "B", t)])
            if (rr, t) in sched:
                creads(*sched[(rr, t)])
            for p, q in pairs:
                j = p + q
                c = f"v[{Y+4*j}:{Y+4*j+3}]" if j in seen else "0"
                seen.add(j)
                A(f"v_mfma_f32_16x16x32_bf16 v[{Y+4*j}:{Y+4*j+3}], v[{AF[rr]+4*p}:{AF[rr]+4*p+3}], v[{BF[rr]+4*q}:{BF[rr]+4*q+3}], {c}")
    stamp(A, "conv_mfma_end")
    TS = 1088
    A(f"s_mul_i32 s57, s{WV}, {8*TS}")
    A(f"s_add_u32 s57, s57, {CX_OFF}")
    A("v_mul_u32_u24 v8, 544, v4")
    A("v_lshl_add_u32 v8, v7, 6, v8")
    A("v_lshl_add_u32 v8, v3, 4, v8")
    A("v_add_u32 v8, s57, v8")
    for j in range(8):
        A(f"ds_write_b128 v8, v[{Y+4*j}:{Y+4*j+3}] offset:{j*TS}")
    A("v_lshrrev_b32 v9, 5, v1")
    A("v_and_b32 v10, 31, v1")
    A(f"v_mul_u32_u24 v11, {TS}, v9")
    A("v_lshl_add_u32 v11, v10, 4, v11")
    A(f"s_mul_i32 s57, s55, {2*TS}")
    A(f"s_mul_i32 s58, s53, {8*TS}")
    A("s_add_u32 s57, s57, s58")
    A(f"s_add_u32 s57, s57, {CX_OFF}")
    A("v_add_u32 v11, s57, v11")
    A("s_lshl_b32 s57, s55, 10")
    A(f"s_sub_u32 s57, s54, s57")
    A(f"s_add_u32 s57, s57, {R1_OFF+4080}")
    A("v_lshlrev_b32 v12, 4, v1")
    A("v_sub_u32 v13, s57, v12")
    A("s_waitcnt lgkmcnt(0)")
    A("s_barrier")
    A("ds_read_b128 v[16:19], v13")
    for src in range(4):
        for w in range(2):
            A(f"ds_read_b128 v[{64+8*src+4*w}:{67+8*src+4*w}], v11 offset:{src*16*TS + w*544}")
    A("s_lshl_b32 s57, s52, 16")
    A("s_and_b32 s58, s52, 0xffff0000")
    A("s_cmp_eq_u32 s53, 1")
    A("s_cselect_b32 s57, s58, s57")
    A("s_waitcnt lgkmcnt(0)")
    for e in range(8):
        A(f"v_add_f32 v{64+e}, v{64+e}, v{72+e}")
        A(f"v_add_f32 v{80+e}, v{80+e}, v{88+e}")
    for e in range(8):
        A(f"v_add_f32 v{64+e}, v{64+e}, v{80+e}")
    for q in range(4):
        unpack(A, 20, 21, 16 + q)
        r = 3 - q
        A(f"v_fmac_f32 v{68+r}, s57, v20")
        A(f"v_fmac_f32 v{64+r}, s57, v21")
    for r in range(4):
        A(f"v_cvt_pk_bf16_f32 v{24+r}, v{64+r}, v{68+r}")
    A("s_lshl_b32 s57, s53, 12")
    A("s_add_u32 s57, s57, s50")
    A("s_lshl_b32 s58, s55, 10")
    A("s_add_u32 s57, s57, s58")
    A(f"s_add_u32 s57, s57, {WS_ZT}")
    A(f"buffer_store_dwordx4 v[24:27], v12, {srd(WS)}, s57 offen sc1")
    stamp(A, "conv_end")

ZB = 131072
def phase_g2(A):
    SSB, SN, SC, SOH, SOW, SM = 50, 51, 52, 53, 54, 55
    A("s_and_b32 s58, s2, 7")
    A("s_lshr_b32 s59, s2, 3")
    div7(A, 60, 59)
    A("s_mul_i32 s61, s60, 7")
    A(f"s_sub_u32 s{SN}, s59, s61")
    A("s_lshl_b32 s61, s58, 2")
    A(f"s_add_u32 s{SSB}, s61, s60")
    A("s_lshl_b32 s62, s60, 1")
    A(f"s_add_u32 s62, s62, s{SN}")
    div7(A, 63, 62)
    A("s_mul_i32 s63, s63, 7")
    A(f"s_sub_u32 s{SC}, s62, s63")
    A(f"s_lshr_b32 s56, s{WV}, 1")
    A(f"s_and_b32 s57, s{WV}, 1")
    A(f"s_lshl_b32 s58, s{SSB}, 1")
    A("s_add_u32 s58, s58, s57")
    A("s_mul_i32 s58, s58, 112")
    A("s_mul_i32 s59, s56, 28")
    A("s_add_u32 s58, s58, s59")
    A("s_lshl_b32 s58, s58, 10")
    A(f"s_add_u32 s{SOH}, s58, {WS_H}")
    A("s_mul_i32 s58, s56, 448")
    A("s_lshl_b32 s59, s57, 3")
    A("s_add_u32 s58, s58, s59")
    A("s_mul_i32 s58, s58, 896")
    A(f"s_lshl_b32 s59, s{SN}, 7")
    A(f"s_add_u32 s{SOW}, s58, s59")
    A(f"s_lshl_b32 s{SM}, s{WV}, 12")
    VH, VW = 2, 4
    A(f"v_lshlrev_b32 v{VH}, 4, v1")
    A("v_lshrrev_b32 v8, 3, v1")
    A("v_and_b32 v9, 7, v1")
    A("v_bfe_u32 v10, v1, 4, 1")
    A("v_lshlrev_b32 v10, 2, v10")
    A("v_xor_b32 v9, v9, v10")
    A("v_mul_u32_u24 v10, 896, v8")
    A(f"v_lshl_add_u32 v{VW}, v9, 4, v10")
    for e in range(1, 4):
        A(f"v_add_u32 v{VW+e}, {e*(14336-1024)}, v{VW}")
    HF = 128
    for sg in range(7):
        A(f"s_mov_b32 s{64+sg}, s{SC}")
        A(f"s_add_u32 s{SC}, s{SC}, 1")
        A(f"s_cmp_ge_u32 s{SC}, 7")
        A(f"s_cselect_b32 s{SC}, 0, s{SC}")
    def req_h(A, v):
        A(f"v_lshrrev_b32 v{v}, 1, v1")
        A(f"v_mul_u32_u24 v{v}, 37, v{v}")
        A(f"v_lshrrev_b32 v{v}, 8, v{v}")
        A(f"s_bfe_u32 s58, s{SSB}, 0x20001")
        A(f"s_lshr_b32 s59, s{SSB}, 3")
        A("s_lshl_b32 s59, s59, 3")
        A("s_lshl_b32 s59, 2, s59")
        A("s_sub_u32 s59, 0x80808080, s59")
        A(f"v_cmp_eq_u32 vcc, s58, v{v}")
        A(f"v_mov_b32 v{v}, 0x80808080")
        A(f"v_mov_b32 v{v+1}, s59")
        A(f"v_cndmask_b32 v{v}, v{v}, v{v+1}, vcc")
    poll(A, req_h, 32)
    A("s_barrier")
    stamp(A, "g2_go")
    tagW, tagH = {}, {}
    def dma(sg):
        A(f"s_mul_i32 s58, s{64+sg}, {64*896}")
        A(f"s_add_u32 s58, s58, s{SOW}")
        A(f"s_add_u32 m0, s{SM}, {(sg % 4)*32768}")
        for e in range(4):
            A(f"buffer_load_dwordx4 v{VW+e}, {srd(W2)}, s58 offen offset:{e*1024} lds")
        tagW[sg] = A.vm_tag()
    def hload(sg):
        A(f"s_lshl_b32 s58, s{64+sg}, 12")
        A(f"s_add_u32 s58, s58, s{SOH}")
        for e in range(4):
            r = HF + (sg*4 + e)*4
            A(f"buffer_load_dwordx4 v[{r}:{r+3}], v{VH}, {srd(WS)}, s58 offen offset:{e*1024} sc1")
        tagH[sg] = A.vm_tag()
    for sg in range(4):
        dma(sg); hload(sg)
    XR, STT, ZR = 96, 100, 104
    A(f"s_lshl_b32 s58, s{SSB}, 6")
    A("s_lshl_b32 s59, s57, 5")
    A("s_add_u32 s58, s58, s59")
    A("s_lshl_b32 s59, s56, 3")
    A("s_add_u32 s58, s58, s59")
    A("v_add_u32 v9, s58, v8")
    A("v_mul_u32_u24 v10, 896, v9")
    A("v_and_b32 v11, 7, v1")
    A("v_lshl_add_u32 v3, v11, 4, v10")
    A(f"s_lshl_b32 s71, s{SN}, 7")
    A("v_lshlrev_b32 v33, 3, v9")
    A("v_lshrrev_b32 v9, 3, v0")
    A("v_lshlrev_b32 v9, 12, v9")
    A("v_lshl_add_u32 v32, v11, 4, v9")
    A("v_lshrrev_b32 v9, 5, v1")
    A("v_bfe_u32 v10, v1, 2, 2")
    A("v_lshlrev_b32 v12, 12, v9")
    A("v_lshl_add_u32 v12, v10, 7, v12")
    A("v_and_b32 v9, 1, v1")
    A("v_lshl_add_u32 v12, v9, 5, v12")
    A("v_bfe_u32 v9, v1, 4, 1")
    A("v_lshl_add_u32 v12, v9, 4, v12")
    A("v_bfe_u32 v9, v1, 1, 1")
    A("v_lshl_add_u32 v12, v9, 3, v12")
    A("s_lshl_b32 s58, s56, 13")
    A("v_add_u32 v12, s58, v12")
    A("v_bfe_u32 v9, v1, 3, 1")
    A("v_xor_b32 v10, 1, v9")
    A("v_lshl_add_u32 v13, v10, 6, v12")
    A("v_lshl_add_u32 v12, v9, 6, v12")
    A("v_add_u32 v14, 65536, v12")
    A("v_add_u32 v15, 65536, v13")
    FR = [16, 24]
    ACC = 64
    def reads(sg, tl, fs):
        slot = sg % 4
        for dt in range(2):
            for sec in range(2):
                b = FR[fs] + 4*dt + 2*sec
                A(f"ds_read_b64_tr_b16 v[{b}:{b+1}], v{12 + 2*(slot >> 1) + dt} offset:{(slot & 1)*32768 + tl*1024 + sec*512}")
        return A.lg_tag()
    A.wait_vm(max(tagW[0], tagH[0]))
    A("s_barrier")
    set_flag(A, 3, 34)
    stamp(A, "g2_start")
    tag = reads(0, 0, 0)
    fs = 0
    for sg in range(7):
        for tl in range(4):
            if tl < 3:
                ntag = reads(sg, tl + 1, fs ^ 1)
                A.wait_lg(tag)
            else:
                A.wait_lg(tag)
                if sg < 6:
                    A.wait_vm(max(tagW[sg+1], tagH[sg+1]))
                    if sg == 4:
                        def req_z(A, v):
                            A(f"v_lshrrev_b32 v{v}, 3, v1")
                            A(f"v_cmp_eq_u32 vcc, s{SN}, v{v}")
                            A(f"v_mov_b32 v{v}, 0x80808080")
                            A(f"v_mov_b32 v{v+1}, 0x7d7d7d7d")
                            A(f"v_cndmask_b32 v{v}, v{v}, v{v+1}, vcc")
                        poll(A, req_z, 34)
                    A("s_barrier")
                    ntag = reads(sg + 1, 0, fs ^ 1)
                    if sg + 4 < 7:
                        dma(sg + 4); hload(sg + 4)
                    if sg == 4:
                        A(f"buffer_load_dwordx4 v[{XR}:{XR+3}], v3, {srd(Q)}, s71 offen")
                        A(f"s_mov_b32 s58, {WS_STATS}")
                        A(f"buffer_load_dwordx2 v[{STT}:{STT+1}], v33, {srd(WS)}, s58 offen sc1")
                        A(f"s_lshl_b32 s58, s{SN}, 18")
                        A(f"s_lshl_b32 s59, s{SSB}, 7")
                        A("s_add_u32 s58, s58, s59")
                        A(f"s_add_u32 s58, s58, {WS_ZT}")
                        A(f"buffer_load_dwordx4 v[{ZR}:{ZR+3}], v32, {srd(WS)}, s58 offen sc1")
                        tagZ = A.vm_tag()
            h = HF + (sg*4 + tl)*4
            for dt in range(2):
                a = ACC + 16*dt
                c = "0" if (sg == 0 and tl == 0) else f"v[{a}:{a+15}]"
                A(f"v_mfma_f32_32x32x16_bf16 v[{a}:{a+15}], v[{FR[fs]+4*dt}:{FR[fs]+4*dt+3}], v[{h}:{h+3}], {c}")
            tag = ntag
            fs ^= 1
    stamp(A, "g2_mfma_end")
    A("v_and_b32 v9, 7, v1")
    A(f"v_xor_b32 v10, s{WV}, v9")
    A("v_lshlrev_b32 v10, 4, v10")
    A("v_lshl_add_u32 v10, v9, 10, v10")
    A("v_lshl_add_u32 v10, v8, 1, v10")
    A(f"v_add_u32 v10, {ZB}, v10")
    A.wait_vm(tagZ)
    for e in range(8):
        op = "ds_write_b16" if e % 2 == 0 else "ds_write_b16_d16_hi"
        A(f"{op} v10, v{ZR + e//2} offset:{e*128}")
    A("v_and_b32 v9, 31, v1")
    A("v_lshrrev_b32 v10, 5, v1")
    A("v_lshlrev_b32 v10, 2, v10")
    A("v_and_b32 v11, 7, v1")
    A("v_xor_b32 v10, v10, v11")
    A(f"s_lshl_b32 s58, s{WV}, 13")
    A("v_lshl_add_u32 v9, v9, 8, s58")
    for rho in range(4):
        A(f"v_xor_b32 v16, {rho}, v10")
        A(f"v_lshl_add_u32 v{20+rho}, v16, 4, v9")
    for dt in range(2):
        for rho in range(4):
            a = ACC + 16*dt + 4*rho
            A(f"ds_write_b128 v{20+rho}, v[{a}:{a+3}] offset:{dt*128}")
    A("s_lshl_b32 s58, s56, 3")
    A("v_add_u32 v9, s58, v8")
    A("v_lshlrev_b32 v10, 1, v11")
    A("v_xor_b32 v10, v10, v8")
    A("v_lshlrev_b32 v9, 8, v9")
    A("s_lshl_b32 s58, s57, 13")
    A("v_add_u32 v9, s58, v9")
    A("v_lshl_add_u32 v16, v10, 4, v9")
    A("v_xor_b32 v10, 1, v10")
    A("v_lshl_add_u32 v17, v10, 4, v9")
    A("s_lshl_b32 s58, s57, 2")
    A("s_add_u32 s58, s58, s56")
    A("v_xor_b32 v10, s58, v11")
    A("v_lshlrev_b32 v10, 4, v10")
    A("v_lshl_add_u32 v10, v8, 7, v10")
    A("s_lshl_b32 s58, s58, 10")
    A(f"s_add_u32 s58, s58, {ZB}")
    A("v_add_u32 v10, s58, v10")
    A("s_waitcnt lgkmcnt(0)")
    A("s_barrier")
    A(f"ds_read_b128 v[{ZR}:{ZR+3}], v10")
    P = 128
    for src in range(4):
        for hf in range(2):
            A(f"ds_read_b128 v[{P+8*src+4*hf}:{P+8*src+4*hf+3}], v{16+hf} offset:{src*16384}")
    XF, TT, ZF = 32, 40, 48
    for q in range(4):
        unpack(A, XF+2*q, XF+2*q+1, XR+q)
    for e in range(8):
        A(f"v_sub_f32 v{TT+e}, v{XF+e}, v{STT}")
    def rnd(base):
        for q in range(4):
            A(f"v_cvt_pk_bf16_f32 v{56+q}, v{base+2*q}, v{base+2*q+1}")
        for q in range(4):
            unpack(A, base+2*q, base+2*q+1, 56+q)
    rnd(TT)
    for e in range(8):
        A(f"v_mul_f32 v{TT+e}, v{TT+e}, v{STT+1}")
    rnd(TT)
    A("s_waitcnt lgkmcnt(8)")
    for q in range(4):
        unpack(A, ZF+2*q, ZF+2*q+1, ZR+q)
    for e in range(8):
        A(f"v_mul_f32 v{TT+e}, v{TT+e}, v{ZF+e}")
    rnd(TT)
    for e in range(8):
        A(f"v_add_f32 v{TT+e}, v{TT+e}, v{XF+e}")
    rnd(TT)
    A("s_waitcnt lgkmcnt(0)")
    for e in range(8):
        A(f"v_add_f32 v{P+e}, v{P+e}, v{P+8+e}")
        A(f"v_add_f32 v{P+16+e}, v{P+16+e}, v{P+24+e}")
    for e in range(8):
        A(f"v_add_f32 v{P+e}, v{P+e}, v{P+16+e}")
    rnd(P)
    for e in range(8):
        A(f"v_add_f32 v{P+e}, v{P+e}, v{TT+e}")
    for q in range(4):
        A(f"v_cvt_pk_bf16_f32 v{56+q}, v{P+2*q}, v{P+2*q+1}")
    A(f"buffer_store_dwordx4 v[56:59], v3, {srd(OUT)}, s71 offen")
    stamp(A, "end")

def kd(name, vgpr=256):
    return f""".amdhsa_kernel {name}
  .amdhsa_next_free_vgpr {vgpr}
  .amdhsa_next_free_sgpr 102
  .amdhsa_accum_offset {vgpr}
  .amdhsa_group_segment_fixed_size 0
  .amdhsa_kernarg_size 104
  .amdhsa_user_sgpr_count 2
  .amdhsa_user_sgpr_kernarg_segment_ptr 1
  .amdhsa_system_sgpr_workgroup_id_x 1
.end_amdhsa_kernel
"""

def build_fused():
    name = NAME + "_kernel"
    out = [f"; @launch grid=(256,1,1) block=(512,1,1) lds=163840"]
    out.append('.amdgcn_target "amdgcn-amd-amdhsa--gfx950"')
    out.append(".text")
    A = Asm()
    A(f".globl {name}"); A(".p2align 8"); A(f".type {name},@function"); A(f"{name}:")
    prologue(A, 256, "L_exit")
    A("s_cmp_ge_u32 s2, 224")
    A("s_cbranch_scc1 L_free")
    phase_g1(A)
    phase_conv(A)
    phase_g2(A)
    stamp_dump(A)
    A("s_endpgm")
    A("L_free:")
    free_path(A)
    A("L_exit:")
    A("s_endpgm")
    out.append(A.text())
    out.append('.section .rodata,"a"')
    out.append(".p2align 6")
    out.append(kd(name))
    return "\n".join(out)

if __name__ == "__main__":
    for a in sys.argv[2:]:
        k, v = a.split("=")
        OPT[k] = int(v)
    open(sys.argv[1], "w").write(build_fused())
    if OPT["prof"]:
        open(sys.argv[1] + ".names", "w").write(",".join(Ctx.names))
```

```python
import re

def _regs(tok):
    tok = tok.strip()
    tok = re.sub(r"^(neg|abs)\((.*)\)$", r"\2", tok)
    tok = tok.lstrip("-").strip("|")
    m = re.fullmatch(r"([vsa])(\d+)", tok)
    if m:
        return [(m.group(1), int(m.group(2)))]
    m = re.fullmatch(r"([vsa])\[(\d+):(\d+)\]", tok)
    if m:
        return [(m.group(1), i) for i in range(int(m.group(2)), int(m.group(3)) + 1)]
    if tok == "vcc":
        return [("s", 106), ("s", 107)]
    if tok == "vcc_lo":
        return [("s", 106)]
    if tok == "vcc_hi":
        return [("s", 107)]
    if tok == "exec":
        return [("s", 126), ("s", 127)]
    if tok == "exec_lo":
        return [("s", 126)]
    if tok == "exec_hi":
        return [("s", 127)]
    if tok == "m0":
        return [("s", 124)]
    return []

TRANS = ("v_exp_f32", "v_log_f32", "v_rcp_f32", "v_rsq_f32", "v_sqrt_f32", "v_sin_f32", "v_cos_f32")

class Ins:
    def __init__(self, text):
        self.text = text
        t = text.split(";")[0].strip()
        self.label = t.endswith(":")
        self.directive = t.startswith(".")
        self.op = ""
        self.dst = []; self.src = []
        self.kind = "other"
        self.srcA = []; self.srcB = []; self.srcC = []
        self.dpp = False
        self.lds_dma = False
        self.wide_store_data = []
        self.states = 1
        if self.label or self.directive or not t:
            self.states = 0
            return
        parts = t.split(None, 1)
        self.op = op = parts[0]
        rest = parts[1] if len(parts) > 1 else ""
        ops = [o.strip() for o in rest.split(",")]
        mods = ""
        if ops:
            joined = rest
            m = re.search(r"\s(offset|offen|idxen|lds|sc0|sc1|nt|op_sel|op_sel_hi|neg_lo|neg_hi|quad_perm|row_shr|row_shl|row_ror|row_mirror|row_half_mirror|row_bcast|wave_shr|row_mask|bank_mask|bound_ctrl|dst_sel|src0_sel|src1_sel|dst_unused|offset0|offset1|glc|clamp|cbsz|abid|blgp|row_newbcast)\b", joined)
            if m:
                mods = joined[m.start():]
                joined = joined[:m.start()]
            ops = [o.strip() for o in joined.split(",")] if joined.strip() else []
        self.ops = ops; self.mods = mods
        R = [_regs(o) for o in ops]
        flat = lambda xs: [r for x in xs for r in x]
        if op == "s_nop":
            self.states = int(ops[0], 0) + 1
            self.kind = "salu"
        elif op.startswith("v_mfma"):
            self.kind = "mfma"
            self.dst = R[0]; self.srcA = R[1]; self.srcB = R[2]; self.srcC = R[3] if len(R) > 3 else []
            self.src = flat(R[1:])
            self.passes = 8 if "32x32x16" in op else 4 if "16x16x32" in op else 16
        elif op.startswith("v_"):
            self.kind = "valu"
            self.dst = R[0]; self.src = flat(R[1:])
            if "permlane" in op and "swap" in op:
                self.dst = R[0] + R[1]; self.src = R[0] + R[1]
            if op.startswith(("v_fmac", "v_dot2c", "v_pk_fmac", "v_writelane")):
                self.src = self.src + R[0]
            if op.startswith(("v_add_co", "v_sub_co", "v_addc_co", "v_subb_co")):
                self.dst = R[0] + R[1]; self.src = flat(R[2:])
            if re.search(r"quad_perm|row_shr|row_shl|row_ror|row_mirror|row_half_mirror|row_bcast|wave_shr|row_newbcast", mods):
                self.dpp = True
                self.src = self.src + R[0]
            if "dst_sel" in mods:
                self.src = self.src + R[0]
        elif op.startswith("ds_"):
            self.kind = "ds"
            if op.startswith(("ds_read", "ds_bpermute", "ds_permute", "ds_swizzle")):
                self.dst = R[0]; self.src = flat(R[1:])
                if "d16" in op:
                    self.src = self.src + R[0]
            else:
                self.src = flat(R)
        elif op.startswith(("buffer_", "global_")):
            self.kind = "vmem"
            if re.search(r"\blds\b", mods) or "load_lds" in op:
                self.lds_dma = True
                self.src = flat(R) + [("s", 124)]
            elif "load" in op:
                self.dst = R[0]; self.src = flat(R[1:])
                if "d16" in op: self.src = self.src + R[0]
            else:
                self.src = flat(R)
                if "x4" in op or "x3" in op:
                    self.wide_store_data = R[0] if op.startswith("buffer_") else R[1]
        elif op.startswith("s_"):
            self.kind = "salu"
            if op.startswith(("s_load", "s_memtime", "s_memrealtime", "s_buffer_load")):
                self.kind = "smem"
                self.dst = R[0]; self.src = flat(R[1:])
            elif op.startswith(("s_cmp", "s_waitcnt", "s_barrier", "s_branch", "s_cbranch", "s_endpgm", "s_setprio", "s_sleep", "s_bitcmp")):
                self.src = flat(R)
            else:
                self.dst = R[0]; self.src = flat(R[1:])
                if "saveexec" in op:
                    self.dst = self.dst + [("s", 126), ("s", 127)]

def need_states(p, c):
    n = 0
    pd = set(p.dst)
    if p.kind == "valu":
        pv = {r for r in pd if r[0] in "va"}
        ps = {r for r in pd if r[0] == "s"}
        if c.kind == "mfma" and pv & set(c.src):
            n = max(n, 2)
        if c.kind == "valu":
            if c.dpp and pv & set(c.src):
                n = max(n, 2)
            if "permlane" in c.op and pv & set(c.src):
                n = max(n, 2)
            if c.op.startswith(("v_readlane", "v_readfirstlane")) and pv & set(c.src):
                n = max(n, 1)
            if p.op.startswith("v_dot") and c.op != p.op and pv & (set(c.src) | set(c.dst)):
                n = max(n, 3)
            if p.op in TRANS and pv & set(c.src):
                n = max(n, 1)
            if ("dst_sel" in p.mods or "op_sel" in p.mods) and pv & (set(c.src) | set(c.dst)):
                n = max(n, 1)
            if ps & set(c.src):
                n = max(n, 4 if c.op.startswith(("v_readlane", "v_writelane")) else 2)
            if ps & {("s", 126), ("s", 127)}:
                n = max(n, 5 if c.dpp else 4)
        if c.kind == "vmem" and ps & set(c.src):
            n = max(n, 5)
        if c.kind == "mfma" and ps & {("s", 126), ("s", 127)}:
            n = max(n, 4)
        if c.kind in ("salu", "smem") and ps & set(c.src):
            n = max(n, 1)
    if p.kind == "salu":
        if ("s", 124) in pd and c.kind == "vmem" and c.lds_dma:
            n = max(n, 1)
    if p.kind == "mfma":
        P = p.passes
        full = {2: 5, 4: 8, 8: 12, 16: 20}[P]
        if c.kind == "mfma":
            if pd & (set(c.srcA) | set(c.srcB)):
                n = max(n, full)
            if pd & set(c.srcC):
                if c.srcC == p.dst and c.passes == P:
                    n = max(n, 0 if P >= 4 else 2)
                else:
                    n = max(n, {2: 4, 4: 6, 8: 10, 16: 18}[P])
            elif pd & set(c.dst):
                n = max(n, full)
        elif c.kind in ("valu", "vmem", "ds"):
            if pd & (set(c.src) | set(c.dst)):
                n = max(n, full)
            if c.kind == "valu" and set(p.srcC) & set(c.dst):
                n = max(n, {2: 1, 4: 3, 8: 7, 16: 15}[P])
    if p.kind == "vmem" and p.wide_store_data:
        if set(p.wide_store_data) & set(c.dst):
            n = max(n, 2 if c.kind == "valu" else 1)
    return n

class Asm:
    def __init__(self):
        self.ins = []
        self.vm = 0
        self.lg = 0
        self._lab = 0
        self.vm_lo = 0; self.vm_hi = 0
        self.role = None
        self.wave_sgpr = 3
    def __call__(self, text):
        for line in text.split("\n"):
            line = line.strip()
            if not line:
                continue
            i = Ins(line)
            if i.kind != "other":
                dist = 0; need = 0
                for p in reversed(self.ins):
                    if p.states == 0 and not p.label:
                        continue
                    if p.label:
                        continue
                    ns = need_states(p, i)
                    if ns - dist > need:
                        need = ns - dist
                    dist += p.states
                    if dist >= 20:
                        break
                while need > 0:
                    k = min(need, 16)
                    self.ins.append(Ins(f"s_nop {k-1}"))
                    need -= k
            self.ins.append(i)
            if i.kind == "vmem":
                if self.role == "lo": self.vm_lo += 1
                elif self.role == "hi": self.vm_hi += 1
                else: self.vm += 1
            if i.kind == "ds":
                self.lg += 1
        return self
    def vm_tag(self):
        return (self.vm, self.vm_lo, self.vm_hi)
    def lg_tag(self):
        return self.lg
    def wait_vm(self, tag, role=None):
        n = self.vm - tag[0]
        assert n >= 0
        nlo = min(n + self.vm_lo - tag[1], 63); nhi = min(n + self.vm_hi - tag[2], 63)
        role = role or self.role
        if role == "lo": self(f"s_waitcnt vmcnt({nlo})")
        elif role == "hi": self(f"s_waitcnt vmcnt({nhi})")
        elif nlo == nhi: self(f"s_waitcnt vmcnt({nlo})")
        else:
            l = self.label("L_w")
            self(f"s_waitcnt vmcnt({max(nlo, nhi)})")
            self(f"s_cmp_ge_u32 s{self.wave_sgpr}, 4")
            self(f"s_cbranch_scc{'0' if nhi < nlo else '1'} {l}")
            self(f"s_waitcnt vmcnt({min(nlo, nhi)})")
            self(f"{l}:")
    def wait_lg(self, tag):
        n = self.lg - tag
        assert n >= 0
        self(f"s_waitcnt lgkmcnt({min(n, 15)})")
    def label(self, base="L"):
        self._lab += 1
        return f"{base}_{self._lab}"
    def text(self):
        out = []
        for i in self.ins:
            out.append(i.text if (i.label or i.directive) else "    " + i.text)
        return "\n".join(out) + "\n"

def vr(a, n=1):
    return f"v{a}" if n == 1 else f"v[{a}:{a+n-1}]"
def sr(a, n=1):
    return f"s{a}" if n == 1 else f"s[{a}:{a+n-1}]"
```

```python
import sys, struct
from asmlib import *
from gen2 import (NAME, S, D, F, WS_KVR, WS_H, WS_ZT, WS_STATS, WS_CS, WS_PROF, WS_SIZE, Q, Kb, Vb, SSMK, W13, W2, OUT, WS, DBG, SHK, SD, SW3, WV,
                  srd, f2u, nocount, div7, unpack, allreduce32, round_bf16, stats_compute, kv_load, kv_compute, kd)
OPT = dict(prof=0, rotmode=0, codepf=1, w2late=0, arr3=32, hbar=1)

SXCD, SIDX, SIQ, SJR = 48, 49, 50, 51
SI, SJ, SC, SOX, SOW, SMX, SMW = 52, 53, 54, 55, 56, 57, 58
SSB, SROT, SOH, SOW2, SKQ, SSH, SDV = 52, 53, 54, 59, 60, 61, 62
SROT2 = 63
T0, T1, T2, T3, T4, T5 = 64, 65, 66, 67, 68, 69
SPOLL = 70
STAMP0 = 72
class Ctx: nstamp = 0; names = []
def stamp(A, name="", lvl=1):
    if OPT["prof"] and (lvl == OPT["prof"] or name == "start"):
        r = STAMP0 + 2*Ctx.nstamp
        assert r + 1 < 102, "too many stamps"
        A(f"s_memtime s[{r}:{r+1}]")
        Ctx.nstamp += 1; Ctx.names.append(name)
def stamp_dump(A):
    if OPT["prof"]:
        A("s_waitcnt lgkmcnt(0)")
        A("s_memrealtime s[64:65]")
        A("s_memtime s[66:67]")
        A(f"s_lshl_b32 s68, s2, 3")
        A(f"s_add_u32 s68, s68, s{WV}")
        A("s_lshl_b32 s68, s68, 7")
        A(f"s_add_u32 s68, s68, {WS_PROF}")
        A("s_waitcnt lgkmcnt(0)")
        A("v_mov_b32 v2, 0")
        A("v_mov_b32 v3, s64")
        A(f"buffer_store_dword v3, v2, {srd(WS)}, s68 offen")
        A("v_mov_b32 v3, s66")
        A(f"buffer_store_dword v3, v2, {srd(WS)}, s68 offen offset:4")
        for q in range(Ctx.nstamp):
            A(f"v_mov_b32 v3, s{STAMP0+2*q}")
            A(f"buffer_store_dword v3, v2, {srd(WS)}, s68 offen offset:{8+4*q}")

WS_FLAG = 13 << 20
STAG = 71
def flag_store(A, val, vt):
    A(f"v_mov_b32 v{vt}, s{STAG}")
    A(f"s_lshl_b32 s{T0}, s2, 7")
    A(f"s_add_u32 s{T0}, s{T0}, {WS_FLAG + val*32768}")
    A(f"v_mov_b32 v{vt+1}, s{T0}")
    A("s_mov_b64 exec, 1")
    A(f"buffer_store_dword v{vt}, v{vt+1}, {srd(WS)}, 0 offen sc1")
    A("s_mov_b64 exec, -1")
def set_flag(A, val, vt):
    lab = A.label("L_nf")
    with nocount(A):
        A(f"s_cmp_lg_u32 s{WV}, 0")
        A(f"s_cbranch_scc1 {lab}")
        flag_store(A, val, vt)
        A(f"{lab}:")
def arrive_flag(A, val, cnt_addr, vt):
    lab = A.label("L_na")
    with nocount(A):
        A(f"v_mov_b32 v{vt}, {cnt_addr}")
        A(f"v_mov_b32 v{vt+1}, 1")
        A("s_mov_b64 exec, 1")
        A(f"ds_add_rtn_u32 v{vt+1}, v{vt}, v{vt+1}")
        A("s_mov_b64 exec, -1")
        A("s_waitcnt lgkmcnt(0)")
        A(f"v_readfirstlane_b32 s{T0}, v{vt+1}")
        A(f"s_cmp_lg_u32 s{T0}, 7")
        A(f"s_cbranch_scc1 {lab}")
        flag_store(A, val, vt)
        A(f"{lab}:")

def poll_issue(A, phase, mkid, vt):
    lab = A.label("L_pi")
    with nocount(A):
        A(f"s_cmp_lg_u32 s{WV}, 0")
        A(f"s_cbranch_scc1 {lab}")
        mkid(A, vt + 1)
        A(f"v_lshlrev_b32 v{vt+1}, 7, v{vt+1}")
        A(f"v_add_u32 v{vt+1}, {WS_FLAG + phase*32768}, v{vt+1}")
        A(f"buffer_load_dword v{vt}, v{vt+1}, {srd(WS)}, 0 offen sc1")
        A(f"{lab}:")
    return A.vm_tag()
def poll_check(A, vt, tag):
    lab = A.label("L_np"); loop = A.label("L_poll"); chk = A.label("L_chk")
    with nocount(A):
        A(f"s_cmp_lg_u32 s{WV}, 0")
        A(f"s_cbranch_scc1 {lab}")
        A(f"s_mov_b32 s{SPOLL}, 0")
        A.wait_vm(tag, "lo")
        A(f"s_branch {chk}")
        A(f"{loop}:")
        A(f"buffer_load_dword v{vt}, v{vt+1}, {srd(WS)}, 0 offen sc1")
        A("s_waitcnt vmcnt(0)")
        A(f"{chk}:")
        A(f"v_cmp_ne_u32 vcc, s{STAG}, v{vt}")
        A("s_nop 1")
        A("s_cmp_eq_u64 vcc, 0")
        A(f"s_cbranch_scc1 {lab}")
        A(f"s_add_u32 s{SPOLL}, s{SPOLL}, 1")
        A(f"s_cmp_lt_u32 s{SPOLL}, 100000")
        A(f"s_cbranch_scc1 {loop}")
        A(f"{lab}:")
def load_epoch(A):
    A(f"s_mov_b32 s{SPOLL}, {WS_FLAG}")
    A(f"s_load_dword s{STAG}, s[{WS}:{WS+1}], s{SPOLL}")
def fix_epoch(A):
    A(f"s_add_u32 s{STAG}, s{STAG}, 0x9e3779b9")

def prologue(A, nwg, exit_label):
    stamp(A, "start")
    A(f"s_cmp_ge_u32 s2, {nwg}")
    A(f"s_cbranch_scc1 {exit_label}")
    for reg, slot in ((Q, 0), (W13, 7), (SW3, 8), (Kb, 1), (Vb, 2), (SHK, 3), (SSMK, 4), (SD, 5), (W2, 9), (OUT, 10), (DBG, 11), (WS, 12)):
        A(f"s_load_dwordx2 s[{reg}:{reg+1}], s[0:1], {slot*8}")
    A("v_and_b32 v1, 63, v0")
    A("v_lshrrev_b32 v2, 6, v0")
    A(f"v_readfirstlane_b32 s{WV}, v2")
    for reg, size in ((Q, S*D*2), (Kb, S*D*2), (Vb, S*D*2), (SHK, D*8), (SSMK, D*S*2), (W13, D*F*2), (W2, F*D*2), (OUT, S*D*2), (DBG, 256), (WS, WS_SIZE)):
        A(f"s_mov_b32 s{reg+2}, {size}")
        A(f"s_mov_b32 s{reg+3}, 0x00020000")
    A(f"s_and_b32 s{SXCD}, s2, 7")
    A(f"s_lshr_b32 s{SIDX}, s2, 3")
    div7(A, SIQ, SIDX)
    A(f"s_mul_i32 s{SJR}, s{SIQ}, 7")
    A(f"s_sub_u32 s{SJR}, s{SIDX}, s{SJR}")

def stats_load(A, B):
    A(f"v_and_b32 v{B+2}, 31, v1")
    A(f"v_lshrrev_b32 v{B+3}, 5, v1")
    A(f"s_and_b32 s{T0}, s{SXCD}, 3")
    A(f"s_lshl_b32 s{T0}, s{T0}, 9")
    A(f"s_lshr_b32 s{T1}, s{SXCD}, 2")
    A(f"s_lshl_b32 s{T1}, s{T1}, 8")
    A(f"s_add_u32 s{T0}, s{T0}, s{T1}")
    A(f"s_lshl_b32 s{T1}, s{SIDX}, 3")
    A(f"s_add_u32 s{T0}, s{T0}, s{T1}")
    A(f"s_lshl_b32 s{T1}, s{WV}, 1")
    A(f"s_add_u32 s{T0}, s{T0}, s{T1}")
    A(f"s_sub_u32 s{T0}, s{T0}, 8")
    A(f"v_add_u32 v{B+3}, s{T0}, v{B+3}")
    A(f"v_mul_u32_u24 v{B+4}, 896, v{B+3}")
    A(f"v_lshl_add_u32 v{B+4}, v{B+2}, 5, v{B+4}")
    A(f"v_cmp_gt_u32 vcc, 28, v{B+2}")
    A(f"v_mov_b32 v{B+5}, 0x7fffff00")
    A(f"v_cndmask_b32 v{B+4}, v{B+5}, v{B+4}, vcc")
    A(f"v_cndmask_b32 v{B+6}, 0, 1.0, vcc")
    A(f"buffer_load_dwordx4 v[{B+8}:{B+11}], v{B+4}, {srd(Q)}, 0 offen")
    A(f"buffer_load_dwordx4 v[{B+12}:{B+15}], v{B+4}, {srd(Q)}, 0 offen offset:16")

def only(A, cond, fn):
    l = A.label("L_o")
    A(f"s_cmp_ge_u32 s{WV}, 4")
    A(f"s_cbranch_scc{'1' if cond == 'lo' else '0'} {l}")
    A.role = cond
    fn()
    A.role = None
    A(f"{l}:")
def nafter(A, tag, role):
    return A.vm - tag[0] + (A.vm_lo - tag[1] if role == "lo" else A.vm_hi - tag[2])

def free_path(A):
    lab_nc = A.label("L_fc")
    A("s_waitcnt lgkmcnt(0)")
    load_epoch(A)
    if OPT["codepf"]:
        A(f"s_getpc_b64 s[{T2}:{T3}]")
        A("L_pc:")
        A(f"s_sub_u32 s{T2}, s{T2}, L_pc-{NAME}_kernel")
        A(f"s_subb_u32 s{T3}, s{T3}, 0")
        A("v_lshlrev_b32 v2, 6, v0")
        A(f"v_min_u32 v2, L_codeend-{NAME}_kernel-4, v2")
        A(f"global_load_dword v250, v2, s[{T2}:{T3}]")
    A(f"s_and_b32 s{SI}, s{SXCD}, 3")
    A(f"s_lshl_b32 s{SI}, s{SI}, 2")
    A(f"s_add_u32 s{SI}, s{SI}, s{SJR}")
    A(f"s_cmp_ge_u32 s{SI}, 7")
    A(f"s_cselect_b32 s{W13}, s{SW3}, s{W13}")
    A(f"s_cselect_b32 s{W13+1}, s{SW3+1}, s{W13+1}")
    A(f"s_cselect_b32 s{SC}, 7, 0")
    A(f"s_cselect_b32 s{SOX}, {F*4}, 0")
    A(f"s_sub_u32 s{SJ}, s{SI}, s{SC}")
    A(f"s_lshr_b32 s{SC}, s{SXCD}, 2")
    A(f"s_mul_i32 s{SC}, s{SC}, 7")
    A(f"s_add_u32 s{SJ}, s{SJ}, s{SC}")
    A("v_lshrrev_b32 v2, 4, v0")
    A("v_and_b32 v3, 15, v0")
    A("v_mul_u32_u24 v4, 3584, v2")
    A("v_lshl_add_u32 v4, v3, 4, v4")
    A(f"s_lshl_b32 s{SOW}, s{SJ}, 8")
    only(A, "hi", lambda: stats_load(A, 180))
    A(f"s_cmp_ge_u32 s{SI}, 14")
    A(f"s_cselect_b32 s{SOW}, 0x7ff00000, s{SOW}")
    tags = []
    for it in range(14):
        A(f"buffer_load_dwordx4 v[{100+4*it}:{103+4*it}], v4, {srd(W13)}, s{SOW} offen")
        tags.append(A.vm_tag())
        if it < 13:
            A(f"s_add_u32 s{SOW}, s{SOW}, {32*3584}")
    with nocount(A):
        only(A, "hi", lambda: stats_compute(A, 180, 14))
    A.vm_hi = tags[0][2]
    for e in range(8):
        A(f"v_mov_b32 v{8+e}, 0")
    for it in range(14):
        A.wait_vm(tags[it])
        for e in range(4):
            unpack(A, 16, 17, 100 + 4*it + e)
            A(f"v_add_f32 v{8+2*e}, v{8+2*e}, v16")
            A(f"v_add_f32 v{9+2*e}, v{9+2*e}, v17")
    A("v_lshlrev_b32 v5, 5, v0")
    A("ds_write_b128 v5, v[8:11]")
    A("ds_write_b128 v5, v[12:15] offset:16")
    A("s_waitcnt lgkmcnt(0)")
    fix_epoch(A)
    A("s_barrier")
    A(f"s_cmp_ge_u32 s{WV}, 2")
    A(f"s_cbranch_scc1 {lab_nc}")
    A(f"s_cmp_ge_u32 s{SI}, 14")
    A(f"s_cbranch_scc1 {lab_nc}")
    A("v_lshlrev_b32 v5, 2, v0")
    for r in range(32):
        A(f"ds_read_b32 v{32+r}, v5 offset:{r*512}")
    A("s_waitcnt lgkmcnt(0)")
    for r in range(1, 32):
        A(f"v_add_f32 v32, v32, v{32+r}")
    A(f"s_lshl_b32 s{SOW}, s{SJ}, 9")
    A(f"s_add_u32 s{SOW}, s{SOW}, s{SOX}")
    A(f"s_add_u32 s{SOW}, s{SOW}, {WS_CS}")
    A(f"buffer_store_dword v32, v5, {srd(WS)}, s{SOW} offen sc1")
    A(f"{lab_nc}:")
    A("s_waitcnt vmcnt(0)")
    A("s_barrier")
    set_flag(A, 1, 2)
    A("s_cmp_lg_u32 s2, 255")
    A("s_cbranch_scc1 L_exit")
    lab_e = A.label("L_ep"); lab_l = A.label("L_epl")
    A("v_and_b32 v2, 255, v0")
    A("v_lshlrev_b32 v2, 7, v2")
    A(f"v_add_u32 v2, {WS_FLAG + 32768}, v2")
    A(f"s_mov_b32 s{SPOLL}, 0")
    A(f"{lab_l}:")
    A("s_sleep 32")
    A(f"buffer_load_dword v3, v2, {srd(WS)}, 0 offen sc1")
    A("s_waitcnt vmcnt(0)")
    A(f"v_cmp_ne_u32 vcc, s{STAG}, v3")
    A("s_nop 1")
    A("s_cmp_eq_u64 vcc, 0")
    A(f"s_cbranch_scc1 {lab_e}")
    A(f"s_add_u32 s{SPOLL}, s{SPOLL}, 1")
    A(f"s_cmp_lt_u32 s{SPOLL}, 100000")
    A(f"s_cbranch_scc1 {lab_l}")
    A(f"{lab_e}:")
    A("s_barrier")
    A(f"s_cmp_lg_u32 s{WV}, 0")
    A("s_cbranch_scc1 L_exit")
    A(f"v_mov_b32 v2, {WS_FLAG}")
    A(f"v_mov_b32 v3, s{STAG}")
    A("s_mov_b64 exec, 1")
    A(f"buffer_store_dword v3, v2, {srd(WS)}, 0 offen sc1")

REG = dict(a=16384, b=65536, c=32768, d=81920, e=0, f=49152, g=98304)
UNIT_REG = "abcdefg"
CB = 114688
CH_STRIDE = 17664
R0_OFF, R1_OFF, H0_OFF, H1A_OFF = CB + 0, CB + 4640, CB + 9280, CB + 13520
CNT_OFF = CB + 35328
ZB = CB + 36864
WR = 128
VW2, W2A = 50, 52
VHL = 56

def busy_path(A):
    A(f"s_and_b32 s{T0}, s{SXCD}, 3")
    A(f"s_lshl_b32 s{T0}, s{T0}, 2")
    A(f"s_add_u32 s{SI}, s{T0}, s{SIQ}")
    A(f"s_lshr_b32 s{T0}, s{SXCD}, 2")
    A(f"s_mul_i32 s{T0}, s{T0}, 7")
    A(f"s_add_u32 s{SJ}, s{T0}, s{SJR}")
    rm = OPT["rotmode"]
    if rm == 0:
        A(f"s_mov_b32 s{SC}, 0")
    elif rm == 7:
        A(f"s_lshl_b32 s{T0}, s{SIQ}, 1")
        A(f"s_add_u32 s{T0}, s{T0}, s{SJR}")
        A(f"s_add_u32 s{T0}, s{T0}, s{SXCD}")
        div7(A, T1, T0)
        A(f"s_mul_i32 s{T1}, s{T1}, 7")
        A(f"s_sub_u32 s{SC}, s{T0}, s{T1}")
    elif rm == 2:
        A(f"s_add_u32 s{T0}, s{SIQ}, s{SJR}")
        A(f"s_and_b32 s{T0}, s{T0}, 1")
        A(f"s_mul_i32 s{SC}, s{T0}, 3")
    elif rm == 3:
        A(f"s_add_u32 s{T0}, s{SIQ}, s{SJR}")
        A(f"s_mul_i32 s{T1}, s{T0}, 86")
        A(f"s_lshr_b32 s{T1}, s{T1}, 8")
        A(f"s_mul_i32 s{T1}, s{T1}, 3")
        A(f"s_sub_u32 s{T0}, s{T0}, s{T1}")
        A(f"s_lshl_b32 s{SC}, s{T0}, 1")
    elif rm == 4:
        A(f"s_add_u32 s{T0}, s{SIQ}, s{SJR}")
        A(f"s_and_b32 s{T0}, s{T0}, 3")
        A(f"s_lshl_b32 s{SC}, s{T0}, 1")
    A(f"s_cmp_ge_u32 s{WV}, 4")
    A(f"s_cselect_b32 s{T2}, 4, 0")
    A(f"s_lshl_b32 s{T0}, s{SI}, 7")
    A(f"s_lshl_b32 s{T1}, s{WV}, 4")
    A(f"s_add_u32 s{T0}, s{T0}, s{T1}")
    A(f"s_mul_i32 s{SOX}, s{T0}, 896")
    A(f"s_and_b32 s{T0}, s{WV}, 3")
    A(f"s_mul_i32 s{SOW}, s{T0}, {16*3584}")
    A(f"s_lshl_b32 s{T1}, s{SJ}, 8")
    A(f"s_add_u32 s{SOW}, s{SOW}, s{T1}")
    A(f"s_lshl_b32 s{SMX}, s{WV}, 11")
    A(f"s_lshl_b32 s{SMW}, s{T0}, 12")
    A(f"s_mul_i32 s{T1}, s{T2}, {49152//4}")
    A(f"s_add_u32 s{SMW}, s{SMW}, s{T1}")
    A(f"s_add_u32 s{SMW}, s{SMW}, 49152")
    VX, VW = 2, 4
    A("v_lshrrev_b32 v8, 3, v1")
    A("v_and_b32 v9, 7, v1")
    A("v_lshrrev_b32 v10, 1, v8")
    A("v_xor_b32 v10, v9, v10")
    A("v_mul_u32_u24 v11, 896, v8")
    A(f"v_lshl_add_u32 v{VX}, v10, 4, v11")
    A("v_xor_b32 v10, 4, v10")
    A(f"v_lshl_add_u32 v{VX+1}, v10, 4, v11")
    A(f"v_add_u32 v{VX+1}, {8*896-1024}, v{VX+1}")
    A("v_lshrrev_b32 v8, 4, v1")
    A("v_bfe_u32 v9, v1, 1, 3")
    A("v_xor_b32 v9, v9, v8")
    A(f"v_xor_b32 v9, s{T2}, v9")
    A("v_and_b32 v10, 1, v1")
    A("v_lshlrev_b32 v10, 4, v10")
    A("v_lshl_add_u32 v10, v9, 5, v10")
    A("v_mul_u32_u24 v11, 3584, v8")
    A(f"v_add_u32 v{VW}, v10, v11")
    for e in range(1, 4):
        A(f"v_add_u32 v{VW+e}, {e*(14336-1024)}, v{VW}")
    A("s_waitcnt lgkmcnt(0)")
    A(f"s_cmp_ge_u32 s{WV}, 4")
    A(f"s_cselect_b32 s{W13}, s{SW3}, s{W13}")
    A(f"s_cselect_b32 s{W13+1}, s{SW3+1}, s{W13+1}")
    load_epoch(A)
    dma_tag = {}
    def dma_parts(stage):
        slot = stage % 3
        def p0():
            A(f"s_mul_i32 s{T5}, s{SC}, {64*3584}")
            A(f"s_add_u32 s{T5}, s{T5}, s{SOW}")
            A(f"s_add_u32 m0, s{SMW}, {slot*16384}")
            for e in range(2):
                A(f"buffer_load_dwordx4 v{VW+e}, {srd(W13)}, s{T5} offen offset:{e*1024} lds")
        def p1():
            A(f"s_add_u32 m0, s{SMW}, {slot*16384}")
            for e in range(2, 4):
                A(f"buffer_load_dwordx4 v{VW+e}, {srd(W13)}, s{T5} offen offset:{e*1024} lds")
        def p2():
            A(f"s_lshl_b32 s{T5}, s{SC}, 7")
            A(f"s_add_u32 s{T5}, s{T5}, s{SOX}")
            A(f"s_add_u32 m0, s{SMX}, {slot*16384}")
            for e in range(2):
                A(f"buffer_load_dwordx4 v{VX+e}, {srd(Q)}, s{T5} offen offset:{e*1024} lds")
            dma_tag[stage] = A.vm_tag()
            A(f"s_add_u32 s{SC}, s{SC}, 1")
            A(f"s_cmp_ge_u32 s{SC}, 7")
            A(f"s_cselect_b32 s{SC}, 0, s{SC}")
        return [p0, p1, p2]
    def dma(stage):
        for p in dma_parts(stage): p()
    PB = 128
    only(A, "hi", lambda: stats_load(A, PB))
    tag_sl = A.vm_tag()
    dma(0)
    A("s_barrier")
    dma(1)
    XA, WA = 8, 12
    A(f"s_and_b32 s{SSH}, s{WV}, 1")
    A(f"s_lshr_b32 s{SKQ}, s{WV}, 1")
    A("v_and_b32 v14, 31, v1")
    A("v_lshrrev_b32 v15, 5, v1")
    A("v_bfe_u32 v16, v1, 1, 3")
    A("v_xor_b32 v16, v16, v15")
    A(f"s_lshl_b32 s{T0}, s{SSH}, 13")
    A(f"v_lshl_add_u32 v17, v14, 7, s{T0}")
    for ks in range(4):
        A(f"v_xor_b32 v18, {2*ks}, v16")
        A(f"v_lshl_add_u32 v{XA+ks}, v18, 4, v17")
    A("v_bfe_u32 v16, v1, 4, 1")
    A("v_bfe_u32 v17, v1, 2, 2")
    A("v_lshl_add_u32 v18, v15, 3, v17")
    A("v_lshlrev_b32 v18, 8, v18")
    A("v_mul_u32_u24 v19, 49152, v16")
    A("v_add_u32 v18, v18, v19")
    A("v_add_u32 v18, 49152, v18")
    A("v_and_b32 v19, 1, v1")
    A("v_lshlrev_b32 v19, 4, v19")
    A("v_bfe_u32 v20, v1, 1, 1")
    A("v_lshl_add_u32 v19, v20, 3, v19")
    A("v_add_u32 v18, v18, v19")
    A("v_lshlrev_b32 v16, 2, v16")
    A("v_xor_b32 v16, v16, v17")
    A(f"s_lshl_b32 s{T0}, s{SKQ}, 1")
    A(f"v_xor_b32 v16, s{T0}, v16")
    A(f"v_lshl_add_u32 v{WA}, v16, 5, v18")
    A("v_xor_b32 v16, 1, v16")
    A(f"v_lshl_add_u32 v{WA+1}, v16, 5, v18")
    A(f"s_mul_i32 s{T0}, s{SKQ}, 448")
    A(f"s_lshl_b32 s{T1}, s{SSH}, 3")
    A(f"s_add_u32 s{T0}, s{T0}, s{T1}")
    A(f"s_mul_i32 s{T0}, s{T0}, 896")
    A(f"s_lshl_b32 s{T1}, s{SJR}, 7")
    A(f"s_add_u32 s{SOW2}, s{T0}, s{T1}")
    A(f"s_lshl_b32 s{T0}, s{SJR}, 1")
    A(f"s_mul_i32 s{T1}, s{SIQ}, 3")
    A(f"s_add_u32 s{SROT2}, s{T0}, s{T1}")
    A(f"s_cmp_ge_u32 s{SROT2}, 14")
    A(f"s_cselect_b32 s{T0}, 14, 0")
    A(f"s_sub_u32 s{SROT2}, s{SROT2}, s{T0}")
    A(f"v_lshlrev_b32 v{VHL}, 4, v1")
    A("v_lshrrev_b32 v16, 3, v1")
    A("v_and_b32 v17, 7, v1")
    A("v_bfe_u32 v18, v1, 4, 1")
    A("v_lshlrev_b32 v18, 2, v18")
    A("v_xor_b32 v17, v17, v18")
    A("v_mul_u32_u24 v18, 896, v16")
    A(f"v_lshl_add_u32 v{VW2}, v17, 4, v18")
    A(f"v_add_u32 v{VW2+1}, {14336-1024}, v{VW2}")
    A("v_bfe_u32 v17, v1, 2, 2")
    A("v_lshlrev_b32 v18, 11, v15")
    A("v_lshl_add_u32 v18, v17, 7, v18")
    A("v_and_b32 v16, 1, v1")
    A("v_lshl_add_u32 v18, v16, 5, v18")
    A("v_bfe_u32 v16, v1, 4, 1")
    A("v_lshl_add_u32 v18, v16, 4, v18")
    A("v_bfe_u32 v16, v1, 1, 1")
    A("v_lshl_add_u32 v18, v16, 3, v18")
    A(f"s_lshl_b32 s{T0}, s{SKQ}, 12")
    A(f"v_add_u32 v18, s{T0}, v18")
    A("v_bfe_u32 v16, v1, 3, 1")
    A("v_xor_b32 v17, 1, v16")
    A(f"v_lshl_add_u32 v{W2A}, v16, 6, v18")
    A(f"v_lshl_add_u32 v{W2A+1}, v17, 6, v18")
    A(f"v_add_u32 v{W2A+2}, 65536, v{W2A}")
    A(f"v_add_u32 v{W2A+3}, 65536, v{W2A+1}")
    def k2(lu, dst):
        A(f"s_add_u32 s{dst}, s{SROT2}, {lu}")
        A(f"s_cmp_ge_u32 s{dst}, 14")
        A(f"s_cselect_b32 s{T4}, 14, 0")
        A(f"s_sub_u32 s{dst}, s{dst}, s{T4}")
    w2tag = {}
    def w2dma(lu):
        reg = REG[UNIT_REG[lu % 7]]
        k2(lu, T3)
        A(f"s_mul_i32 s{T3}, s{T3}, {32*896}")
        A(f"s_add_u32 s{T3}, s{T3}, s{SOW2}")
        A(f"s_add_u32 m0, s{SMX}, {reg}")
        for e in range(2):
            A(f"buffer_load_dwordx4 v{VW2+e}, {srd(W2)}, s{T3} offen offset:{e*1024} lds")
        w2tag[lu] = A.vm_tag()
    def w2read(lu, tl, dstbase):
        reg = REG[UNIT_REG[lu % 7]]
        hi = reg >= 65536
        for dt in range(2):
            for sec in range(2):
                b = dstbase + 4*dt + 2*sec
                A(f"ds_read_b64_tr_b16 v[{b}:{b+1}], v{W2A + 2*hi + dt} offset:{reg - 65536*hi + tl*1024 + sec*512}")
    def w2toreg(lu):
        for tl in range(2):
            w2read(lu, tl, WR + ((lu - 7)*2 + tl)*8)
    A("s_waitcnt lgkmcnt(0)")
    fix_epoch(A)
    A("v_mov_b32 v58, 0")
    stamp(A, "issued")
    only(A, "hi", lambda: stats_compute(A, PB, nafter(A, tag_sl, "hi")))
    tag_ss = A.vm_tag()
    FR = [16, 32]
    ACC = 64
    def reads(stage, ks, fs):
        slot = stage % 3
        b = FR[fs]
        for tt in range(2):
            for sec in range(2):
                A(f"ds_read_b64_tr_b16 v[{b+8+4*tt+2*sec}:{b+9+4*tt+2*sec}], v{WA+tt} offset:{slot*16384 + ks*4096 + sec*1024}")
        for nt in range(2):
            A(f"ds_read_b128 v[{b+4*nt}:{b+4*nt+3}], v{XA+ks} offset:{slot*16384 + nt*4096}")
        return A.lg_tag()
    def mfmas(first, fs):
        b = FR[fs]
        for tt in range(2):
            for nt in range(2):
                a = ACC + (tt*2 + nt)*16
                c = "0" if first else f"v[{a}:{a+15}]"
                A(f"v_mfma_f32_32x32x16_bf16 v[{a}:{a+15}], v[{b+8+4*tt}:{b+11+4*tt}], v[{b+4*nt}:{b+4*nt+3}], {c}")
    CS, STT, K1, KQ, T = 192, 224, 228, 230, 232
    def epi_operands():
        A(f"s_lshl_b32 s{T0}, s{SI}, 10")
        A(f"s_lshl_b32 s{T1}, s{SSH}, 9")
        A(f"s_add_u32 s{T0}, s{T0}, s{T1}")
        A(f"s_add_u32 s{T0}, s{T0}, {WS_STATS}")
        A("v_lshlrev_b32 v48, 3, v14")
        for nt in range(2):
            A(f"buffer_load_dwordx2 v[{STT+2*nt}:{STT+2*nt+1}], v48, {srd(WS)}, s{T0} offen offset:{nt*256} sc1")
        A(f"s_lshl_b32 s{T0}, s{SJ}, 9")
        A(f"s_lshl_b32 s{T1}, s{SKQ}, 7")
        A(f"s_add_u32 s{T0}, s{T0}, s{T1}")
        A(f"s_add_u32 s{T0}, s{T0}, {WS_CS}")
        A(f"s_add_u32 s{T1}, s{T0}, {F*4}")
        A("v_lshlrev_b32 v49, 5, v15")
        for tt in range(2):
            for mat in range(2):
                for hf in range(2):
                    r = CS + tt*16 + mat*8 + hf*4
                    A(f"buffer_load_dwordx4 v[{r}:{r+3}], v49, {srd(WS)}, s{T0+mat} offen offset:{tt*64+hf*16} sc1")
        Ctx.tag_epi = A.vm_tag()
    def touches():
        with nocount(A):
            l1 = A.label("L_t"); l2 = A.label("L_t")
            A("v_lshlrev_b32 v48, 7, v1")
            A(f"s_cmp_eq_u32 s{WV}, 7")
            A(f"s_cbranch_scc1 {l1}")
            A(f"s_mul_i32 s{T0}, s{SIDX}, 57344")
            A(f"s_lshl_b32 s{T1}, s{WV}, 13")
            A(f"s_add_u32 s{T0}, s{T0}, s{T1}")
            A(f"buffer_load_dword v255, v48, {srd(W2)}, s{T0} offen")
            A(f"s_branch {l2}")
            A(f"{l1}:")
            A(f"s_lshl_b32 s{T0}, s2, 13")
            A(f"buffer_load_dword v255, v48, {srd(SSMK)}, s{T0} offen")
            A(f"{l2}:")
    def conv_zero():
        A("v_mov_b32 v240, 0"); A("v_mov_b32 v241, 0"); A("v_mov_b32 v242, 0"); A("v_mov_b32 v243, 0")
        A(f"s_bfe_u32 s{T0}, s{WV}, 0x10001")
        A(f"s_mul_i32 s{T0}, s{T0}, {CH_STRIDE}")
        A(f"s_mul_i32 s{T1}, s{SSH}, {R1_OFF-R0_OFF}")
        A(f"s_add_u32 s{T1}, s{T1}, {R0_OFF+4096}")
        A(f"s_mul_i32 s{T2}, s{SSH}, {13376-9216}")
        A(f"s_add_u32 s{T2}, s{T2}, {CB+9216}")
        A(f"s_cmp_eq_u32 s{SSH}, 1")
        A(f"s_cselect_b32 s{T3}, 9, 4")
        A(f"s_cmp_ge_u32 s{WV}, 4")
        A(f"s_cselect_b32 s{T1}, s{T2}, s{T1}")
        A(f"s_cselect_b32 s{T3}, s{T3}, 28")
        A(f"s_add_u32 s{T1}, s{T1}, s{T0}")
        A(f"v_lshl_add_u32 v48, v1, 4, s{T1}")
        A(f"v_cmp_gt_u32 vcc, s{T3}, v1")
        A(f"s_and_saveexec_b64 s[{T2}:{T3}], vcc")
        A("ds_write_b128 v48, v[240:243]")
        A("s_mov_b64 exec, -1")
        A(f"v_mov_b32 v48, {CNT_OFF}")
        A("ds_write_b64 v48, v[240:241]")
    def conv_hdma():
        A(f"s_lshl_b32 s{T0}, s2, 13")
        A("v_lshlrev_b32 v48, 4, v0")
        A(f"s_lshr_b32 s{T1}, s{WV}, 2")
        A(f"s_mul_i32 s{T1}, s{T1}, {CH_STRIDE}")
        A(f"s_and_b32 s{T2}, s{WV}, 3")
        A(f"s_lshl_b32 s{T2}, s{T2}, 10")
        A(f"s_add_u32 s{T2}, s{T2}, s{T1}")
        A(f"s_add_u32 m0, s{T2}, {H0_OFF}")
        A(f"buffer_load_dwordx4 v48, {srd(SSMK)}, s{T0} offen lds")
        A(f"s_add_u32 m0, s{T2}, {H1A_OFF}")
        A(f"s_add_u32 s{T0}, s{T0}, 4")
        A(f"buffer_load_dwordx4 v48, {srd(SSMK)}, s{T0} offen lds")
    def conv_d0():
        lab = A.label("L_nod0")
        with nocount(A):
            A(f"s_and_b32 s{T0}, s{WV}, 3")
            A(f"s_cmp_lg_u32 s{T0}, 0")
            A(f"s_cbranch_scc1 {lab}")
            A(f"s_lshr_b32 s{T1}, s{WV}, 2")
            A(f"s_mul_i32 s{T1}, s{T1}, {CH_STRIDE}")
            A(f"s_add_u32 m0, s{T1}, {H1A_OFF-4}")
            A(f"s_lshl_b32 s{T0}, s2, 13")
            A("v_lshlrev_b32 v48, 4, v0")
            A("s_mov_b64 exec, 1")
            A(f"buffer_load_dword v48, {srd(SSMK)}, s{T0} offen lds")
            A("s_mov_b64 exec, -1")
            A(f"{lab}:")
    KVR_ = 240
    def conv_kvload():
        A(f"s_lshl_b32 s{T0}, s2, 13")
        A("v_lshlrev_b32 v48, 4, v0")
        A("v_and_b32 v49, 255, v0")
        A("v_cmp_eq_u32 vcc, 255, v49")
        A("v_add_u32 v49, 16, v48")
        A("v_mov_b32 v245, 0x7fffff00")
        A("v_cndmask_b32 v49, v49, v245, vcc")
        A(f"buffer_load_dwordx4 v[{KVR_}:{KVR_+3}], v48, {srd(WS)}, s{T0} offen sc1")
        A(f"buffer_load_dword v{KVR_+4}, v49, {srd(WS)}, s{T0} offen sc1")
        Ctx.tag_kv = A.vm_tag()
    def id_p1(A, v):
        A(f"s_and_b32 s{T0}, s{SIQ}, 1")
        A(f"s_lshl_b32 s{T0}, s{T0}, 7")
        A(f"s_lshr_b32 s{T1}, s{SIQ}, 1")
        A(f"s_lshl_b32 s{T1}, s{T1}, 2")
        A(f"s_add_u32 s{T0}, s{T0}, s{T1}")
        A(f"s_and_b32 s{T1}, s{SXCD}, 3")
        A(f"s_add_u32 s{T0}, s{T0}, s{T1}")
        A(f"v_lshl_add_u32 v{v}, v1, 3, s{T0}")
        for mat in range(2):
            A(f"s_add_u32 s{T0}, s{SJR}, {7*mat}")
            A(f"s_and_b32 s{T1}, s{T0}, 3")
            A(f"s_lshl_b32 s{T1}, s{T1}, 3")
            A(f"s_lshr_b32 s{T0}, s{T0}, 2")
            A(f"s_add_u32 s{T0}, s{T0}, s{T1}")
            A(f"s_and_b32 s{T1}, s{SXCD}, 4")
            A(f"s_add_u32 s{T0}, s{T0}, s{T1}")
            A(f"s_add_u32 s{T0}, s{T0}, 224")
            A(f"v_mov_b32 v{v+1}, s{T0}")
            A(f"v_cmp_lt_u32 vcc, {15+mat}, v1")
            A(f"v_cndmask_b32 v{v}, v{v}, v{v+1}, vcc")
    def id_p2(A, v):
        A(f"s_lshr_b32 s{T0}, s2, 5")
        A(f"v_and_b32 v{v}, 31, v1")
        A(f"v_mul_u32_u24 v{v}, 7, v{v}")
        A(f"v_add_u32 v{v}, s{T0}, v{v}")
    def id_p3(A, v):
        A(f"s_bfe_u32 s{T0}, s{SSB}, 0x20001")
        A(f"s_mul_i32 s{T0}, s{T0}, 56")
        A(f"s_lshr_b32 s{T1}, s{SSB}, 3")
        A(f"s_add_u32 s{T0}, s{T0}, s{T1}")
        A(f"v_and_b32 v{v}, 7, v1")
        A(f"v_min_u32 v{v}, 6, v{v}")
        A(f"v_lshl_add_u32 v{v}, v{v}, 3, s{T0}")
        A(f"v_bfe_u32 v{v+1}, v1, 3, 1")
        A(f"v_lshl_add_u32 v{v}, v{v+1}, 2, v{v}")
    def id_p4(A, v):
        A(f"s_lshl_b32 s{T0}, s{SJR}, 5")
        A(f"v_and_b32 v{v}, 31, v1")
        A(f"v_add_u32 v{v}, s{T0}, v{v}")

    A.wait_vm(dma_tag[0])
    A("s_barrier")
    stamp(A, "g1_start"); stamp(A, "g1_start", 2)
    tag = reads(0, 0, 0)
    fs = 0
    side = {}
    def add(s, ks, fn): side.setdefault((s, ks), []).append(fn)
    tg = {}
    for i, p in enumerate(dma_parts(2)): add(0, i, p)
    def kvl():
        only(A, "lo", lambda: kv_load(A, PB)); tg["kvl"] = A.vm_tag()
    def kvc():
        only(A, "lo", lambda: kv_compute(A, PB, nafter(A, tg["kvl"], "lo"))); tg["kvs"] = A.vm_tag()
    add(0, 2, kvl)
    for s in range(4):
        ps = dma_parts(s + 3)
        add(s, 3, ps[0]); add(s + 1, 0, ps[1]); add(s + 1, 1, ps[2])
    add(1, 3, lambda: set_flag(A, 1, 48))
    add(2, 1, kvc)
    ptag = {}
    add(3, 3, lambda: ptag.__setitem__(1, poll_issue(A, 1, id_p1, 57)))
    add(3, 3, lambda: set_flag(A, 2, 48))
    add(4, 3, epi_operands)
    add(5, 0, lambda: w2dma(7)); add(5, 1, lambda: w2dma(8))
    add(5, 3, lambda: ptag.__setitem__(2, poll_issue(A, 2, id_p2, 57)))
    add(5, 3, conv_zero)
    add(5, 3, conv_hdma)
    add(6, 0, lambda: w2dma(9)); add(6, 1, lambda: w2dma(10))
    for s in range(7):
        for ks in range(4):
            if ks < 3:
                ntag = reads(s, ks + 1, fs ^ 1)
                A.wait_lg(tag)
            else:
                A("s_waitcnt lgkmcnt(0)")
                if s < 6:
                    t = dma_tag[s+1]
                    if s == 1: t = max(t, tag_ss)
                    if s == 3: t = max(t, tg["kvs"])
                    A.wait_vm(t)
                    if s == 4:
                        poll_check(A, 57, ptag[1])
                    stamp(A, f"st{s}_prebar", 2)
                    A("s_barrier")
                    stamp(A, f"st{s}_postbar", 2)
                    ntag = reads(s + 1, 0, fs ^ 1)
                else:
                    poll_check(A, 57, ptag[2])
                    A("s_barrier")
            mfmas(s == 0 and ks == 0, fs)
            for fn in side.get((s, ks), []): fn()
            tag = ntag
            fs ^= 1
    stamp(A, "g1_mfma_end"); stamp(A, "g1_mfma_end", 2)
    conv_kvload()
    conv_d0()
    if not OPT["w2late"]:
        for lu in (11, 12, 13): w2dma(lu)
    A(f"s_lshl_b32 s{T0}, s2, 2")
    A(f"s_load_dword s{SDV}, s[{SD}:{SD+1}], s{T0}")
    A.wait_vm(Ctx.tag_epi)
    for nt in range(2):
        A(f"v_mul_f32 v{K1+nt}, {hex(f2u(-1.4426950408889634))}, v{STT+2*nt+1}")
        A(f"v_mul_f32 v{KQ+nt}, v{STT+2*nt+1}, v{STT+2*nt+1}")
        A(f"v_rcp_f32 v{KQ+nt}, v{KQ+nt}")
    A(f"s_lshl_b32 s{T0}, s{SI}, 2")
    A(f"s_lshl_b32 s{T1}, s{SSH}, 1")
    A(f"s_add_u32 s{T0}, s{T0}, s{T1}")
    A(f"s_mul_i32 s{T0}, s{T0}, 112")
    A(f"s_lshl_b32 s{T1}, s{SJ}, 3")
    A(f"s_add_u32 s{T0}, s{T0}, s{T1}")
    A(f"s_lshl_b32 s{T1}, s{SKQ}, 1")
    A(f"s_add_u32 s{T0}, s{T0}, s{T1}")
    A(f"s_lshl_b32 s{T0}, s{T0}, 10")
    A(f"s_add_u32 s{T0}, s{T0}, {WS_H}")
    A(f"s_add_u32 s{T1}, s{T0}, {112*1024}")
    for tt in range(2):
        for nt in range(2):
            a = ACC + (tt*2 + nt)*16
            cs = CS + tt*16
            for r in range(16):
                A(f"v_fma_f32 v{a+r}, -v{STT+2*nt}, v{cs+r}, v{a+r}")
            for r in range(8):
                A(f"v_mul_f32 v{T+r}, v{K1+nt}, v{a+r}")
            for r in range(8):
                A(f"v_exp_f32 v{T+r}, v{T+r}")
            for r in range(8):
                A(f"v_mul_f32 v{a+r}, v{a+r}, v{a+8+r}")
            for r in range(8):
                A(f"v_fma_f32 v{T+r}, v{T+r}, v{KQ+nt}, v{KQ+nt}")
            for r in range(8):
                A(f"v_rcp_f32 v{T+r}, v{T+r}")
            for r in range(8):
                A(f"v_mul_f32 v{a+r}, v{a+r}, v{T+r}")
            for q in range(4):
                A(f"v_cvt_pk_bf16_f32 v{a+8+q}, v{a+2*q}, v{a+2*q+1}")
            A(f"buffer_store_dwordx4 v[{a+8}:{a+11}], v{VHL}, {srd(WS)}, s{T0+nt} offen offset:{tt*1024} sc1")
            tag_h = A.vm_tag()
            if OPT["w2late"] and tt*2 + nt < 3:
                w2dma(11 + tt*2 + nt)
    stamp(A, "g1_epi_end")
    A("v_lshrrev_b32 v6, 8, v0")
    A(f"v_mul_u32_u24 v6, {CH_STRIDE}, v6")
    A("v_and_b32 v3, 255, v0")
    A("v_lshl_add_u32 v6, v3, 4, v6")
    A(f"v_add_u32 v6, {CB}, v6")
    A.wait_vm(w2tag[13])
    for q in range(4):
        A(f"v_alignbit_b32 v{16+q}, v{KVR_+1+q}, v{KVR_+q}, 16")
    A(f"ds_write_b128 v6, v[{KVR_}:{KVR_+3}] offset:{R1_OFF-CB}")
    A(f"ds_write_b128 v6, v[16:19] offset:{R0_OFF-CB}")
    SCHB, SRH = 52, 53
    A(f"s_mul_i32 s{SCHB}, s{SSH}, {CH_STRIDE}")
    A(f"s_bfe_u32 s{SRH}, s{WV}, 0x10001")
    A(f"s_lshl_b32 s{T0}, s{SRH}, 8")
    A(f"s_add_u32 s{T0}, s{T0}, s{SCHB}")
    A("v_and_b32 v2, 15, v1")
    A("v_lshrrev_b32 v3, 4, v1")
    A("v_and_b32 v4, 1, v1")
    A(f"v_mul_u32_u24 v5, {H1A_OFF-4-H0_OFF}, v4")
    A(f"v_sub_u32 v5, {H1A_OFF-4-60}, v5")
    A("v_lshl_add_u32 v5, v2, 2, v5")
    A("v_lshl_add_u32 v5, v3, 4, v5")
    A(f"v_add_u32 v5, s{T0}, v5")
    A(f"v_mul_u32_u24 v6, {R1_OFF-R0_OFF}, v4")
    A(f"v_add_u32 v6, {R0_OFF+4032-3584}, v6")
    A("v_lshl_add_u32 v6, v3, 4, v6")
    A("v_lshrrev_b32 v7, 1, v2")
    A("v_lshlrev_b32 v13, 6, v7")
    A("v_sub_u32 v6, v6, v13")
    A(f"v_add_u32 v6, s{T0}, v6")
    A(f"s_lshl_b32 s{T0}, s{SKQ}, 10")
    A(f"s_sub_u32 s{T0}, s{SCHB}, s{T0}")
    A(f"s_add_u32 s{T0}, s{T0}, {R1_OFF+4080}")
    A(f"v_sub_u32 v13, s{T0}, v{VHL}")
    A("s_waitcnt lgkmcnt(0)")
    A("s_barrier")
    stamp(A, "conv_start")
    TS = 1088
    Y = 16
    POOL = list(range(64, 128, 4)) + list(range(32, 48, 4)) + [240, 244, 248, 252]
    def conv_variant(J):
        nf = max(J) + 1
        ml = []
        for rr in range(4):
            for t in range(nf):
                pairs = [(p, t) for p in range(t)] + [(t, q) for q in range(t + 1)]
                ml += [(rr, p, q) for p, q in pairs if (p + q) in J]
        loads = []
        for rr in range(4):
            for t in range(nf):
                loads += [(rr, "A", t), (rr, "B", t)]
        last_use = {}
        first_use = {}
        for i, (rr, p, q) in enumerate(ml):
            for key in ((rr, "A", p), (rr, "B", q)):
                last_use[key] = i
                first_use.setdefault(key, i)
        loads.sort(key=lambda k: first_use[k])
        free = list(POOL); slot = {}; ltag = {}
        li = 0
        seen = set()
        def issue(maxn):
            nonlocal li
            n = 0
            while li < len(loads) and free and n < maxn:
                key = loads[li]; rr, kind, t = key
                sl = free.pop(0); slot[key] = sl
                if kind == "A":
                    for h in range(2):
                        A(f"ds_read_b64 v[{sl+2*h}:{sl+2*h+1}], v5 offset:{64*rr + 512*t + 8*h}")
                else:
                    A(f"ds_read_b128 v[{sl}:{sl+3}], v6 offset:{64*rr + 512*(7-t)}")
                ltag[key] = A.lg_tag()
                li += 1; n += 1
        issue(10)
        waited = 0
        for i, (rr, p, q) in enumerate(ml):
            ka, kb = (rr, "A", p), (rr, "B", q)
            while ka not in slot or kb not in slot:
                issue(1)
            need = max(ltag[ka], ltag[kb])
            if need > waited:
                A.wait_lg(need); waited = need
            u = J.index(p + q)
            c = f"v[{Y+4*u}:{Y+4*u+3}]" if u in seen else "0"
            seen.add(u)
            A(f"v_mfma_f32_16x16x32_bf16 v[{Y+4*u}:{Y+4*u+3}], v[{slot[ka]}:{slot[ka]+3}], v[{slot[kb]}:{slot[kb]+3}], {c}")
            for key in (ka, kb):
                if last_use[key] == i:
                    free.append(slot[key])
            issue(1)
            if 2 <= i < 30 and i % 2 == 0:
                k = (i - 2) // 2
                w2read(7 + k // 2, k % 2, WR + k*8)
            if i == 33:
                A("s_waitcnt lgkmcnt(0)"); waited = A.lg
                A("s_barrier")
            if 34 <= i < 62 and (i - 34) % 4 == 0:
                w2dma((i - 34) // 4)
            if i == OPT["arr3"]:
                A.wait_vm(tag_h)
                arrive_flag(A, 3, CNT_OFF, 8)
                waited = A.lg
        A("ds_read_b128 v[8:11], v13")
        A(f"s_lshl_b32 s{T0}, s{SSH}, 1")
        A(f"s_add_u32 s{T0}, s{T0}, s{SRH}")
        A(f"s_mul_i32 s{T0}, s{T0}, {8*TS}")
        A(f"s_add_u32 s{T0}, s{T0}, {CB}")
        A("v_mul_u32_u24 v12, 544, v4")
        A("v_lshl_add_u32 v12, v7, 6, v12")
        A("v_lshl_add_u32 v12, v3, 4, v12")
        A(f"v_add_u32 v12, s{T0}, v12")
        A("s_waitcnt lgkmcnt(0)")
        A("s_barrier")
        for u, j in enumerate(J):
            A(f"ds_write_b128 v12, v[{Y+4*u}:{Y+4*u+3}] offset:{j*TS}")
    lv1 = A.label("L_cv1"); lvj = A.label("L_cvj")
    A(f"s_cmp_ge_u32 s{WV}, 4")
    A(f"s_cbranch_scc1 {lv1}")
    vm0 = A.vm
    conv_variant([0, 3, 4, 7])
    A(f"s_branch {lvj}")
    vm1 = A.vm
    A.vm = vm0
    A(f"{lv1}:")
    conv_variant([1, 2, 5, 6])
    assert A.vm == vm1
    A(f"{lvj}:")
    stamp(A, "conv_mfma_end")
    A("v_lshrrev_b32 v2, 5, v1")
    A("v_and_b32 v3, 31, v1")
    A(f"v_mul_u32_u24 v12, {TS}, v2")
    A("v_lshl_add_u32 v12, v3, 4, v12")
    A(f"s_mul_i32 s{T0}, s{SKQ}, {2*TS}")
    A(f"s_mul_i32 s{T1}, s{SSH}, {16*TS}")
    A(f"s_add_u32 s{T0}, s{T0}, s{T1}")
    A(f"s_add_u32 s{T0}, s{T0}, {CB}")
    A(f"v_add_u32 v12, s{T0}, v12")
    A(f"s_lshl_b32 s{T0}, s{SDV}, 16")
    A(f"s_and_b32 s{T1}, s{SDV}, 0xffff0000")
    A(f"s_cmp_eq_u32 s{SSH}, 1")
    A(f"s_cselect_b32 s{SDV}, s{T1}, s{T0}")
    A(f"s_and_b32 s{T0}, s{SXCD}, 3")
    A(f"s_lshl_b32 s{T0}, s{T0}, 3")
    A(f"s_lshr_b32 s{T1}, s{SXCD}, 2")
    A(f"s_lshl_b32 s{T1}, s{T1}, 2")
    A(f"s_add_u32 s{SSB}, s{T0}, s{T1}")
    A(f"s_add_u32 s{SSB}, s{SSB}, s{SIQ}")
    A(f"s_lshl_b32 s{T0}, s{SSB}, 1")
    A(f"s_add_u32 s{T0}, s{T0}, s{SSH}")
    A(f"s_mul_i32 s{T0}, s{T0}, 112")
    A(f"s_mul_i32 s{T1}, s{SKQ}, 28")
    A(f"s_add_u32 s{T0}, s{T0}, s{T1}")
    A(f"s_lshl_b32 s{T0}, s{T0}, 10")
    A(f"s_add_u32 s{SOH}, s{T0}, {WS_H}")
    ptag3 = poll_issue(A, 3, id_p3, 57)
    A("s_waitcnt lgkmcnt(0)")
    A("s_barrier")
    for src in range(2):
        for w in range(2):
            A(f"ds_read_b128 v[{64+8*src+4*w}:{67+8*src+4*w}], v12 offset:{src*8*TS + w*544}")
    A("s_waitcnt lgkmcnt(0)")
    for e in range(8):
        A(f"v_add_f32 v{64+e}, v{64+e}, v{72+e}")
    for q in range(4):
        unpack(A, 20, 21, 8 + q)
        r = 3 - q
        A(f"v_fmac_f32 v{68+r}, s{SDV}, v20")
        A(f"v_fmac_f32 v{64+r}, s{SDV}, v21")
    for r in range(4):
        A(f"v_cvt_pk_bf16_f32 v{8+r}, v{64+r}, v{68+r}")
    A(f"s_lshl_b32 s{T0}, s2, 13")
    A(f"s_lshl_b32 s{T1}, s{SSH}, 12")
    A(f"s_add_u32 s{T0}, s{T0}, s{T1}")
    A(f"s_lshl_b32 s{T1}, s{SKQ}, 10")
    A(f"s_add_u32 s{T0}, s{T0}, s{T1}")
    A(f"s_add_u32 s{T0}, s{T0}, {WS_ZT}")
    A(f"buffer_store_dwordx4 v[8:11], v{VHL}, {srd(WS)}, s{T0} offen sc1")
    stamp(A, "conv_end")
    A.wait_vm(w2tag[6])
    poll_check(A, 57, ptag3)
    A("s_barrier")
    stamp(A, "g2_go")
    HS = list(range(96, 128, 4)) + list(range(32, 48, 4)) + [240, 244, 248, 252]
    NH = len(HS)
    htag = {}
    def hload(lu):
        k2(lu, T3)
        A(f"s_lshl_b32 s{T3}, s{T3}, 11")
        A(f"s_add_u32 s{T3}, s{T3}, s{SOH}")
        for tl in range(2):
            r = HS[(lu*2 + tl) % NH]
            A(f"buffer_load_dwordx4 v[{r}:{r+3}], v{VHL}, {srd(WS)}, s{T3} offen offset:{tl*1024} sc1")
            htag[lu*2 + tl] = A.vm_tag()
    for lu in range(NH // 2):
        hload(lu)
        if lu == 1 and OPT["hbar"]: A("s_barrier")
    A("v_lshrrev_b32 v8, 3, v1")
    A("v_and_b32 v11, 7, v1")
    A(f"s_lshl_b32 s{T0}, s{SSB}, 6")
    A(f"s_lshl_b32 s{T1}, s{SSH}, 5")
    A(f"s_add_u32 s{T0}, s{T0}, s{T1}")
    A(f"s_lshl_b32 s{T1}, s{SKQ}, 3")
    A(f"s_add_u32 s{T0}, s{T0}, s{T1}")
    A(f"v_add_u32 v9, s{T0}, v8")
    A("v_mul_u32_u24 v10, 896, v9")
    A("v_lshl_add_u32 v3, v11, 4, v10")
    A("v_lshlrev_b32 v5, 3, v9")
    A("v_lshrrev_b32 v9, 3, v0")
    A("v_lshlrev_b32 v9, 12, v9")
    A("v_lshl_add_u32 v4, v11, 4, v9")
    SNB = 53
    A(f"s_lshl_b32 s{SNB}, s{SJR}, 7")
    FR2 = [16, 24]
    ACC2 = 64
    XR, STT2, ZR = 16, 20, 24
    w2read(0, 0, FR2[0]); tag = A.lg_tag()
    fs = 0
    for t in range(28):
        if t < 13:
            w2read((t + 1) // 2, (t + 1) % 2, FR2[fs ^ 1]); ntag = A.lg_tag()
        if t < 14:
            A.wait_lg(tag)
            wb = FR2[fs]
        else:
            wb = WR + (t - 14)*8
        A.wait_vm(htag[t])
        if t == 0:
            stamp(A, "g2_first")
        h = HS[t % NH]
        for dt in range(2):
            a = ACC2 + 16*dt
            c = "0" if t == 0 else f"v[{a}:{a+15}]"
            A(f"v_mfma_f32_32x32x16_bf16 v[{a}:{a+15}], v[{wb+4*dt}:{wb+4*dt+3}], v[{h}:{h+3}], {c}")
        if t % 2 == 1 and (t + 1)//2 - 1 + NH//2 < 14:
            hload((t + 1)//2 - 1 + NH//2)
        if t == 0:
            arrive_flag(A, 4, CNT_OFF + 4, 12)
        if t == 11:
            ptag4 = poll_issue(A, 4, id_p4, 57)
        if t == 15:
            poll_check(A, 57, ptag4)
            A("s_barrier")
            A(f"buffer_load_dwordx4 v[{XR}:{XR+3}], v3, {srd(Q)}, s{SNB} offen")
            A(f"s_mov_b32 s{T0}, {WS_STATS}")
            A(f"buffer_load_dwordx2 v[{STT2}:{STT2+1}], v5, {srd(WS)}, s{T0} offen sc1")
            A(f"s_lshl_b32 s{T0}, s{SJR}, 18")
            A(f"s_lshl_b32 s{T1}, s{SSB}, 7")
            A(f"s_add_u32 s{T0}, s{T0}, s{T1}")
            A(f"s_add_u32 s{T0}, s{T0}, {WS_ZT}")
            A(f"buffer_load_dwordx4 v[{ZR}:{ZR+3}], v4, {srd(WS)}, s{T0} offen sc1")
            tagZ = A.vm_tag()
        tag = ntag
        fs ^= 1
    stamp(A, "g2_mfma_end")
    A("v_and_b32 v9, 31, v1")
    A("v_lshrrev_b32 v10, 5, v1")
    A("v_lshlrev_b32 v10, 2, v10")
    A("v_xor_b32 v10, v10, v11")
    A(f"s_lshl_b32 s{T0}, s{WV}, 13")
    A(f"v_lshl_add_u32 v9, v9, 8, s{T0}")
    for rho in range(4):
        A(f"v_xor_b32 v12, {rho}, v10")
        A(f"v_lshl_add_u32 v{32+rho}, v12, 4, v9")
    for dt in range(2):
        for rho in range(4):
            a = ACC2 + 16*dt + 4*rho
            A(f"ds_write_b128 v{32+rho}, v[{a}:{a+3}] offset:{dt*128}")
    A(f"v_xor_b32 v10, s{WV}, v11")
    A("v_lshlrev_b32 v10, 4, v10")
    A("v_lshl_add_u32 v10, v11, 10, v10")
    A("v_lshl_add_u32 v10, v8, 1, v10")
    A(f"v_add_u32 v10, {ZB}, v10")
    A.wait_vm(tagZ)
    for e in range(8):
        op = "ds_write_b16" if e % 2 == 0 else "ds_write_b16_d16_hi"
        A(f"{op} v10, v{ZR + e//2} offset:{e*128}")
    A(f"s_lshl_b32 s{T0}, s{SKQ}, 3")
    A(f"v_add_u32 v9, s{T0}, v8")
    A("v_lshlrev_b32 v10, 1, v11")
    A("v_xor_b32 v10, v10, v8")
    A("v_lshlrev_b32 v9, 8, v9")
    A(f"s_lshl_b32 s{T0}, s{SSH}, 13")
    A(f"v_add_u32 v9, s{T0}, v9")
    A("v_lshl_add_u32 v12, v10, 4, v9")
    A("v_xor_b32 v10, 1, v10")
    A("v_lshl_add_u32 v13, v10, 4, v9")
    A(f"s_lshl_b32 s{T0}, s{SSH}, 2")
    A(f"s_add_u32 s{T0}, s{T0}, s{SKQ}")
    A(f"v_xor_b32 v10, s{T0}, v11")
    A("v_lshlrev_b32 v10, 4, v10")
    A("v_lshl_add_u32 v10, v8, 7, v10")
    A(f"s_lshl_b32 s{T0}, s{T0}, 10")
    A(f"s_add_u32 s{T0}, s{T0}, {ZB}")
    A(f"v_add_u32 v10, s{T0}, v10")
    XF, TT, ZF, TP = 96, 104, 112, 120
    def rnd(base):
        for q in range(4):
            A(f"v_cvt_pk_bf16_f32 v{TP+q}, v{base+2*q}, v{base+2*q+1}")
        for q in range(4):
            unpack(A, base+2*q, base+2*q+1, TP+q)
    for q in range(4):
        unpack(A, XF+2*q, XF+2*q+1, XR+q)
    for e in range(8):
        A(f"v_sub_f32 v{TT+e}, v{XF+e}, v{STT2}")
    rnd(TT)
    for e in range(8):
        A(f"v_mul_f32 v{TT+e}, v{TT+e}, v{STT2+1}")
    rnd(TT)
    A("s_waitcnt lgkmcnt(0)")
    A("s_barrier")
    A(f"ds_read_b128 v[{ZR}:{ZR+3}], v10")
    P = 128
    for src in range(4):
        for hf in range(2):
            A(f"ds_read_b128 v[{P+8*src+4*hf}:{P+8*src+4*hf+3}], v{12+hf} offset:{src*16384}")
    A("s_waitcnt lgkmcnt(8)")
    for q in range(4):
        unpack(A, ZF+2*q, ZF+2*q+1, ZR+q)
    for e in range(8):
        A(f"v_mul_f32 v{TT+e}, v{TT+e}, v{ZF+e}")
    rnd(TT)
    for e in range(8):
        A(f"v_add_f32 v{TT+e}, v{TT+e}, v{XF+e}")
    rnd(TT)
    A("s_waitcnt lgkmcnt(0)")
    for e in range(8):
        A(f"v_add_f32 v{P+e}, v{P+e}, v{P+8+e}")
        A(f"v_add_f32 v{P+16+e}, v{P+16+e}, v{P+24+e}")
    for e in range(8):
        A(f"v_add_f32 v{P+e}, v{P+e}, v{P+16+e}")
    rnd(P)
    for e in range(8):
        A(f"v_add_f32 v{P+e}, v{P+e}, v{TT+e}")
    for q in range(4):
        A(f"v_cvt_pk_bf16_f32 v{TP+q}, v{P+2*q}, v{P+2*q+1}")
    A(f"buffer_store_dwordx4 v[{TP}:{TP+3}], v3, {srd(OUT)}, s{SNB} offen")
    stamp(A, "end")

def build():
    name = NAME + "_kernel"
    out = [f"; @launch grid=(256,1,1) block=(512,1,1) lds=163840"]
    out.append('.amdgcn_target "amdgcn-amd-amdhsa--gfx950"')
    out.append(".text")
    A = Asm()
    A(f".globl {name}"); A(".p2align 8"); A(f".type {name},@function"); A(f"{name}:")
    prologue(A, 256, "L_exit")
    A("s_cmp_ge_u32 s2, 224")
    A("s_cbranch_scc1 L_free")
    busy_path(A)
    stamp_dump(A)
    A("s_endpgm")
    A("L_free:")
    free_path(A)
    A("L_exit:")
    A("s_endpgm")
    A("L_codeend:")
    out.append(A.text())
    out.append('.section .rodata,"a"')
    out.append(".p2align 6")
    out.append(kd(name))
    return "\n".join(out)

if __name__ == "__main__":
    for a in sys.argv[2:]:
        k, v = a.split("=")
        OPT[k] = int(v)
    open(sys.argv[1], "w").write(build())
    if OPT["prof"]:
        open(sys.argv[1] + ".names", "w").write(",".join(Ctx.names))
```

```python
import sys, struct
from asmlib import *
NAME = "parallel_sum__ssm_conv_h3__glu_gated_swiglu__prompt"
S, D, F = 2048, 448, 1792
WS_KVR = 0
WS_H = 2 << 20
WS_ZT = 10 << 20
WS_STATS = 12 << 20
WS_CS = (12 << 20) + (64 << 10)
WS_FLAG = 13 << 20
WS_PROF = 14 << 20
WS_W2T = 16 << 20
WS_SIZE = 18 << 20
Q, Kb, Vb, SSMK, W13, W2, OUT, WS, SHK = 4, 8, 12, 16, 20, 24, 28, 32, 40
SD, SW3, WV = 44, 46, 3
SXCD, SIDX, SIQ, SJR = 48, 49, 50, 51
SI, SJ, SOX, SOW, SMX, SMW, SC = 52, 53, 55, 56, 57, 58, 47
SSB, SOH, SOW2, SKQ, SSH, SDV, SNB = 54, 59, 63, 60, 61, 62, 53
T0, T1, T2, T3, T4, T5 = 64, 65, 66, 67, 68, 69
SPOLL, STAG, STAMP0 = 70, 71, 72
OPT = dict(prof=0, codepf=1, ftouch=1, prio=1, rot2=1, csf=29, kvl=10, kvc=30, ko=2, sto=44, f2=4, pwi=62, pwc=74, nw2=14, p1i=80, p1c=91, p2i=104, p2c=200, vper=5, pkhi=0, ar0=44, tz=12, tzw=22)
def srd(x): return f"s[{x}:{x+3}]"
def f2u(x): return struct.unpack("<I", struct.pack("<f", x))[0]
class Ctx: nstamp = 0; names = []
class nocount:
    def __init__(self, A): self.A = A
    def __enter__(self): self.v = (self.A.vm, self.A.vm_lo, self.A.vm_hi)
    def __exit__(self, *a): self.A.vm, self.A.vm_lo, self.A.vm_hi = self.v
def stamp(A, name, *lv):
    if OPT["prof"] and OPT["prof"] in lv:
        r = STAMP0 + 2*Ctx.nstamp
        assert r + 1 < 102, "too many stamps"
        A(f"s_memtime s[{r}:{r+1}]")
        Ctx.nstamp += 1; Ctx.names.append(name)
def stamp_dump(A):
    if not OPT["prof"]: return
    A("s_waitcnt lgkmcnt(0)")
    A("s_memrealtime s[64:65]"); A("s_memtime s[66:67]")
    A("s_lshl_b32 s68, s2, 3"); A(f"s_add_u32 s68, s68, s{WV}"); A("s_lshl_b32 s68, s68, 7"); A(f"s_add_u32 s68, s68, {WS_PROF}")
    A("s_waitcnt lgkmcnt(0)")
    A("v_mov_b32 v2, 0")
    A(f"s_mov_b32 s{STAMP0}, s36")
    for sreg, off in [(64, 0), (66, 4), (38, 124)] + [(STAMP0 + 2*q, 8 + 4*q) for q in range(Ctx.nstamp)]:
        A(f"v_mov_b32 v3, s{sreg}")
        A(f"buffer_store_dword v3, v2, {srd(WS)}, s68 offen offset:{off}")
def div7(A, dst, src):
    A(f"s_mul_i32 s{dst}, s{src}, 37"); A(f"s_lshr_b32 s{dst}, s{dst}, 8")
def unpack(A, lo, hi, src):
    A(f"v_lshlrev_b32 v{lo}, 16, v{src}"); A(f"v_and_b32 v{hi}, 0xffff0000, v{src}")
def allreduce32(A, v, t):
    for m in ("quad_perm:[1,0,3,2]", "quad_perm:[2,3,0,1]", "row_half_mirror", "row_mirror"):
        A(f"v_add_f32_dpp v{v}, v{v}, v{v} {m} row_mask:0xf bank_mask:0xf")
    A(f"v_mov_b32 v{t}, v{v}")
    A(f"v_permlane16_swap_b32 v{t}, v{v}")
    A(f"v_add_f32 v{v}, v{v}, v{t}")
def round_bf16(A, dst, src):
    A(f"v_cvt_pk_bf16_f32 v{dst}, v{src}, v{src}"); A(f"v_and_b32 v{dst}, 0xffff0000, v{dst}")

def flag_store(A, val, vt):
    A(f"v_mov_b32 v{vt}, s{STAG}")
    A(f"s_lshl_b32 s{T0}, s2, 7")
    A(f"s_add_u32 s{T0}, s{T0}, {WS_FLAG + val*32768}")
    A(f"v_mov_b32 v{vt+1}, s{T0}")
    A("s_mov_b64 exec, 1")
    A(f"buffer_store_dword v{vt}, v{vt+1}, {srd(WS)}, 0 offen sc1")
    A("s_mov_b64 exec, -1")
def set_flag(A, val, vt):
    lab = A.label("L_nf")
    with nocount(A):
        A(f"s_cmp_lg_u32 s{WV}, 0"); A(f"s_cbranch_scc1 {lab}")
        flag_store(A, val, vt)
        A(f"{lab}:")
def arrive_flag(A, val, cnt_addr, vt):
    lab = A.label("L_na")
    with nocount(A):
        A(f"v_mov_b32 v{vt}, {cnt_addr}"); A(f"v_mov_b32 v{vt+1}, 1")
        A("s_mov_b64 exec, 1")
        A(f"ds_add_rtn_u32 v{vt+1}, v{vt}, v{vt+1}")
        A("s_mov_b64 exec, -1")
        A("s_waitcnt lgkmcnt(0)")
        A(f"v_readfirstlane_b32 s{T0}, v{vt+1}")
        A(f"s_cmp_lg_u32 s{T0}, 7"); A(f"s_cbranch_scc1 {lab}")
        flag_store(A, val, vt)
        A(f"{lab}:")
def poll_issue(A, phase, mkid, vt):
    mkid(A, vt + 1)
    A(f"v_lshlrev_b32 v{vt+1}, 7, v{vt+1}")
    A(f"v_add_u32 v{vt+1}, {WS_FLAG + phase*32768}, v{vt+1}")
    A(f"buffer_load_dword v{vt}, v{vt+1}, {srd(WS)}, 0 offen sc1")
    return A.vm_tag()
def poll_check(A, vt, tag, sleep=0):
    lab = A.label("L_np"); loop = A.label("L_poll"); chk = A.label("L_chk")
    A(f"s_mov_b32 s{SPOLL}, 0")
    A.wait_vm(tag)
    with nocount(A):
        A(f"s_branch {chk}")
        A(f"{loop}:")
        if sleep: A(f"s_sleep {sleep}")
        A(f"buffer_load_dword v{vt}, v{vt+1}, {srd(WS)}, 0 offen sc1")
        A("s_waitcnt vmcnt(0)")
        A(f"{chk}:")
        A(f"v_cmp_ne_u32 vcc, s{STAG}, v{vt}")
        A("s_nop 1")
        A("s_cmp_eq_u64 vcc, 0")
        A(f"s_cbranch_scc1 {lab}")
        A(f"s_add_u32 s{SPOLL}, s{SPOLL}, 1")
        A(f"s_cmp_lt_u32 s{SPOLL}, 100000")
        A(f"s_cbranch_scc1 {loop}")
        A(f"{lab}:")
def load_epoch(A):
    A(f"s_mov_b32 s{SPOLL}, {WS_FLAG}")
    A(f"s_load_dword s{STAG}, s[{WS}:{WS+1}], s{SPOLL}")
def fix_epoch(A):
    A(f"s_add_u32 s{STAG}, s{STAG}, 0x9e3779b9")
def only(A, cond, fn):
    l = A.label("L_o")
    A(f"s_cmp_ge_u32 s{WV}, 4")
    A(f"s_cbranch_scc{'1' if cond == 'lo' else '0'} {l}")
    A.role = cond; lg = A.lg
    fn()
    A.role = None
    A(f"{l}:")

def prologue(A):
    if OPT["prof"]:
        A("s_memtime s[36:37]"); A("s_memrealtime s[38:39]")
        Ctx.nstamp = 1; Ctx.names.append("start")
    A("s_cmp_ge_u32 s2, 256"); A("s_cbranch_scc1 L_exit")
    A("s_load_dwordx16 s[72:87], s[0:1], 0")
    A("s_load_dwordx8 s[88:95], s[0:1], 64")
    A(f"s_load_dwordx2 s[{WS}:{WS+1}], s[0:1], 96")
    A("v_and_b32 v1, 63, v0")
    A("v_lshrrev_b32 v2, 6, v0")
    A(f"v_readfirstlane_b32 s{WV}, v2")
    for reg, size in ((Q, S*D*2), (Kb, S*D*2), (Vb, S*D*2), (SHK, D*8), (SSMK, D*S*2), (W13, D*F*2), (W2, F*D*2), (OUT, S*D*2), (WS, WS_SIZE)):
        A(f"s_mov_b32 s{reg+2}, {size}"); A(f"s_mov_b32 s{reg+3}, 0x00020000")
    A(f"s_and_b32 s{SXCD}, s2, 7")
    A(f"s_lshr_b32 s{SIDX}, s2, 3")
    div7(A, SIQ, SIDX)
    A(f"s_mul_i32 s{SJR}, s{SIQ}, 7")
    A(f"s_sub_u32 s{SJR}, s{SIDX}, s{SJR}")
def take_ptrs(A):
    A("s_waitcnt lgkmcnt(0)")
    for reg, slot in ((Q, 0), (W13, 7), (SW3, 8), (Kb, 1), (Vb, 2), (SHK, 3), (SSMK, 4), (SD, 5), (W2, 9), (OUT, 10)):
        A(f"s_mov_b64 s[{reg}:{reg+1}], s[{72+2*slot}:{73+2*slot}]")

def stats_addr(A, B):
    A(f"v_and_b32 v{B+2}, 31, v1")
    A(f"v_lshrrev_b32 v{B+3}, 5, v1")
    A(f"s_and_b32 s{T0}, s{SXCD}, 3"); A(f"s_lshl_b32 s{T0}, s{T0}, 9")
    A(f"s_lshr_b32 s{T1}, s{SXCD}, 2"); A(f"s_lshl_b32 s{T1}, s{T1}, 8"); A(f"s_add_u32 s{T0}, s{T0}, s{T1}")
    A(f"s_lshl_b32 s{T1}, s{SJR}, 6"); A(f"s_add_u32 s{T0}, s{T0}, s{T1}")
    A(f"s_lshl_b32 s{T1}, s{WV}, 3"); A(f"s_add_u32 s{T0}, s{T0}, s{T1}")
    A(f"v_add_u32 v{B+3}, s{T0}, v{B+3}")
    A(f"v_mul_u32_u24 v{B+4}, 896, v{B+3}")
    A(f"v_lshl_add_u32 v{B+4}, v{B+2}, 5, v{B+4}")
    A(f"v_cmp_gt_u32 vcc, 28, v{B+2}")
    A(f"v_mov_b32 v{B+5}, 0x7fffff00")
    A(f"v_cndmask_b32 v{B+4}, v{B+5}, v{B+4}, vcc")
    A(f"v_cndmask_b32 v{B+6}, 0, 1.0, vcc")
    A(f"v_lshlrev_b32 v{B+3}, 3, v{B+3}")
    A(f"v_cmp_eq_u32 vcc, 0, v{B+2}")
    A(f"v_cndmask_b32 v{B+3}, v{B+5}, v{B+3}, vcc")
def stats_load(A, B, R, it):
    A(f"s_movk_i32 s{T0}, {it*1792}")
    A(f"buffer_load_dwordx4 v[{R}:{R+3}], v{B+4}, {srd(Q)}, s{T0} offen")
    A(f"buffer_load_dwordx4 v[{R+4}:{R+7}], v{B+4}, {srd(Q)}, s{T0} offen offset:16")
def stats_compute(A, B, R, O):
    for e in range(8): unpack(A, B+16+2*e, B+17+2*e, R+e)
    A(f"v_add_f32 v{B+32}, v{B+16}, v{B+17}"); A(f"v_add_f32 v{B+33}, v{B+18}, v{B+19}")
    for e in range(4, 16): A(f"v_add_f32 v{B+32+(e&1)}, v{B+32+(e&1)}, v{B+16+e}")
    A(f"v_add_f32 v{B+32}, v{B+32}, v{B+33}")
    allreduce32(A, B+32, B+33)
    A(f"v_mul_f32 v{B+32}, {hex(f2u(1.0/448))}, v{B+32}")
    for e in range(16): A(f"v_sub_f32 v{B+16+e}, v{B+16+e}, v{B+32}")
    A(f"v_mul_f32 v{B+34}, v{B+16}, v{B+16}"); A(f"v_mul_f32 v{B+35}, v{B+17}, v{B+17}")
    for e in range(2, 16): A(f"v_fmac_f32 v{B+34+(e&1)}, v{B+16+e}, v{B+16+e}")
    A(f"v_add_f32 v{B+34}, v{B+34}, v{B+35}")
    A(f"v_mul_f32 v{B+34}, v{B+34}, v{B+6}")
    allreduce32(A, B+34, B+33)
    A(f"v_mul_f32 v{B+34}, {hex(f2u(1.0/448))}, v{B+34}")
    round_bf16(A, B+34, B+34)
    A(f"v_add_f32 v{B+34}, {hex(f2u(1e-5))}, v{B+34}")
    round_bf16(A, B+34, B+34)
    A(f"v_sqrt_f32 v{B+34}, v{B+34}")
    round_bf16(A, B+34, B+34)
    A(f"v_rcp_f32 v{O+1}, v{B+34}")
    round_bf16(A, O, B+32)

def free_path(A):
    B = 180
    lab_nw = A.label("L_fw"); lab_nw2 = A.label("L_fw")
    stats_addr(A, B)
    A(f"s_sub_u32 s{T2}, s2, 224")
    A("v_lshrrev_b32 v2, 3, v1"); A("v_and_b32 v3, 7, v1")
    A("v_bfe_u32 v4, v1, 4, 1"); A("v_lshlrev_b32 v4, 2, v4"); A("v_xor_b32 v3, v3, v4")
    A("v_mul_u32_u24 v6, 896, v2"); A("v_lshl_add_u32 v6, v3, 4, v6")
    A(f"s_mul_i32 s{SOH}, s{T2}, {64*896}"); A(f"s_lshl_b32 s{T5}, s{WV}, 7"); A(f"s_add_u32 s{SOH}, s{SOH}, s{T5}")
    A(f"s_mul_i32 s{SKQ}, s{WV}, 224"); A(f"s_lshl_b32 s{T4}, s{T2}, 2"); A(f"s_add_u32 s{SKQ}, s{SKQ}, s{T4}")
    A(f"s_lshl_b32 s{SKQ}, s{SKQ}, 10"); A(f"s_add_u32 s{SKQ}, s{SKQ}, {WS_W2T}")
    A(f"s_lshl_b32 s{SMX}, s{WV}, 13")
    A(f"s_cmp_lt_u32 s{T2}, 28"); A(f"s_cselect_b32 s{SI}, 7, 0")
    take_ptrs(A)
    stamp(A, "f_kernarg", 6)
    load_epoch(A)
    A(f"s_cmp_ge_u32 s{WV}, s{SI}"); A(f"s_cbranch_scc1 {lab_nw}")
    for e in range(8):
        A(f"s_add_u32 s{T0}, s{SOH}, {e*8*896}")
        A(f"s_add_u32 m0, s{SMX}, {e*1024}")
        A(f"buffer_load_dwordx4 v6, {srd(W2)}, s{T0} offen lds")
    A(f"s_branch {lab_nw2}")
    A(f"{lab_nw}:")
    if OPT["codepf"]:
        A(f"s_getpc_b64 s[{T2}:{T3}]")
        A("L_pc:")
        A(f"s_sub_u32 s{T2}, s{T2}, L_pc-{NAME}_kernel")
        A(f"s_subb_u32 s{T3}, s{T3}, 0")
        for k in range(3):
            A(f"v_lshlrev_b32 v2, 7, v1"); A(f"v_add_u32 v2, {k*8192}, v2")
            A(f"v_min_u32 v2, L_codeend-{NAME}_kernel-4, v2")
            A(f"global_load_dword v{250+k}, v2, s[{T2}:{T3}]")
    A(f"{lab_nw2}:")
    A("v_lshrrev_b32 v8, 5, v1"); A("v_lshlrev_b32 v8, 10, v8")
    A("v_bfe_u32 v9, v1, 2, 2"); A("v_lshl_add_u32 v8, v9, 7, v8")
    A("v_and_b32 v9, 1, v1"); A("v_lshl_add_u32 v8, v9, 5, v8")
    A("v_bfe_u32 v9, v1, 4, 1"); A("v_lshl_add_u32 v8, v9, 4, v8")
    A("v_bfe_u32 v9, v1, 1, 1"); A("v_lshl_add_u32 v8, v9, 3, v8")
    A(f"v_add_u32 v8, s{SMX}, v8")
    A("v_bfe_u32 v9, v1, 3, 1"); A("v_xor_b32 v10, 1, v9")
    A("v_lshl_add_u32 v11, v10, 6, v8"); A("v_lshl_add_u32 v10, v9, 6, v8")
    A("v_lshlrev_b32 v9, 4, v1")
    A("s_waitcnt vmcnt(0)")
    stamp(A, "f_w2landed", 6)
    lab3 = A.label("L_fw")
    A(f"s_cmp_ge_u32 s{WV}, s{SI}"); A(f"s_cbranch_scc1 {lab3}")
    for dt in range(2):
        for e in range(4):
            for sec in range(2):
                r = 128 + 16*dt + 4*e + 2*sec
                A(f"ds_read_b64_tr_b16 v[{r}:{r+1}], v{10+dt} offset:{e*2048 + sec*512}")
    A("s_waitcnt lgkmcnt(0)")
    A(f"s_add_u32 s{T0}, s{SKQ}, {112*1024}")
    for dt in range(2):
        for e in range(4):
            r = 128 + 16*dt + 4*e
            A(f"buffer_store_dwordx4 v[{r}:{r+3}], v9, {srd(WS)}, s{T0 if dt else SKQ} offen offset:{e*1024} sc1")
    A(f"{lab3}:")
    A("s_barrier")
    for it in range(4): stats_load(A, B, 64 + 8*it, it)
    A("s_waitcnt vmcnt(8) lgkmcnt(0)")
    fix_epoch(A)
    A("s_barrier")
    stamp(A, "f_flagw", 6)
    set_flag(A, 1, 2)
    A(f"s_mov_b32 s{T4}, {WS_STATS}")
    A("s_waitcnt vmcnt(0)")
    stamp(A, "f_xlanded", 6)
    A("L_stat:")
    stats_compute(A, B, 64, 100)
    A(f"buffer_store_dwordx2 v[100:101], v{B+3}, {srd(WS)}, s{T4} offen sc1")
    for e in range(24): A(f"v_mov_b32 v{64+e}, v{72+e}")
    A(f"s_add_u32 s{T4}, s{T4}, 16")
    A(f"s_cmp_lt_u32 s{T4}, {WS_STATS + 64}"); A("s_cbranch_scc1 L_stat")
    A("s_waitcnt vmcnt(0)")
    A("s_barrier")
    stamp(A, "f_flags", 6)
    lab = A.label("L_nf")
    A(f"s_cmp_lg_u32 s{WV}, 0"); A(f"s_cbranch_scc1 {lab}")
    A(f"s_add_u32 s{T0}, s2, 224"); A(f"s_lshl_b32 s{T0}, s{T0}, 7"); A(f"s_add_u32 s{T0}, s{T0}, {WS_FLAG + 8*32768}")
    A(f"v_mov_b32 v2, s{STAG}"); A(f"v_mov_b32 v3, s{T0}")
    A("s_mov_b64 exec, 1")
    A(f"buffer_store_dword v2, v3, {srd(WS)}, 0 offen sc1")
    A("s_mov_b64 exec, -1")
    A(f"{lab}:")
    if OPT["prof"] == 6: stamp_dump(A)
    if OPT["ftouch"]:
        A(f"s_sub_u32 s{T0}, s2, 224")
        A("v_lshlrev_b32 v6, 7, v0")
        A(f"s_mul_i32 s{T1}, s{T0}, {D*S*2//32}")
        A("v_cmp_gt_u32 vcc, 448, v0")
        A("v_mov_b32 v7, 0x7fffff00"); A("v_cndmask_b32 v7, v7, v6, vcc")
        A(f"buffer_load_dword v251, v7, {srd(SSMK)}, s{T1} offen")
    A("s_cmp_lg_u32 s2, 255"); A("s_cbranch_scc1 L_exit")
    def idall(A, v):
        A(f"v_and_b32 v{v}, 255, v0"); A(f"v_cmp_gt_u32 vcc, 224, v{v}")
        A(f"v_cndmask_b32 v{v+1}, 0, 1, vcc"); A(f"v_mul_u32_u24 v{v+1}, 768, v{v+1}"); A(f"v_add_u32 v{v}, v{v}, v{v+1}")
    A("s_sleep 100")
    tg = poll_issue(A, 1, idall, 2)
    poll_check(A, 2, tg, sleep=40)
    A("s_barrier")
    A(f"s_cmp_lg_u32 s{WV}, 0"); A("s_cbranch_scc1 L_exit")
    A(f"v_mov_b32 v2, {WS_FLAG}"); A(f"v_mov_b32 v3, s{STAG}")
    A("s_mov_b64 exec, 1")
    A(f"buffer_store_dword v3, v2, {srd(WS)}, 0 offen sc1")

class Jobs:
    def __init__(self): self.q = []; self.cur = None
    def add(self, start, gen): self.q.append((start, len(self.q), gen)); self.q.sort(key=lambda x: x[:2])
    def step(self, now, n=1):
        for _ in range(n):
            while True:
                if self.cur is None:
                    if not self.q or self.q[0][0] > now: return
                    self.cur = self.q.pop(0)[2]()
                try:
                    next(self.cur); break
                except StopIteration:
                    self.cur = None
    def flush(self, now):
        while self.cur is not None or (self.q and self.q[0][0] <= now): self.step(now)
def lines(A, ls, n=4):
    for i, l in enumerate(ls):
        A(l)
        if i % n == n - 1: yield
    yield
def atom(fn):
    def g():
        fn(); yield
    return g

RB, RS, R1D = 16384, 9216, 4640
CNT_OFF = RB + 2*RS
CX, ZB = 49152, 118784
HBC, HS_, HCP = 127056, 16720, 4160
KB, VB = 147456, 155648
X2 = 49152
WR = 128
VHL, VP = 56, 57
WS_CSP = WS_CS

def busy_path(A):
    PB = 128
    A(f"s_and_b32 s{T0}, s{SXCD}, 3"); A(f"s_lshl_b32 s{T0}, s{T0}, 2"); A(f"s_add_u32 s{SI}, s{T0}, s{SIQ}")
    A(f"s_lshr_b32 s{T0}, s{SXCD}, 2"); A(f"s_mul_i32 s{T0}, s{T0}, 7"); A(f"s_add_u32 s{SJ}, s{T0}, s{SJR}")
    A(f"s_and_b32 s{T2}, s{WV}, 4")
    A(f"s_lshl_b32 s{T0}, s{SI}, 7"); A(f"s_lshl_b32 s{T1}, s{WV}, 4"); A(f"s_add_u32 s{T0}, s{T0}, s{T1}")
    A(f"s_mul_i32 s{SOX}, s{T0}, 896")
    A(f"s_and_b32 s{T0}, s{WV}, 3")
    A(f"s_mul_i32 s{SOW}, s{T0}, {16*3584}"); A(f"s_lshl_b32 s{T1}, s{SJ}, 8"); A(f"s_add_u32 s{SOW}, s{SOW}, s{T1}")
    A(f"s_lshl_b32 s{SMX}, s{WV}, 11")
    A(f"s_lshl_b32 s{SMW}, s{T0}, 12"); A(f"s_mul_i32 s{T1}, s{T2}, {49152//4}")
    A(f"s_add_u32 s{SMW}, s{SMW}, s{T1}"); A(f"s_add_u32 s{SMW}, s{SMW}, 49152")
    VX, VW = 2, 4
    A("v_lshrrev_b32 v8, 3, v1"); A("v_and_b32 v9, 7, v1")
    A("v_lshrrev_b32 v10, 1, v8"); A("v_xor_b32 v10, v9, v10")
    A("v_mul_u32_u24 v11, 896, v8")
    A(f"v_lshl_add_u32 v{VX}, v10, 4, v11")
    A("v_xor_b32 v10, 4, v10")
    A(f"v_lshl_add_u32 v{VX+1}, v10, 4, v11")
    A(f"v_add_u32 v{VX+1}, {8*896-1024}, v{VX+1}")
    A("v_lshrrev_b32 v8, 4, v1"); A("v_bfe_u32 v9, v1, 1, 3")
    A("v_xor_b32 v9, v9, v8"); A(f"v_xor_b32 v9, s{T2}, v9")
    A("v_and_b32 v10, 1, v1"); A("v_lshlrev_b32 v10, 4, v10"); A("v_lshl_add_u32 v10, v9, 5, v10")
    A("v_mul_u32_u24 v11, 3584, v8")
    A(f"v_add_u32 v{VW}, v10, v11")
    for e in range(1, 4): A(f"v_add_u32 v{VW+e}, {e*(14336-1024)}, v{VW}")
    tg = {}
    take_ptrs(A)
    A(f"s_cmp_ge_u32 s{WV}, 4")
    A(f"s_cselect_b32 s{W13}, s{SW3}, s{W13}"); A(f"s_cselect_b32 s{W13+1}, s{SW3+1}, s{W13+1}")
    A(f"s_and_b32 s{SC}, s{SXCD}, 3"); A(f"s_lshl_b32 s{SC}, s{SC}, 1")
    if OPT["rot2"]:
        A(f"s_and_b32 s{T0}, s{SIQ}, 1"); A(f"s_add_u32 s{SC}, s{SC}, s{T0}")
        A(f"s_cmp_eq_u32 s{SC}, 7"); A(f"s_cselect_b32 s{SC}, 0, s{SC}")
    stamp(A, "kernarg", 5)
    load_epoch(A)
    dma_tag = {}
    def dma_parts(stage):
        slot = stage % 3
        def pw(lo):
            A(f"s_mul_i32 s{T5}, s{SC}, {64*3584}"); A(f"s_add_u32 s{T5}, s{T5}, s{SOW}")
            A(f"s_add_u32 m0, s{SMW}, {slot*16384}")
            for e in range(lo, lo + 2):
                A(f"buffer_load_dwordx4 v{VW+e}, {srd(W13)}, s{T5} offen offset:{e*1024} lds")
        def px():
            A(f"s_lshl_b32 s{T5}, s{SC}, 7"); A(f"s_add_u32 s{T5}, s{T5}, s{SOX}")
            A(f"s_add_u32 m0, s{SMX}, {slot*16384}")
            for e in range(2):
                A(f"buffer_load_dwordx4 v{VX+e}, {srd(Q)}, s{T5} offen offset:{e*1024} lds")
            dma_tag[stage] = A.vm_tag()
            A(f"s_add_u32 s{SC}, s{SC}, 1"); A(f"s_cmp_ge_u32 s{SC}, 7"); A(f"s_cselect_b32 s{SC}, 0, s{SC}")
        return [lambda: pw(0), lambda: pw(2), px]
    def dma(stage):
        for p in dma_parts(stage): p()
    dma(0)
    stamp(A, "dma0_issued", 5)
    XA, WA = 8, 12
    SCS = 46
    A(f"s_and_b32 s{SSH}, s{WV}, 1"); A(f"s_lshr_b32 s{SKQ}, s{WV}, 1")
    A("v_and_b32 v14, 31, v1"); A("v_lshrrev_b32 v15, 5, v1")
    A("v_bfe_u32 v16, v1, 1, 3"); A("v_xor_b32 v16, v16, v15")
    A(f"s_lshl_b32 s{T0}, s{SSH}, 13")
    A(f"v_lshl_add_u32 v17, v14, 7, s{T0}")
    for ks in range(4):
        A(f"v_xor_b32 v18, {2*ks}, v16"); A(f"v_lshl_add_u32 v{XA+ks}, v18, 4, v17")
    A("v_bfe_u32 v16, v1, 4, 1"); A("v_bfe_u32 v17, v1, 2, 2")
    A("v_lshl_add_u32 v18, v15, 3, v17")
    A("v_lshlrev_b32 v18, 8, v18")
    A("v_mul_u32_u24 v19, 49152, v16"); A("v_add_u32 v18, v18, v19"); A("v_add_u32 v18, 49152, v18")
    A("v_and_b32 v19, 1, v1"); A("v_lshlrev_b32 v19, 4, v19")
    A("v_bfe_u32 v20, v1, 1, 1")
    A("v_lshl_add_u32 v19, v20, 3, v19"); A("v_add_u32 v18, v18, v19")
    A("v_lshlrev_b32 v16, 2, v16"); A("v_xor_b32 v16, v16, v17")
    A(f"s_lshl_b32 s{T0}, s{SKQ}, 1"); A(f"v_xor_b32 v16, s{T0}, v16")
    A(f"v_lshl_add_u32 v{WA}, v16, 5, v18")
    A("v_xor_b32 v16, 1, v16")
    A(f"v_lshl_add_u32 v{WA+1}, v16, 5, v18")
    A(f"v_lshlrev_b32 v{VHL}, 4, v1")
    A(f"s_and_b32 s{T0}, s{SXCD}, 3"); A(f"s_lshl_b32 s{T0}, s{T0}, 3")
    A(f"s_and_b32 s{T1}, s{SXCD}, 4"); A(f"s_add_u32 s{SSB}, s{T0}, s{T1}"); A(f"s_add_u32 s{SSB}, s{SSB}, s{SIQ}")
    A(f"s_mul_i32 s{T1}, s{SKQ}, 28")
    A(f"s_lshl_b32 s{T0}, s{SSB}, 1"); A(f"s_add_u32 s{T0}, s{T0}, s{SSH}"); A(f"s_mul_i32 s{T0}, s{T0}, 112")
    A(f"s_add_u32 s{T0}, s{T0}, s{T1}"); A(f"s_lshl_b32 s{T0}, s{T0}, 10"); A(f"s_add_u32 s{SOH}, s{T0}, {WS_H}")
    A(f"s_lshl_b32 s{T0}, s{SJR}, 1"); A(f"s_add_u32 s{T0}, s{T0}, s{SSH}"); A(f"s_mul_i32 s{T0}, s{T0}, 112")
    A(f"s_add_u32 s{T0}, s{T0}, s{T1}"); A(f"s_lshl_b32 s{T0}, s{T0}, 10"); A(f"s_add_u32 s{SOW2}, s{T0}, {WS_W2T}")
    A(f"s_lshl_b32 s{T0}, s{SSH}, 1"); A(f"s_or_b32 s{SCS}, s{T0}, s{SIQ}")
    ONES, CACC = 204, 208
    A(f"s_and_b32 s{T0}, s{SXCD}, 3"); A(f"s_lshl_b32 s{T0}, s{T0}, 1"); A(f"s_add_u32 s{T0}, s{T0}, s{SIQ}")
    A(f"s_cmp_eq_u32 s{T0}, 7"); A(f"s_cselect_b32 s{T0}, 0, 0x3f803f80")
    for r in range(4): A(f"v_mov_b32 v{ONES+r}, s{T0}")
    A("s_waitcnt lgkmcnt(0)")
    fix_epoch(A)
    stamp(A, "setup_done", 1, 5)
    A("s_barrier")
    dma(1)
    stamp(A, "dma1_issued", 5)
    FR = [16, 32]
    ACC = 64
    def reads(stage, ks, fs):
        slot = stage % 3; b = FR[fs]
        for tt in range(2):
            for sec in range(2):
                A(f"ds_read_b64_tr_b16 v[{b+8+4*tt+2*sec}:{b+9+4*tt+2*sec}], v{WA+tt} offset:{slot*16384 + ks*4096 + sec*1024}")
        for nt in range(2):
            A(f"ds_read_b128 v[{b+4*nt}:{b+4*nt+3}], v{XA+ks} offset:{slot*16384 + nt*4096}")
        return A.lg_tag()
    KF, KRW, VRW, VF, WRW, WF, O, PK, KA = PB+4, PB+16, PB+20, PB+24, PB+32, PB+34, PB+38, PB+48, PB+52
    def kv_dma():
        yield from lines(A, [
            f"s_mul_i32 s{T0}, s2, 9363", f"s_lshr_b32 s{T0}, s{T0}, 16",
            f"s_mul_i32 s{T1}, s{T0}, 7", f"s_sub_u32 s{T1}, s2, s{T1}",
            f"s_lshl_b32 s{T2}, s{T0}, 3", f"s_add_u32 s{T2}, s{T2}, s{WV}",
            f"s_mul_i32 s{T2}, s{T2}, {8*896}", f"s_lshl_b32 s{T3}, s{T1}, 7", f"s_add_u32 s{T2}, s{T2}, s{T3}",
            "v_lshrrev_b32 v50, 3, v1", "v_and_b32 v49, 7, v1",
            "v_mul_u32_u24 v48, 896, v50", "v_lshl_add_u32 v48, v49, 4, v48",
            f"s_lshl_b32 s{T3}, s{WV}, 10"], 5)
        A(f"s_add_u32 m0, s{T3}, {KB}")
        A(f"buffer_load_dwordx4 v48, {srd(Kb)}, s{T2} offen lds")
        A(f"s_add_u32 m0, s{T3}, {VB}")
        A(f"buffer_load_dwordx4 v48, {srd(Vb)}, s{T2} offen lds")
        yield
        yield from lines(A, [
            f"s_sub_u32 s{T2}, s{T2}, 2688", f"v_lshl_add_u32 v48, v1, 1, s{T2}",
            f"v_mov_b32 v{KF}, 0", f"v_mov_b32 v{KF+1}, 0", f"v_mov_b32 v{KF+2}, 0",
            f"s_lshl_b32 s{T2}, s{T1}, 9", f"v_lshl_add_u32 v51, v1, 3, s{T2}"], 4)
        for r in range(3):
            A(f"buffer_load_short_d16_hi v{KF+r}, v48, {srd(Kb)}, 0 offen offset:{r*896}")
        A(f"buffer_load_dwordx2 v[{WRW}:{WRW+1}], v51, {srd(SHK)}, 0 offen")
        tg["kvd"] = A.vm_tag()
        yield
        yield from lines(A, [
            f"s_lshl_b32 s{T1}, s{T1}, 3", f"s_add_u32 s{T1}, s{T1}, s{WV}", f"s_lshl_b32 s{T1}, s{T1}, 15",
            f"s_lshl_b32 s{T0}, s{T0}, 7", f"s_sub_u32 s{T1}, s{T1}, s{T0}", f"s_add_u32 s{T1}, s{T1}, 3968",
            f"v_lshl_add_u32 v{KA+1}, v50, 12, s{T1}", f"v_lshl_add_u32 v{KA+1}, v49, 4, v{KA+1}",
            f"s_lshl_b32 s{T0}, s{WV}, 7", f"s_add_u32 s{T0}, s{T0}, {KB + 7168}",
            f"v_lshl_add_u32 v{KA+2}, v50, 4, s{T0}", "v_lshlrev_b32 v48, 10, v49", f"v_sub_u32 v{KA+2}, v{KA+2}, v48",
            "v_bfe_u32 v48, v1, 2, 2", "v_lshlrev_b32 v48, 7, v48",
            "v_lshrrev_b32 v49, 4, v1", "v_lshl_add_u32 v48, v49, 5, v48",
            "v_and_b32 v49, 3, v1", "v_lshl_add_u32 v48, v49, 3, v48",
            f"s_add_u32 s{T3}, s{T3}, {KB}", f"v_add_u32 v{KA}, s{T3}, v48", f"v_add_u32 v{KA+3}, s{T3}, v{VHL}"], 5)
    def kv_comp():
        A.wait_vm(tg["kvd"])
        for sec in range(2): A(f"ds_read_b64_tr_b16 v[{KRW+2*sec}:{KRW+2*sec+1}], v{KA} offset:{sec*512}")
        for sec in range(2): A(f"ds_read_b64_tr_b16 v[{VRW+2*sec}:{VRW+2*sec+1}], v{KA} offset:{VB-KB + sec*512}")
        t = A.lg_tag()
        yield
        ls = []
        def up(lo, hi, src): ls.extend([f"v_lshlrev_b32 v{lo}, 16, v{src}", f"v_and_b32 v{hi}, 0xffff0000, v{src}"])
        for q in range(2): up(WF+2*q, WF+2*q+1, WRW+q)
        yield from lines(A, ls, 4)
        A.wait_lg(t)
        ls = []
        for q in range(4): up(KF+3+2*q, KF+4+2*q, KRW+q)
        for s_ in range(8): ls.append(f"v_mul_f32 v{O+s_}, v{WF+3}, v{KF+s_}")
        for j in (2, 1, 0):
            for s_ in range(8): ls.append(f"v_fmac_f32 v{O+s_}, v{WF+j}, v{KF+s_+3-j}")
        for q in range(4): up(VF+2*q, VF+2*q+1, VRW+q)
        for s_ in range(8): ls.append(f"v_mul_f32 v{O+s_}, v{O+s_}, v{VF+s_}")
        for q in range(4): ls.append(f"v_cvt_pk_bf16_f32 v{PK+q}, v{O+7-2*q}, v{O+6-2*q}")
        yield from lines(A, ls, OPT["vper"])
        A(f"ds_write_b128 v{KA+3}, v[{PK}:{PK+3}]")
        tg["kvw"] = True
        yield
    def kv_out():
        A(f"ds_read_b128 v[{PK}:{PK+3}], v{KA+2}")
        t = A.lg_tag()
        yield; yield; yield
        A.wait_lg(t)
        A(f"buffer_store_dwordx4 v[{PK}:{PK+3}], v{KA+1}, {srd(WS)}, 0 offen sc1")
        tg["kvs"] = A.vm_tag()
        yield
    def cs_out():
        lab = A.label("L_ncs")
        with nocount(A):
            A(f"s_cmp_ge_u32 s{SCS}, 2"); A(f"s_cbranch_scc1 {lab}")
            A(f"s_lshl_b32 s{T0}, s{SJ}, 3"); A(f"s_lshl_b32 s{T1}, s{SKQ}, 1"); A(f"s_add_u32 s{T0}, s{T0}, s{T1}"); A(f"s_lshl_b32 s{T0}, s{T0}, 3")
            A(f"s_and_b32 s{T1}, s{SXCD}, 3"); A(f"s_lshl_b32 s{T1}, s{T1}, 1"); A(f"s_add_u32 s{T0}, s{T0}, s{T1}"); A(f"s_add_u32 s{T0}, s{T0}, s{SIQ}")
            A(f"s_lshl_b32 s{T0}, s{T0}, 7"); A(f"s_add_u32 s{T0}, s{T0}, {WS_CSP}")
            A("v_lshlrev_b32 v48, 2, v1")
            A("s_mov_b32 exec_hi, 0")
            for tt in range(2):
                c = CACC + 16*tt
                round_bf16(A, 49, c)
                A(f"v_sub_f32 v50, v{c}, v49")
                A(f"v_cvt_pk_bf16_f32 v{50+tt}, v49, v50")
                A(f"buffer_store_dword v{50+tt}, v48, {srd(WS)}, s{T0} offen offset:{tt*1024} sc1")
            A("s_mov_b64 exec, -1")
            A(f"{lab}:")
        tg["css"] = A.vm_tag()
    def cs_flag():
        lab = A.label("L_ncf")
        A(f"s_cmp_ge_u32 s{SCS}, 2"); A(f"s_cbranch_scc1 {lab}")
        A.wait_vm(tg["css"])
        with nocount(A):
            A(f"s_lshl_b32 s{T0}, s2, 2"); A(f"s_add_u32 s{T0}, s{T0}, s{SKQ}"); A(f"s_lshl_b32 s{T0}, s{T0}, 7"); A(f"s_add_u32 s{T0}, s{T0}, {WS_FLAG + 8*32768}")
            A(f"v_mov_b32 v48, s{STAG}"); A(f"v_mov_b32 v49, s{T0}")
            A("s_mov_b64 exec, 1")
            A(f"buffer_store_dword v48, v49, {srd(WS)}, 0 offen sc1")
            A("s_mov_b64 exec, -1")
        A(f"{lab}:")
    CS, BM, STT, T, KC = 240, 248, 52, 16, 24
    def stat_operands():
        A(f"s_lshl_b32 s{T0}, s{SI}, 10"); A(f"s_lshl_b32 s{T1}, s{SSH}, 9"); A(f"s_add_u32 s{T0}, s{T0}, s{T1}"); A(f"s_add_u32 s{T0}, s{T0}, {WS_STATS}")
        A("v_lshlrev_b32 v48, 3, v14")
        for nt in range(2):
            A(f"buffer_load_dwordx2 v[{STT+2*nt}:{STT+2*nt+1}], v48, {srd(WS)}, s{T0} offen offset:{nt*256} sc1")
        yield
        A(f"s_lshl_b32 s{T0}, s{SJ}, 3"); A(f"s_lshl_b32 s{T1}, s{SKQ}, 1"); A(f"s_add_u32 s{T0}, s{T0}, s{T1}")
        A(f"s_lshl_b32 s{T0}, s{T0}, 10"); A(f"s_add_u32 s{T0}, s{T0}, {WS_CSP}")
        A("v_lshlrev_b32 v48, 2, v14"); A("v_lshl_add_u32 v48, v15, 9, v48")
        yield
        for tt in range(2):
            for e in range(4):
                A(f"buffer_load_dword v{CS+4*tt+e}, v48, {srd(WS)}, s{T0} offen offset:{tt*1024 + e*128} sc1")
                if e % 2: yield
        tg["epi"] = A.vm_tag()
    def epi_bm():
        A.wait_vm(tg["epi"])
        for nt in range(2):
            A(f"v_xor_b32 v{BM+4*nt}, 0x80000000, v{STT+2*nt}")
            A(f"v_lshrrev_b32 v{BM+4*nt+1}, 16, v{BM+4*nt}")
            A(f"v_or_b32 v{BM+4*nt}, v{BM+4*nt}, v{BM+4*nt+1}")
            yield
            for r in range(1, 4): A(f"v_mov_b32 v{BM+4*nt+r}, v{BM+4*nt}")
            yield
    def w2load(t):
        assert t >= 14 or "kvs" in tg, "W2T load collides with kv temporaries"
        A(f"s_add_u32 s{T4}, s{SOW2}, {(t // 4)*4096}")
        A(f"buffer_load_dwordx4 v[{WR+4*t}:{WR+4*t+3}], v{VHL}, {srd(WS)}, s{T4} offen offset:{(t % 4)*1024} sc1")
    def conv_prep():
        A(f"s_lshl_b32 s{T0}, s2, 13")
        A("v_lshlrev_b32 v48, 4, v0")
        A(f"s_lshr_b32 s{T1}, s{WV}, 2"); A(f"s_mul_i32 s{T1}, s{T1}, {HS_}")
        A(f"s_and_b32 s{T3}, s{WV}, 3"); A(f"s_lshl_b32 s{T2}, s{T3}, 10"); A(f"s_add_u32 s{T2}, s{T2}, s{T1}")
        yield
        for u in range(4):
            A(f"s_add_u32 m0, s{T2}, {HBC + u*HCP - (16 if u == 0 else 0) - 4*u}")
            A(f"buffer_load_dwordx4 v48, {srd(SSMK)}, s{T0} offen offset:{4*u} lds")
            yield
        A(f"s_mul_i32 s{T2}, s{T3}, {HCP}"); A(f"s_add_u32 s{T2}, s{T2}, s{T1}"); A(f"s_add_u32 s{T2}, s{T2}, {HBC}")
        A(f"s_cmp_eq_u32 s{T3}, 0"); A(f"s_cselect_b32 s{T1}, 16, 0"); A(f"s_sub_u32 s{T2}, s{T2}, s{T1}")
        yield
        for r in (48, 49, 50, 51): A(f"v_mov_b32 v{r}, 0")
        A(f"s_sub_u32 s{T1}, s{T2}, 64"); A(f"v_lshl_add_u32 v62, v1, 2, s{T1}")
        yield
        A(f"s_lshr_b32 exec_lo, 0xffff, s{T3}"); A("s_mov_b32 exec_hi, 0")
        A("ds_write_b32 v62, v48")
        A("s_mov_b64 exec, -1")
        lab = A.label("L_nod0")
        with nocount(A):
            A(f"s_cmp_eq_u32 s{T3}, 0"); A(f"s_cbranch_scc1 {lab}")
            A(f"s_lshl_b32 s{T1}, s{T3}, 2"); A(f"s_sub_u32 m0, s{T2}, s{T1}")
            A(f"s_lshr_b32 s{T1}, s{WV}, 2"); A(f"s_lshl_b32 s{T1}, s{T1}, 12"); A(f"s_add_u32 s{T0}, s{T0}, s{T1}")
            A("v_lshlrev_b32 v62, 2, v1")
            A(f"s_bfm_b64 exec, s{T3}, 0")
            A(f"buffer_load_dword v62, {srd(SSMK)}, s{T0} offen lds")
            A("s_mov_b64 exec, -1")
            A(f"{lab}:")
        yield
        A(f"s_bfe_u32 s{T0}, s{WV}, 0x10001"); A(f"s_mul_i32 s{T0}, s{T0}, {RS}")
        A(f"s_mul_i32 s{T1}, s{SSH}, {R1D}"); A(f"s_add_u32 s{T1}, s{T1}, s{T0}"); A(f"s_add_u32 s{T1}, s{T1}, {RB+4096}")
        A(f"v_add_u32 v62, s{T1}, v{VHL}")
        yield
        A("s_mov_b64 exec, 0xfffffff"); A("ds_write_b128 v62, v[48:51]"); A("s_mov_b64 exec, -1")
        A(f"v_mov_b32 v62, {CNT_OFF}"); A("ds_write_b64 v62, v[48:49]")
        yield
    KVR_, KVT = 60, 48
    def p2_loads():
        A(f"s_lshl_b32 s{T0}, s2, 13")
        A("v_lshlrev_b32 v48, 4, v0"); A("v_and_b32 v49, 255, v0")
        A("v_cmp_eq_u32 vcc, 255, v49")
        A("v_add_u32 v49, 16, v48"); A("v_mov_b32 v50, 0x7fffff00")
        A("v_cndmask_b32 v49, v49, v50, vcc")
        yield
        poll_check(A, VP, tg["p2"])
        A(f"buffer_load_dwordx4 v[{KVR_}:{KVR_+3}], v48, {srd(WS)}, s{T0} offen sc1")
        A(f"buffer_load_dword v59, v49, {srd(WS)}, s{T0} offen sc1")
        tg["kv"] = A.vm_tag()
        yield
    def conv_kvwrite(role):
        A("v_lshrrev_b32 v57, 8, v0"); A(f"v_mul_u32_u24 v57, {RS}, v57")
        A("v_and_b32 v58, 255, v0"); A("v_lshl_add_u32 v57, v58, 4, v57")
        A.wait_vm(tg["kv"], role)
        for q in range(3): A(f"v_alignbit_b32 v{KVT+q}, v{KVR_+1+q}, v{KVR_+q}, 16")
        A(f"v_alignbit_b32 v{KVT+3}, v59, v{KVR_+3}, 16")
        A(f"ds_write_b128 v57, v[{KVR_}:{KVR_+3}] offset:{RB+R1D}")
        A(f"ds_write_b128 v57, v[{KVT}:{KVT+3}] offset:{RB}")
        A("s_waitcnt lgkmcnt(0)")
        A("s_barrier")
    def id_pw(A, v):
        A(f"s_mul_i32 s{T0}, s{SKQ}, 7"); A(f"s_add_u32 s{T0}, s{T0}, 224")
        A(f"v_min_u32 v{v}, 6, v1"); A(f"v_add_u32 v{v}, s{T0}, v{v}")
    def id_p1(A, v):
        A(f"s_lshl_b32 s{T0}, s{SJR}, 3"); A(f"s_and_b32 s{T1}, s{SXCD}, 4"); A(f"s_add_u32 s{T0}, s{T0}, s{T1}")
        A(f"s_lshl_b32 s{T0}, s{T0}, 2"); A(f"s_add_u32 s{T0}, s{T0}, s{SKQ}")
        A(f"v_bfe_u32 v{v+1}, v1, 2, 1"); A(f"v_mul_u32_u24 v{v+1}, 224, v{v+1}"); A(f"v_and_b32 v{v}, 3, v1")
        A(f"v_lshl_add_u32 v{v}, v{v}, 2, v{v+1}"); A(f"v_add_u32 v{v}, s{T0}, v{v}")
        A(f"s_and_b32 s{T0}, s{SIQ}, 1"); A(f"s_lshl_b32 s{T0}, s{T0}, 1"); A(f"s_add_u32 s{T0}, s{T0}, s{SSH}"); A(f"s_lshl_b32 s{T0}, s{T0}, 3")
        A(f"s_lshr_b32 s{T1}, s{SIQ}, 1"); A(f"s_lshl_b32 s{T1}, s{T1}, 2"); A(f"s_add_u32 s{T0}, s{T0}, s{T1}")
        A(f"s_and_b32 s{T1}, s{SXCD}, 3"); A(f"s_add_u32 s{T0}, s{T0}, s{T1}"); A(f"s_add_u32 s{T0}, s{T0}, 448")
        A(f"v_mov_b32 v{v+1}, s{T0}")
        A(f"v_cmp_lt_u32 vcc, 7, v1")
        A(f"v_cndmask_b32 v{v}, v{v}, v{v+1}, vcc")
    def id_p2(A, v):
        A(f"s_and_b32 s{T0}, s{WV}, 3"); A(f"s_lshl_b32 s{T0}, s{T0}, 3"); A(f"s_sub_u32 s{T0}, 31, s{T0}")
        A(f"v_min_u32 v{v}, 8, v1"); A(f"v_sub_u32 v{v}, s{T0}, v{v}"); A(f"v_max_i32 v{v}, 0, v{v}")
        A(f"v_mul_u32_u24 v{v}, 7, v{v}")
        A(f"s_lshr_b32 s{T0}, s2, 5"); A(f"v_add_u32 v{v}, s{T0}, v{v}")
    def id_p3(A, v):
        A(f"s_bfe_u32 s{T0}, s{SSB}, 0x20001"); A(f"s_mul_i32 s{T0}, s{T0}, 56")
        A(f"s_lshr_b32 s{T1}, s{SSB}, 3"); A(f"s_add_u32 s{T0}, s{T0}, s{T1}")
        A(f"s_and_b32 s{T1}, s{SKQ}, 1"); A(f"s_mul_i32 s{T1}, s{T1}, 24"); A(f"s_add_u32 s{T0}, s{T0}, s{T1}")
        A(f"s_and_b32 s{T1}, s{WV}, 4"); A(f"s_add_u32 s{T0}, s{T0}, s{T1}")
        A(f"v_and_b32 v{v}, 3, v1"); A(f"v_lshl_add_u32 v{v}, v{v}, 3, s{T0}")
    def id_p4(A, v):
        A(f"s_lshl_b32 s{T0}, s{SJR}, 5"); A(f"s_lshl_b32 s{T1}, s{WV}, 2"); A(f"s_add_u32 s{T0}, s{T0}, s{T1}")
        A(f"v_and_b32 v{v}, 3, v1"); A(f"v_add_u32 v{v}, s{T0}, v{v}")

    A.wait_vm(dma_tag[0])
    A("s_barrier")
    stamp(A, "g1_start", 1, 2, 5)
    tag = reads(0, 0, 0)
    fs = 0
    JV, JS_ = Jobs(), Jobs()
    for i, p in enumerate(dma_parts(2)): JV.add(1 + 4*i, atom(p))
    for s in range(4):
        for i, p in enumerate(dma_parts(s + 3)): JV.add(16*s + 13 + 4*i, atom(p))
    KO, F2 = OPT["ko"], OPT["f2"]
    JS_.add(OPT["kvl"], kv_dma)
    JS_.add(21 if OPT['rot2'] else 36, atom(cs_out))
    JS_.add(OPT["kvc"], kv_comp)
    JS_.add(OPT["csf"], atom(cs_flag))
    JS_.add(max(OPT["sto"], 16*KO + 12), kv_out)
    JS_.add(OPT["p1i"], atom(lambda: tg.__setitem__("p1", poll_issue(A, 8, id_p1, VP))))
    JS_.add(16*F2 + 12, atom(lambda: set_flag(A, 2, 48)))
    NW2 = OPT["nw2"]
    JS_.add(OPT["pwi"], atom(lambda: tg.__setitem__("pw", poll_issue(A, 1, id_pw, VP))))
    def pwchk():
        poll_check(A, VP, tg["pw"])
        for k in range(NW2):
            JV.add(OPT["pwc"] + 1 + (k*(108 - OPT["pwc"])) // NW2, atom(lambda t=27-k: w2load(t)))
    JS_.add(OPT["pwc"], atom(pwchk))
    JS_.add(OPT["p1c"], atom(lambda: poll_check(A, VP, tg["p1"])))
    JS_.add(OPT["p1c"], stat_operands)
    JS_.add(OPT["p2i"], atom(lambda: tg.__setitem__("p2", poll_issue(A, 2, id_p2, VP))))
    JS_.add(92, conv_prep)
    JS_.add(100, epi_bm)
    JS_.add(OPT["p2c"], p2_loads)
    for s in range(7):
        for ks in range(4):
            if ks < 3:
                ntag = reads(s, ks + 1, fs ^ 1)
                A.wait_lg(tag)
            else:
                for st_, need in ((KO, "kvw"), (F2, "kvs")):
                    while st_ == s and need not in tg: JS_.step(16*s + 11)
                A("s_waitcnt lgkmcnt(0)")
                if s < 6:
                    t = dma_tag[s+1]
                    if s == F2: t = max(t, tg["kvs"])
                    A.wait_vm(t)
                    stamp(A, f"st{s}_prebar", 2)
                    A("s_barrier")
                    stamp(A, f"st{s}_postbar", 2)
                    ntag = reads(s + 1, 0, fs ^ 1)
            b = FR[fs]
            for m in range(4):
                tt, nt = m >> 1, m & 1
                a = ACC + m*16
                c = "0" if (s == 0 and ks == 0) else f"v[{a}:{a+15}]"
                A(f"v_mfma_f32_32x32x16_bf16 v[{a}:{a+15}], v[{b+8+4*tt}:{b+11+4*tt}], v[{b+4*nt}:{b+4*nt+3}], {c}")
                now = 16*s + 4*ks + m
                JV.step(now); JS_.step(now)
            if s == 0 or (s == 1 and not OPT["rot2"]):
                lab = A.label("L_cs")
                if OPT["rot2"]: A(f"s_cmp_ge_u32 s{SCS}, 2")
                else: A(f"s_cmp_lg_u32 s{SCS}, {s}")
                A(f"s_cbranch_scc1 {lab}")
                for tt in range(2):
                    a = CACC + 16*tt
                    c = "0" if ks == 0 else f"v[{a}:{a+15}]"
                    A(f"v_mfma_f32_32x32x16_bf16 v[{a}:{a+15}], v[{ONES}:{ONES+3}], v[{b+8+4*tt}:{b+11+4*tt}], {c}")
                A(f"{lab}:")
            tag = ntag
            fs ^= 1
    JV.flush(999); JS_.flush(150)
    A(f"s_lshl_b32 s{T0}, s2, 2")
    A(f"s_load_dword s{SDV}, s[{SD}:{SD+1}], s{T0}")
    SH0, SH1 = 55, 56
    A(f"s_lshl_b32 s{T0}, s{SI}, 2"); A(f"s_lshl_b32 s{T1}, s{SSH}, 1"); A(f"s_add_u32 s{T0}, s{T0}, s{T1}"); A(f"s_mul_i32 s{T0}, s{T0}, 112")
    A(f"s_lshl_b32 s{T1}, s{SJ}, 3"); A(f"s_add_u32 s{T0}, s{T0}, s{T1}")
    A(f"s_lshl_b32 s{T1}, s{SKQ}, 1"); A(f"s_add_u32 s{T0}, s{T0}, s{T1}")
    A(f"s_lshl_b32 s{T0}, s{T0}, 10"); A(f"s_add_u32 s{SH0}, s{T0}, {WS_H}"); A(f"s_add_u32 s{SH1}, s{SH0}, {112*1024}")
    A("v_and_b32 v2, 15, v1"); A("v_lshrrev_b32 v3, 4, v1"); A("v_and_b32 v4, 1, v1")
    A("v_add_u32 v7, 1, v2"); A("v_and_b32 v5, 3, v7"); A("v_lshrrev_b32 v7, 2, v7")
    A("v_cmp_eq_u32 vcc, 0, v5")
    A(f"v_mul_u32_u24 v5, {HCP}, v5")
    A("v_add_u32 v7, v7, v3"); A("v_lshl_add_u32 v5, v7, 4, v5")
    A("v_cndmask_b32 v7, 0, 16, vcc"); A("v_sub_u32 v5, v5, v7")
    A(f"s_mul_i32 s{T0}, s{SSH}, {HS_}"); A(f"s_lshl_b32 s{T2}, s{SKQ}, 7"); A(f"s_add_u32 s{T0}, s{T0}, s{T2}"); A(f"s_add_u32 s{T0}, s{T0}, {HBC-64}")
    A(f"v_add_u32 v5, s{T0}, v5")
    A(f"v_mul_u32_u24 v6, {R1D}, v4"); A("v_lshl_add_u32 v6, v3, 4, v6")
    A("v_lshrrev_b32 v7, 1, v2"); A("v_lshlrev_b32 v13, 6, v7"); A("v_sub_u32 v6, v6, v13")
    A(f"s_mul_i32 s{T1}, s{SSH}, {RS}"); A(f"s_add_u32 s{T0}, s{T1}, s{T2}"); A(f"s_add_u32 s{T0}, s{T0}, {RB+4032-3584}")
    A(f"v_add_u32 v6, s{T0}, v6")
    A(f"s_lshl_b32 s{T2}, s{SKQ}, 10"); A(f"s_sub_u32 s{T2}, s{T1}, s{T2}"); A(f"s_add_u32 s{T2}, s{T2}, {RB+R1D+4080}")
    A(f"v_sub_u32 v13, s{T2}, v{VHL}")
    for tt in range(2):
        for nt in range(2):
            a = ACC + (tt*2 + nt)*16
            A(f"v_mfma_f32_32x32x16_bf16 v[{a}:{a+15}], v[{CS+4*tt}:{CS+4*tt+3}], v[{BM+4*nt}:{BM+4*nt+3}], v[{a}:{a+15}]")
    stamp(A, "g1_mfma_end", 1, 2, 3)
    JS_.flush(999)
    def epilogue(pk, wl):
        wl = list(wl); per = (len(wl) + 6) // 7
        def drain():
            for _ in range(per):
                if wl: w2load(wl.pop(0))
        for nt in range(2):
            A(f"v_mul_f32 v{KC+4*nt}, {hex(f2u(-1.4426950408889634))}, v{STT+2*nt+1}")
            A(f"v_mul_f32 v{KC+4*nt+2}, v{STT+2*nt+1}, v{STT+2*nt+1}")
            A(f"v_mov_b32 v{KC+4*nt+1}, v{KC+4*nt}")
            A(f"v_rcp_f32 v{KC+4*nt+2}, v{KC+4*nt+2}")
            A(f"v_mov_b32 v{KC+4*nt+3}, v{KC+4*nt+2}")
        for tt in range(2):
            for nt in range(2):
                a = ACC + (tt*2 + nt)*16
                k1 = f"v[{KC+4*nt}:{KC+4*nt+1}]"; kq = f"v[{KC+4*nt+2}:{KC+4*nt+3}]"
                if pk:
                    for r in range(0, 8, 2): A(f"v_pk_mul_f32 v[{T+r}:{T+r+1}], v[{a+r}:{a+r+1}], {k1}")
                else:
                    for r in range(8): A(f"v_mul_f32 v{T+r}, v{a+r}, v{KC+4*nt}")
                for r in range(8): A(f"v_exp_f32 v{T+r}, v{T+r}")
                if pk:
                    for r in range(0, 8, 2): A(f"v_pk_mul_f32 v[{a+r}:{a+r+1}], v[{a+r}:{a+r+1}], v[{a+8+r}:{a+9+r}]")
                    for r in range(0, 8, 2): A(f"v_pk_fma_f32 v[{T+r}:{T+r+1}], v[{T+r}:{T+r+1}], {kq}, {kq}")
                else:
                    for r in range(8): A(f"v_mul_f32 v{a+r}, v{a+r}, v{a+8+r}")
                    for r in range(8): A(f"v_fma_f32 v{T+r}, v{T+r}, v{KC+4*nt+2}, v{KC+4*nt+2}")
                drain()
                for r in range(8): A(f"v_rcp_f32 v{T+r}, v{T+r}")
                if pk:
                    for r in range(0, 8, 2): A(f"v_pk_mul_f32 v[{a+r}:{a+r+1}], v[{a+r}:{a+r+1}], v[{T+r}:{T+r+1}]")
                else:
                    for r in range(8): A(f"v_mul_f32 v{a+r}, v{a+r}, v{T+r}")
                for q in range(4): A(f"v_cvt_pk_bf16_f32 v{a+8+q}, v{a+2*q}, v{a+2*q+1}")
                A(f"buffer_store_dwordx4 v[{a+8}:{a+11}], v{VHL}, {srd(WS)}, s{SH0+nt} offen offset:{tt*1024} sc1")
                if tt*2 + nt < 3: drain()
        assert not wl
    lv1 = A.label("L_cv1"); lvj = A.label("L_cvj")
    A(f"s_cmp_ge_u32 s{WV}, 4"); A(f"s_cbranch_scc1 {lv1}")
    ns0 = Ctx.nstamp; nn0 = len(Ctx.names)
    rest = list(range(28 - NW2))
    wconv = rest; rest = []
    NLE = NHE = 0
    A.role = "lo"
    epilogue(True, rest[:NLE])
    stamp(A, "epi_end", 3)
    conv_kvwrite("lo")
    stamp(A, "bk", 3)
    A(f"s_branch {lvj}")
    Ctx.nstamp = ns0; del Ctx.names[nn0:]
    A(f"{lv1}:")
    A.role = "hi"
    for t in rest[NHE:]: w2load(t)
    conv_kvwrite("hi")
    if OPT["prof"] == 3: Ctx.nstamp += 1; Ctx.names.append("epi_end")
    stamp(A, "bk", 3)
    if OPT["prio"]: A("s_setprio 1")
    epilogue(OPT["pkhi"], rest[:NHE])
    if OPT["prio"]: A("s_setprio 0")
    if OPT["prof"] == 3: A(f"s_memtime s[{STAMP0+2*ns0}:{STAMP0+2*ns0+1}]")
    A.role = None
    A(f"{lvj}:")
    tg["h"] = A.vm_tag()
    TS = 1088
    Y = 16
    POOL = [240, 244, 248, 252] + list(range(64, 128, 4))
    ml = []
    for rr in range(2):
        for t in range(8):
            pairs = [(p, t) for p in range(t)] + [(t, q) for q in range(t + 1)]
            ml += [(rr, p, q) for p, q in pairs if p + q <= 7]
    loads = [(rr, k, t) for rr in range(2) for t in range(8) for k in "AB"]
    last_use = {}; first_use = {}
    for i, (rr, p, q) in enumerate(ml):
        for key in ((rr, "A", p), (rr, "B", q)):
            last_use[key] = i; first_use.setdefault(key, i)
    loads.sort(key=lambda k: first_use[k])
    free = list(POOL); slot = {}; ltag = {}
    st = dict(li=0, waited=0)
    seen = set()
    def issue(maxn):
        n = 0
        while st["li"] < len(loads) and free and n < maxn:
            key = loads[st["li"]]; rr, kind, t = key
            sl = free.pop(0); slot[key] = sl
            if kind == "A": A(f"ds_read_b128 v[{sl}:{sl+3}], v5 offset:{64*rr + 512*t}")
            else: A(f"ds_read_b128 v[{sl}:{sl+3}], v6 offset:{64*rr + 512*(7-t)}")
            ltag[key] = A.lg_tag(); st["li"] += 1; n += 1
    issue(10)
    for i, (rr, p, q) in enumerate(ml):
        ka, kb = (rr, "A", p), (rr, "B", q)
        while ka not in slot or kb not in slot: issue(1)
        need = max(ltag[ka], ltag[kb])
        if need > st["waited"]:
            A.wait_lg(need); st["waited"] = need
        j = p + q
        c = f"v[{Y+4*j}:{Y+4*j+3}]" if j in seen else "0"
        seen.add(j)
        A(f"v_mfma_f32_16x16x32_bf16 v[{Y+4*j}:{Y+4*j+3}], v[{slot[ka]}:{slot[ka]+3}], v[{slot[kb]}:{slot[kb]+3}], {c}")
        for key in (ka, kb):
            if last_use[key] == i: free.append(slot[key])
        issue(1)
        if wconv and i > OPT["ar0"] and i % 2 == 0: w2load(wconv.pop(0))
        if i == OPT["ar0"]:
            A.wait_vm(tg["h"])
            arrive_flag(A, 3, CNT_OFF, 8)
            st["waited"] = A.lg
            stamp(A, "arr3", 3)
    for t in wconv: w2load(t)
    A("ds_read_b128 v[8:11], v13")
    A(f"s_mul_i32 s{T0}, s{WV}, {8*TS}"); A(f"s_add_u32 s{T0}, s{T0}, {CX}")
    A("v_mul_u32_u24 v12, 544, v4"); A("v_lshl_add_u32 v12, v7, 6, v12"); A("v_lshl_add_u32 v12, v3, 4, v12")
    A(f"v_add_u32 v12, s{T0}, v12")
    for j in range(8): A(f"ds_write_b128 v12, v[{Y+4*j}:{Y+4*j+3}] offset:{j*TS}")
    stamp(A, "conv_mfma_end", 1, 3)
    A(f"v_mul_u32_u24 v12, {TS}, v15"); A("v_lshl_add_u32 v12, v14, 4, v12")
    A(f"s_mul_i32 s{T0}, s{SKQ}, {2*TS}"); A(f"s_mul_i32 s{T1}, s{SSH}, {8*TS}"); A(f"s_add_u32 s{T0}, s{T0}, s{T1}"); A(f"s_add_u32 s{T0}, s{T0}, {CX}")
    A(f"v_add_u32 v12, s{T0}, v12")
    tg["p3"] = poll_issue(A, 3, id_p3, VP)
    A("s_waitcnt lgkmcnt(0)")
    A(f"s_lshl_b32 s{T0}, s{SDV}, 16"); A(f"s_and_b32 s{T1}, s{SDV}, 0xffff0000")
    A(f"s_cmp_eq_u32 s{SSH}, 1"); A(f"s_cselect_b32 s{SDV}, s{T1}, s{T0}")
    A("s_barrier")
    for src in range(4):
        for w in range(2):
            A(f"ds_read_b128 v[{64+8*src+4*w}:{67+8*src+4*w}], v12 offset:{src*16*TS + w*544}")
    for q in range(4): unpack(A, 20+2*q, 21+2*q, 8 + q)
    A("s_waitcnt lgkmcnt(4)")
    for e in range(0, 8, 2): A(f"v_pk_add_f32 v[{64+e}:{65+e}], v[{64+e}:{65+e}], v[{72+e}:{73+e}]")
    for q in range(4):
        r = 3 - q
        A(f"v_fmac_f32 v{68+r}, s{SDV}, v{20+2*q}"); A(f"v_fmac_f32 v{64+r}, s{SDV}, v{21+2*q}")
    A("s_waitcnt lgkmcnt(0)")
    for e in range(0, 8, 2): A(f"v_pk_add_f32 v[{80+e}:{81+e}], v[{80+e}:{81+e}], v[{88+e}:{89+e}]")
    for e in range(0, 8, 2): A(f"v_pk_add_f32 v[{64+e}:{65+e}], v[{64+e}:{65+e}], v[{80+e}:{81+e}]")
    for r in range(4): A(f"v_cvt_pk_bf16_f32 v{8+r}, v{64+r}, v{68+r}")
    A(f"s_lshl_b32 s{T0}, s2, 13"); A(f"s_lshl_b32 s{T1}, s{SSH}, 12"); A(f"s_add_u32 s{T0}, s{T0}, s{T1}")
    A(f"s_lshl_b32 s{T1}, s{SKQ}, 10"); A(f"s_add_u32 s{T0}, s{T0}, s{T1}"); A(f"s_add_u32 s{T0}, s{T0}, {WS_ZT}")
    A(f"buffer_store_dwordx4 v[8:11], v{VHL}, {srd(WS)}, s{T0} offen sc1")
    stamp(A, "conv_end", 1, 3)
    HSL = [0, 126976, 49152]
    poll_check(A, VP, tg["p3"])
    stamp(A, "g2_go", 1, 3, 4)
    A(f"s_lshl_b32 s{SMX}, s{WV}, 12")
    htag = {}
    def hdma(sg, lo, n):
        A(f"s_add_u32 s{T5}, s{SOH}, {sg*4096}")
        A(f"s_add_u32 m0, s{SMX}, {HSL[sg % 3]}")
        for e in range(lo, lo + n):
            A(f"buffer_load_dwordx4 v{VHL}, {srd(WS)}, s{T5} offen offset:{e*1024} sc1 lds")
        htag[sg] = A.vm_tag()
    hdma(0, 0, 4); hdma(1, 0, 4)
    A("v_lshrrev_b32 v8, 3, v1"); A("v_and_b32 v11, 7, v1")
    A(f"s_lshl_b32 s{T0}, s{SSB}, 6"); A(f"s_lshl_b32 s{T1}, s{WV}, 3"); A(f"s_add_u32 s{T0}, s{T0}, s{T1}")
    A(f"v_add_u32 v9, s{T0}, v8")
    A("v_mul_u32_u24 v10, 896, v9"); A("v_lshl_add_u32 v3, v11, 4, v10")
    A("v_lshlrev_b32 v5, 3, v9")
    A("v_lshrrev_b32 v9, 3, v0"); A("v_lshlrev_b32 v9, 12, v9"); A("v_lshl_add_u32 v4, v11, 4, v9")
    A(f"s_lshl_b32 s{SNB}, s{SJR}, 7")
    A(f"s_lshl_b32 s{T0}, s{SKQ}, 13")
    A(f"v_add_u32 v6, s{T0}, v{VHL}"); A(f"v_add_u32 v7, {HSL[1]}, v6")
    FR2 = [16, 24]
    ACC2 = 64
    XR, STT2, ZR, XW = 32, 36, 40, 44
    XF, TT, ZF, TP, P = 96, 104, 112, 120, 128
    A(f"buffer_load_dwordx4 v[{XR}:{XR+3}], v3, {srd(Q)}, s{SNB} offen")
    A(f"s_mov_b32 s{T0}, {WS_STATS}")
    A(f"buffer_load_dwordx2 v[{STT2}:{STT2+1}], v5, {srd(WS)}, s{T0} offen sc1")
    tg["x"] = A.vm_tag()
    A("v_bfe_u32 v9, v1, 1, 2"); A("v_and_b32 v10, 1, v1"); A("v_lshl_add_u32 v9, v10, 2, v9")
    A("v_lshlrev_b32 v10, 2, v15"); A("v_xor_b32 v10, v10, v9")
    A(f"s_lshl_b32 s{T0}, s{WV}, 13"); A(f"s_add_u32 s{T0}, s{T0}, {X2}")
    A(f"v_lshl_add_u32 v9, v14, 7, s{T0}")
    for rho in range(4):
        A(f"v_xor_b32 v12, {rho}, v10"); A(f"v_lshl_add_u32 v{XW+rho}, v12, 4, v9")
    A(f"v_xor_b32 v2, s{WV}, v11"); A("v_lshlrev_b32 v2, 4, v2"); A("v_lshl_add_u32 v10, v8, 7, v2")
    A("v_lshl_add_u32 v2, v11, 10, v2"); A("v_lshl_add_u32 v2, v8, 1, v2"); A(f"v_add_u32 v2, {ZB}, v2")
    A(f"s_lshl_b32 s{T0}, s{WV}, 10"); A(f"s_add_u32 s{T1}, s{T0}, {ZB}"); A(f"v_add_u32 v10, s{T1}, v10")
    A("v_bfe_u32 v9, v1, 4, 2"); A("v_bfe_u32 v12, v1, 3, 1"); A("v_lshl_add_u32 v9, v12, 2, v9")
    A("v_and_b32 v13, 3, v1"); A("v_lshlrev_b32 v13, 1, v13"); A("v_xor_b32 v13, v13, v9")
    A("v_bfe_u32 v9, v1, 2, 1"); A("v_lshlrev_b32 v9, 13, v9"); A("v_lshl_add_u32 v9, v8, 7, v9")
    A(f"s_add_u32 s{T0}, s{T0}, {X2}"); A(f"v_add_u32 v9, s{T0}, v9")
    A("v_lshl_add_u32 v12, v13, 4, v9"); A("v_xor_b32 v13, 1, v13"); A("v_lshl_add_u32 v13, v13, 4, v9")
    def rndl(base):
        ls = [f"v_cvt_pk_bf16_f32 v{TP+q}, v{base+2*q}, v{base+2*q+1}" for q in range(4)]
        for q in range(4): ls += [f"v_lshlrev_b32 v{base+2*q}, 16, v{TP+q}", f"v_and_b32 v{base+2*q+1}, 0xffff0000, v{TP+q}"]
        return ls
    def upl(base, src):
        ls = []
        for q in range(4): ls += [f"v_lshlrev_b32 v{base+2*q}, 16, v{src+q}", f"v_and_b32 v{base+2*q+1}, 0xffff0000, v{src+q}"]
        return ls
    def hreads(sg, tl, fs):
        sl = sg % 3
        for st_ in range(2):
            A(f"ds_read_b128 v[{FR2[fs]+4*st_}:{FR2[fs]+4*st_+3}], v{7 if sl == 1 else 6} offset:{(0 if sl == 1 else HSL[sl]) + st_*4096 + tl*1024}")
        return A.lg_tag()
    JV, JS_ = Jobs(), Jobs()
    JV.add(0, atom(lambda: hdma(2, 0, 2))); JV.add(2, atom(lambda: hdma(2, 2, 2)))
    for sg in range(4):
        JV.add(8*sg + 6, atom(lambda sg=sg: hdma(sg + 3, 0, 2))); JV.add(8*sg + 8, atom(lambda sg=sg: hdma(sg + 3, 2, 2)))
    JS_.add(0, atom(lambda: set_flag(A, 4, 48)))
    def xmath():
        A.wait_vm(tg["x"])
        ls = upl(XF, XR) + [f"v_sub_f32 v{TT+e}, v{XF+e}, v{STT2}" for e in range(8)] + rndl(TT)
        ls += [f"v_mul_f32 v{TT+e}, v{TT+e}, v{STT2+1}" for e in range(8)] + rndl(TT)
        yield from lines(A, ls, 4)
    JS_.add(8, xmath)
    TZ, TZW = OPT["tz"], OPT["tzw"]
    JS_.add(2*TZ, atom(lambda: tg.__setitem__("p4", poll_issue(A, 4, id_p4, VP))))
    def zload():
        poll_check(A, VP, tg["p4"])
        stamp(A, "zpoll", 4)
        A(f"s_lshl_b32 s{T0}, s{SJR}, 18"); A(f"s_lshl_b32 s{T1}, s{SSB}, 7"); A(f"s_add_u32 s{T0}, s{T0}, s{T1}"); A(f"s_add_u32 s{T0}, s{T0}, {WS_ZT}")
        A(f"buffer_load_dwordx4 v[{ZR}:{ZR+3}], v4, {srd(WS)}, s{T0} offen sc1")
        tg["z"] = A.vm_tag()
    JS_.add(2*TZ + 10, atom(zload))
    def zwrite():
        A.wait_vm(tg["z"])
        for e in range(8):
            op = "ds_write_b16" if e % 2 == 0 else "ds_write_b16_d16_hi"
            A(f"{op} v2, v{ZR + e//2} offset:{e*128}")
        tg["zw"] = True
    JS_.add(2*TZW, atom(zwrite))
    def zmath():
        A(f"ds_read_b128 v[{ZR}:{ZR+3}], v10")
        t = A.lg_tag()
        yield; yield
        A.wait_lg(t)
        ls = upl(ZF, ZR) + [f"v_mul_f32 v{TT+e}, v{TT+e}, v{ZF+e}" for e in range(8)] + rndl(TT)
        ls += [f"v_add_f32 v{TT+e}, v{TT+e}, v{XF+e}" for e in range(8)] + rndl(TT)
        yield from lines(A, ls, 6)
    JS_.add(46, zmath)
    A.wait_vm(htag[0])
    A("s_barrier")
    stamp(A, "g2_first", 1, 4)
    tag = hreads(0, 0, 0)
    fs = 0
    for sg in range(7):
        for tl in range(4):
            t = 4*sg + tl
            if tl < 3:
                ntag = hreads(sg, tl + 1, fs ^ 1)
                A.wait_lg(tag)
            else:
                if sg == 5:
                    while "zw" not in tg: JS_.step(45)
                A("s_waitcnt lgkmcnt(0)")
                if sg < 6:
                    A.wait_vm(htag[sg+1])
                    A("s_barrier")
                    stamp(A, f"g2_b{sg}", 4)
                    ntag = hreads(sg + 1, 0, fs ^ 1)
            for st_ in range(2):
                a = ACC2 + 16*st_
                c = "0" if t == 0 else f"v[{a}:{a+15}]"
                A(f"v_mfma_f32_32x32x16_bf16 v[{a}:{a+15}], v[{WR+4*t}:{WR+4*t+3}], v[{FR2[fs]+4*st_}:{FR2[fs]+4*st_+3}], {c}")
                JV.step(2*t + st_); JS_.step(2*t + st_)
            tag = ntag
            fs ^= 1
    stamp(A, "g2_mfma_end", 1, 4)
    for st_ in range(2):
        for rho in range(4):
            a = ACC2 + 16*st_ + 4*rho
            A(f"ds_write_b128 v{XW+rho}, v[{a}:{a+3}] offset:{st_*4096}")
    JS_.flush(999)
    A("s_waitcnt lgkmcnt(0)")
    A("s_barrier")
    stamp(A, "xbar", 4)
    for src in range(4):
        for hf in range(2):
            A(f"ds_read_b128 v[{P+8*src+4*hf}:{P+8*src+4*hf+3}], v{12 + hf} offset:{src*16384}")
    A("s_waitcnt lgkmcnt(4)")
    for e in range(0, 8, 2): A(f"v_pk_add_f32 v[{P+e}:{P+e+1}], v[{P+e}:{P+e+1}], v[{P+8+e}:{P+9+e}]")
    A("s_waitcnt lgkmcnt(0)")
    for e in range(0, 8, 2): A(f"v_pk_add_f32 v[{P+16+e}:{P+17+e}], v[{P+16+e}:{P+17+e}], v[{P+24+e}:{P+25+e}]")
    for e in range(0, 8, 2): A(f"v_pk_add_f32 v[{P+e}:{P+e+1}], v[{P+e}:{P+e+1}], v[{P+16+e}:{P+17+e}]")
    for l in rndl(P): A(l)
    for e in range(0, 8, 2): A(f"v_pk_add_f32 v[{P+e}:{P+e+1}], v[{P+e}:{P+e+1}], v[{TT+e}:{TT+e+1}]")
    for q in range(4): A(f"v_cvt_pk_bf16_f32 v{TP+q}, v{P+2*q}, v{P+2*q+1}")
    A(f"buffer_store_dwordx4 v[{TP}:{TP+3}], v3, {srd(OUT)}, s{SNB} offen")
    stamp(A, "end", 1, 3, 4)

def build():
    name = NAME + "_kernel"
    out = ["; @launch grid=(256,1,1) block=(512,1,1) lds=163840", '.amdgcn_target "amdgcn-amd-amdhsa--gfx950"', ".text"]
    A = Asm()
    A.vm_tag_big = lambda: (A.vm - 63, A.vm_lo, A.vm_hi)
    A(f".globl {name}"); A(".p2align 8"); A(f".type {name},@function"); A(f"{name}:")
    prologue(A)
    A("s_cmp_ge_u32 s2, 224"); A("s_cbranch_scc1 L_free")
    busy_path(A)
    stamp_dump(A)
    A("s_endpgm")
    A("L_free:")
    free_path(A)
    A("L_exit:")
    A("s_endpgm")
    A("L_codeend:")
    out.append(A.text())
    out.append('.section .rodata,"a"'); out.append(".p2align 6")
    out.append(f""".amdhsa_kernel {name}
  .amdhsa_next_free_vgpr 256
  .amdhsa_next_free_sgpr 102
  .amdhsa_accum_offset 256
  .amdhsa_group_segment_fixed_size 0
  .amdhsa_kernarg_size 104
  .amdhsa_user_sgpr_count 2
  .amdhsa_user_sgpr_kernarg_segment_ptr 1
  .amdhsa_system_sgpr_workgroup_id_x 1
.end_amdhsa_kernel
""")
    return "\n".join(out)

if __name__ == "__main__":
    for a in sys.argv[2:]:
        k, v = a.split("="); OPT[k] = int(v)
    open(sys.argv[1], "w").write(build())
    if OPT["prof"]: open(sys.argv[1] + ".names", "w").write(",".join(Ctx.names))
```

```python
import sys, struct
from asmlib import *
from gen2 import (NAME, S, D, F, WS_KVR, WS_H, WS_ZT, WS_STATS, WS_CS, WS_PROF, WS_SIZE, Q, Kb, Vb, SSMK, W13, W2, OUT, WS, DBG, SHK, SD, SW3, WV,
                  srd, f2u, nocount, div7, unpack, allreduce32, round_bf16, stats_compute, kv_load, kv_compute, kd)
OPT = dict(prof=0, pk=15, prio=1, ftouch=1, rotmode=0, codepf=1, hwin=8, kvl=2, kvc=9, f2=3, bx0=40, by0=71, ar0=71, bx1=-1, by1=30, ar1=50, tz=17, tzw=24, tzr=25)

SXCD, SIDX, SIQ, SJR = 48, 49, 50, 51
SI, SJ, SC, SOX, SOW, SMX, SMW = 52, 53, 54, 55, 56, 57, 58
SSB, SROT, SOH, SOW2, SKQ, SSH, SDV = 52, 53, 54, 59, 60, 61, 62
SROT2 = 63
T0, T1, T2, T3, T4, T5 = 64, 65, 66, 67, 68, 69
SPOLL = 70
STAMP0 = 72
class Ctx: nstamp = 0; names = []
def stamp(A, name="", lvl=1):
    if OPT["prof"] and (lvl == OPT["prof"] or name == "start"):
        r = STAMP0 + 2*Ctx.nstamp
        assert r + 1 < 102, "too many stamps"
        A(f"s_memtime s[{r}:{r+1}]")
        Ctx.nstamp += 1; Ctx.names.append(name)
def stamp_dump(A):
    if OPT["prof"]:
        A("s_waitcnt lgkmcnt(0)")
        A("s_memrealtime s[64:65]")
        A("s_memtime s[66:67]")
        A(f"s_lshl_b32 s68, s2, 3")
        A(f"s_add_u32 s68, s68, s{WV}")
        A("s_lshl_b32 s68, s68, 7")
        A(f"s_add_u32 s68, s68, {WS_PROF}")
        A("s_waitcnt lgkmcnt(0)")
        A("v_mov_b32 v2, 0")
        A("v_mov_b32 v3, s64")
        A(f"buffer_store_dword v3, v2, {srd(WS)}, s68 offen")
        A("v_mov_b32 v3, s66")
        A(f"buffer_store_dword v3, v2, {srd(WS)}, s68 offen offset:4")
        A(f"s_mov_b32 s{STAMP0}, s36")
        A("v_mov_b32 v3, s38")
        A(f"buffer_store_dword v3, v2, {srd(WS)}, s68 offen offset:124")
        for q in range(Ctx.nstamp):
            A(f"v_mov_b32 v3, s{STAMP0+2*q}")
            A(f"buffer_store_dword v3, v2, {srd(WS)}, s68 offen offset:{8+4*q}")

WS_FLAG = 13 << 20
STAG = 71
def flag_store(A, val, vt):
    A(f"v_mov_b32 v{vt}, s{STAG}")
    A(f"s_lshl_b32 s{T0}, s2, 7")
    A(f"s_add_u32 s{T0}, s{T0}, {WS_FLAG + val*32768}")
    A(f"v_mov_b32 v{vt+1}, s{T0}")
    A("s_mov_b64 exec, 1")
    A(f"buffer_store_dword v{vt}, v{vt+1}, {srd(WS)}, 0 offen sc1")
    A("s_mov_b64 exec, -1")
def set_flag(A, val, vt):
    lab = A.label("L_nf")
    with nocount(A):
        A(f"s_cmp_lg_u32 s{WV}, 0")
        A(f"s_cbranch_scc1 {lab}")
        flag_store(A, val, vt)
        A(f"{lab}:")
def arrive_flag(A, val, cnt_addr, vt):
    lab = A.label("L_na")
    with nocount(A):
        A(f"v_mov_b32 v{vt}, {cnt_addr}")
        A(f"v_mov_b32 v{vt+1}, 1")
        A("s_mov_b64 exec, 1")
        A(f"ds_add_rtn_u32 v{vt+1}, v{vt}, v{vt+1}")
        A("s_mov_b64 exec, -1")
        A("s_waitcnt lgkmcnt(0)")
        A(f"v_readfirstlane_b32 s{T0}, v{vt+1}")
        A(f"s_cmp_lg_u32 s{T0}, 7")
        A(f"s_cbranch_scc1 {lab}")
        flag_store(A, val, vt)
        A(f"{lab}:")

def poll_issue(A, phase, mkid, vt):
    lab = A.label("L_pi")
    with nocount(A):
        A(f"s_cmp_lg_u32 s{WV}, 0")
        A(f"s_cbranch_scc1 {lab}")
        mkid(A, vt + 1)
        A(f"v_lshlrev_b32 v{vt+1}, 7, v{vt+1}")
        A(f"v_add_u32 v{vt+1}, {WS_FLAG + phase*32768}, v{vt+1}")
        A(f"buffer_load_dword v{vt}, v{vt+1}, {srd(WS)}, 0 offen sc1")
        A(f"{lab}:")
    return A.vm_tag()
def poll_check(A, vt, tag):
    lab = A.label("L_np"); loop = A.label("L_poll"); chk = A.label("L_chk")
    with nocount(A):
        A(f"s_cmp_lg_u32 s{WV}, 0")
        A(f"s_cbranch_scc1 {lab}")
        A(f"s_mov_b32 s{SPOLL}, 0")
        A.wait_vm(tag, "lo")
        A(f"s_branch {chk}")
        A(f"{loop}:")
        A(f"buffer_load_dword v{vt}, v{vt+1}, {srd(WS)}, 0 offen sc1")
        A("s_waitcnt vmcnt(0)")
        A(f"{chk}:")
        A(f"v_cmp_ne_u32 vcc, s{STAG}, v{vt}")
        A("s_nop 1")
        A("s_cmp_eq_u64 vcc, 0")
        A(f"s_cbranch_scc1 {lab}")
        A(f"s_add_u32 s{SPOLL}, s{SPOLL}, 1")
        A(f"s_cmp_lt_u32 s{SPOLL}, 100000")
        A(f"s_cbranch_scc1 {loop}")
        A(f"{lab}:")
def wpoll_issue(A, phase, mkid, vt):
    mkid(A, vt + 1)
    A(f"v_lshlrev_b32 v{vt+1}, 7, v{vt+1}")
    A(f"v_add_u32 v{vt+1}, {WS_FLAG + phase*32768}, v{vt+1}")
    A(f"buffer_load_dword v{vt}, v{vt+1}, {srd(WS)}, 0 offen sc1")
    return A.vm_tag()
def wpoll_check(A, vt, tag):
    lab = A.label("L_np"); loop = A.label("L_poll"); chk = A.label("L_chk")
    A(f"s_mov_b32 s{SPOLL}, 0")
    A.wait_vm(tag)
    with nocount(A):
        A(f"s_branch {chk}")
        A(f"{loop}:")
        A(f"buffer_load_dword v{vt}, v{vt+1}, {srd(WS)}, 0 offen sc1")
        A("s_waitcnt vmcnt(0)")
        A(f"{chk}:")
        A(f"v_cmp_ne_u32 vcc, s{STAG}, v{vt}")
        A("s_nop 1")
        A("s_cmp_eq_u64 vcc, 0")
        A(f"s_cbranch_scc1 {lab}")
        A(f"s_add_u32 s{SPOLL}, s{SPOLL}, 1")
        A(f"s_cmp_lt_u32 s{SPOLL}, 100000")
        A(f"s_cbranch_scc1 {loop}")
        A(f"{lab}:")
def load_epoch(A):
    A(f"s_mov_b32 s{SPOLL}, {WS_FLAG}")
    A(f"s_load_dword s{STAG}, s[{WS}:{WS+1}], s{SPOLL}")
def fix_epoch(A):
    A(f"s_add_u32 s{STAG}, s{STAG}, 0x9e3779b9")

def prologue(A, nwg, exit_label):
    if OPT["prof"]:
        A("s_memtime s[36:37]"); A("s_memrealtime s[38:39]")
        Ctx.nstamp = 1; Ctx.names.append("start")
    A(f"s_cmp_ge_u32 s2, {nwg}")
    A(f"s_cbranch_scc1 {exit_label}")
    A("s_load_dwordx16 s[72:87], s[0:1], 0")
    A("s_load_dwordx8 s[88:95], s[0:1], 64")
    A(f"s_load_dwordx2 s[{WS}:{WS+1}], s[0:1], 96")
    A("v_and_b32 v1, 63, v0")
    A("v_lshrrev_b32 v2, 6, v0")
    A(f"v_readfirstlane_b32 s{WV}, v2")
    for reg, size in ((Q, S*D*2), (Kb, S*D*2), (Vb, S*D*2), (SHK, D*8), (SSMK, D*S*2), (W13, D*F*2), (W2, F*D*2), (OUT, S*D*2), (WS, WS_SIZE)):
        A(f"s_mov_b32 s{reg+2}, {size}")
        A(f"s_mov_b32 s{reg+3}, 0x00020000")
    A(f"s_and_b32 s{SXCD}, s2, 7")
    A(f"s_lshr_b32 s{SIDX}, s2, 3")
    div7(A, SIQ, SIDX)
    A(f"s_mul_i32 s{SJR}, s{SIQ}, 7")
    A(f"s_sub_u32 s{SJR}, s{SIDX}, s{SJR}")

def take_ptrs(A):
    A("s_waitcnt lgkmcnt(0)")
    for reg, slot in ((Q, 0), (W13, 7), (SW3, 8), (Kb, 1), (Vb, 2), (SHK, 3), (SSMK, 4), (SD, 5), (W2, 9), (OUT, 10)):
        A(f"s_mov_b64 s[{reg}:{reg+1}], s[{72+2*slot}:{73+2*slot}]")

def stats_load(A, B):
    A(f"v_and_b32 v{B+2}, 31, v1")
    A(f"v_lshrrev_b32 v{B+3}, 5, v1")
    A(f"s_and_b32 s{T0}, s{SXCD}, 3")
    A(f"s_lshl_b32 s{T0}, s{T0}, 9")
    A(f"s_lshr_b32 s{T1}, s{SXCD}, 2")
    A(f"s_lshl_b32 s{T1}, s{T1}, 8")
    A(f"s_add_u32 s{T0}, s{T0}, s{T1}")
    A(f"s_lshl_b32 s{T1}, s{SIDX}, 3")
    A(f"s_add_u32 s{T0}, s{T0}, s{T1}")
    A(f"s_lshl_b32 s{T1}, s{WV}, 1")
    A(f"s_add_u32 s{T0}, s{T0}, s{T1}")
    A(f"s_sub_u32 s{T0}, s{T0}, 8")
    A(f"v_add_u32 v{B+3}, s{T0}, v{B+3}")
    A(f"v_mul_u32_u24 v{B+4}, 896, v{B+3}")
    A(f"v_lshl_add_u32 v{B+4}, v{B+2}, 5, v{B+4}")
    A(f"v_cmp_gt_u32 vcc, 28, v{B+2}")
    A(f"v_mov_b32 v{B+5}, 0x7fffff00")
    A(f"v_cndmask_b32 v{B+4}, v{B+5}, v{B+4}, vcc")
    A(f"v_cndmask_b32 v{B+6}, 0, 1.0, vcc")
    A(f"buffer_load_dwordx4 v[{B+8}:{B+11}], v{B+4}, {srd(Q)}, 0 offen")
    A(f"buffer_load_dwordx4 v[{B+12}:{B+15}], v{B+4}, {srd(Q)}, 0 offen offset:16")

def only(A, cond, fn):
    l = A.label("L_o")
    A(f"s_cmp_ge_u32 s{WV}, 4")
    A(f"s_cbranch_scc{'1' if cond == 'lo' else '0'} {l}")
    A.role = cond
    fn()
    A.role = None
    A(f"{l}:")
def nafter(A, tag, role):
    return A.vm - tag[0] + (A.vm_lo - tag[1] if role == "lo" else A.vm_hi - tag[2])

def free_path(A):
    lab_nc = A.label("L_fc")
    take_ptrs(A)
    load_epoch(A)
    if OPT["codepf"]:
        A(f"s_getpc_b64 s[{T2}:{T3}]")
        A("L_pc:")
        A(f"s_sub_u32 s{T2}, s{T2}, L_pc-{NAME}_kernel")
        A(f"s_subb_u32 s{T3}, s{T3}, 0")
        A("v_lshlrev_b32 v2, 6, v0")
        A(f"v_min_u32 v2, L_codeend-{NAME}_kernel-4, v2")
        A(f"global_load_dword v250, v2, s[{T2}:{T3}]")
    A(f"s_and_b32 s{SI}, s{SXCD}, 3")
    A(f"s_lshl_b32 s{SI}, s{SI}, 2")
    A(f"s_add_u32 s{SI}, s{SI}, s{SJR}")
    A(f"s_cmp_ge_u32 s{SI}, 7")
    A(f"s_cselect_b32 s{W13}, s{SW3}, s{W13}")
    A(f"s_cselect_b32 s{W13+1}, s{SW3+1}, s{W13+1}")
    A(f"s_cselect_b32 s{SC}, 7, 0")
    A(f"s_cselect_b32 s{SOX}, {F*8}, 0")
    A(f"s_sub_u32 s{SJ}, s{SI}, s{SC}")
    A(f"s_lshr_b32 s{SC}, s{SXCD}, 2")
    A(f"s_mul_i32 s{SC}, s{SC}, 7")
    A(f"s_add_u32 s{SJ}, s{SJ}, s{SC}")
    A("v_lshrrev_b32 v2, 4, v0")
    A("v_and_b32 v3, 15, v0")
    A("v_mul_u32_u24 v4, 3584, v2")
    A("v_lshl_add_u32 v4, v3, 4, v4")
    A(f"s_lshl_b32 s{SOW}, s{SJ}, 8")
    only(A, "hi", lambda: stats_load(A, 180))
    A(f"s_cmp_ge_u32 s{SI}, 14")
    A(f"s_cselect_b32 s{SOW}, 0x7ff00000, s{SOW}")
    tags = []
    for it in range(14):
        A(f"buffer_load_dwordx4 v[{100+4*it}:{103+4*it}], v4, {srd(W13)}, s{SOW} offen")
        tags.append(A.vm_tag())
        if it < 13:
            A(f"s_add_u32 s{SOW}, s{SOW}, {32*3584}")
    with nocount(A):
        only(A, "hi", lambda: stats_compute(A, 180, 14))
    A.vm_hi = tags[0][2]
    for e in range(8):
        A(f"v_mov_b32 v{8+e}, 0")
    for it in range(14):
        A.wait_vm(tags[it])
        for e in range(4):
            unpack(A, 16, 17, 100 + 4*it + e)
            A(f"v_add_f32 v{8+2*e}, v{8+2*e}, v16")
            A(f"v_add_f32 v{9+2*e}, v{9+2*e}, v17")
    A("v_lshlrev_b32 v5, 5, v0")
    A("ds_write_b128 v5, v[8:11]")
    A("ds_write_b128 v5, v[12:15] offset:16")
    A("s_waitcnt lgkmcnt(0)")
    fix_epoch(A)
    A("s_barrier")
    A(f"s_cmp_ge_u32 s{WV}, 2")
    A(f"s_cbranch_scc1 {lab_nc}")
    A(f"s_cmp_ge_u32 s{SI}, 14")
    A(f"s_cbranch_scc1 {lab_nc}")
    A("v_lshlrev_b32 v5, 2, v0")
    for r in range(32):
        A(f"ds_read_b32 v{32+r}, v5 offset:{r*512}")
    A("s_waitcnt lgkmcnt(0)")
    for r in range(1, 32):
        A(f"v_add_f32 v32, v32, v{32+r}")
    round_bf16(A, 33, 32)
    A("v_sub_f32 v32, v32, v33")
    round_bf16(A, 34, 32)
    A("v_sub_f32 v32, v32, v34")
    A("v_cvt_pk_bf16_f32 v36, v33, v34")
    A("v_cvt_pk_bf16_f32 v37, v32, 0")
    A("v_lshlrev_b32 v5, 3, v0")
    A(f"s_lshl_b32 s{SOW}, s{SJ}, 10")
    A(f"s_add_u32 s{SOW}, s{SOW}, s{SOX}")
    A(f"s_add_u32 s{SOW}, s{SOW}, {WS_CS}")
    A(f"buffer_store_dwordx2 v[36:37], v5, {srd(WS)}, s{SOW} offen sc1")
    A(f"{lab_nc}:")
    A("s_waitcnt vmcnt(0)")
    A("s_barrier")
    set_flag(A, 1, 2)
    if OPT["ftouch"]:
        A(f"s_sub_u32 s{T0}, s2, 224")
        A("v_lshlrev_b32 v6, 7, v0")
        A(f"s_mul_i32 s{T1}, s{T0}, {D*S*2//32}")
        A("v_cmp_gt_u32 vcc, 448, v0")
        A("v_mov_b32 v7, 0x7fffff00")
        A("v_cndmask_b32 v7, v7, v6, vcc")
        A(f"buffer_load_dword v251, v7, {srd(SSMK)}, s{T1} offen")
        A(f"s_mul_i32 s{T1}, s{T0}, {F*D*2//32}")
        A("v_cmp_gt_u32 vcc, 392, v0")
        A("v_mov_b32 v7, 0x7fffff00")
        A("v_cndmask_b32 v7, v7, v6, vcc")
        A(f"buffer_load_dword v252, v7, {srd(W2)}, s{T1} offen")
    A("s_cmp_lg_u32 s2, 255")
    A("s_cbranch_scc1 L_exit")
    lab_e = A.label("L_ep"); lab_l = A.label("L_epl")
    A("v_and_b32 v2, 255, v0")
    A("v_lshlrev_b32 v2, 7, v2")
    A(f"v_add_u32 v2, {WS_FLAG + 32768}, v2")
    A(f"s_mov_b32 s{SPOLL}, 0")
    A(f"{lab_l}:")
    A("s_sleep 32")
    A(f"buffer_load_dword v3, v2, {srd(WS)}, 0 offen sc1")
    A("s_waitcnt vmcnt(0)")
    A(f"v_cmp_ne_u32 vcc, s{STAG}, v3")
    A("s_nop 1")
    A("s_cmp_eq_u64 vcc, 0")
    A(f"s_cbranch_scc1 {lab_e}")
    A(f"s_add_u32 s{SPOLL}, s{SPOLL}, 1")
    A(f"s_cmp_lt_u32 s{SPOLL}, 100000")
    A(f"s_cbranch_scc1 {lab_l}")
    A(f"{lab_e}:")
    A("s_barrier")
    A(f"s_cmp_lg_u32 s{WV}, 0")
    A("s_cbranch_scc1 L_exit")
    A(f"v_mov_b32 v2, {WS_FLAG}")
    A(f"v_mov_b32 v3, s{STAG}")
    A("s_mov_b64 exec, 1")
    A(f"buffer_store_dword v3, v2, {srd(WS)}, 0 offen sc1")

REG = dict(a=16384, b=65536, c=32768, d=81920, e=0, f=49152, g=98304)
UNIT_REG = "abcdefg"
CB = 114688
CH_STRIDE = 17664
R0_OFF, R1_OFF, H0_OFF, H1A_OFF = CB + 0, CB + 4640, CB + 9280, CB + 13520
CNT_OFF = CB + 35328
ZB = CB + 36864
WR = 128
VW2, W2A = 50, 52
VHL = 56

def busy_path(A):
    A(f"s_and_b32 s{T0}, s{SXCD}, 3")
    A(f"s_lshl_b32 s{T0}, s{T0}, 2")
    A(f"s_add_u32 s{SI}, s{T0}, s{SIQ}")
    A(f"s_lshr_b32 s{T0}, s{SXCD}, 2")
    A(f"s_mul_i32 s{T0}, s{T0}, 7")
    A(f"s_add_u32 s{SJ}, s{T0}, s{SJR}")
    rm = OPT["rotmode"]
    if rm == 0:
        A(f"s_mov_b32 s{SC}, 0")
    elif rm == 7:
        A(f"s_lshl_b32 s{T0}, s{SIQ}, 1")
        A(f"s_add_u32 s{T0}, s{T0}, s{SJR}")
        A(f"s_add_u32 s{T0}, s{T0}, s{SXCD}")
        div7(A, T1, T0)
        A(f"s_mul_i32 s{T1}, s{T1}, 7")
        A(f"s_sub_u32 s{SC}, s{T0}, s{T1}")
    elif rm == 2:
        A(f"s_add_u32 s{T0}, s{SIQ}, s{SJR}")
        A(f"s_and_b32 s{T0}, s{T0}, 1")
        A(f"s_mul_i32 s{SC}, s{T0}, 3")
    elif rm == 3:
        A(f"s_add_u32 s{T0}, s{SIQ}, s{SJR}")
        A(f"s_mul_i32 s{T1}, s{T0}, 86")
        A(f"s_lshr_b32 s{T1}, s{T1}, 8")
        A(f"s_mul_i32 s{T1}, s{T1}, 3")
        A(f"s_sub_u32 s{T0}, s{T0}, s{T1}")
        A(f"s_lshl_b32 s{SC}, s{T0}, 1")
    elif rm == 4:
        A(f"s_add_u32 s{T0}, s{SIQ}, s{SJR}")
        A(f"s_and_b32 s{T0}, s{T0}, 3")
        A(f"s_lshl_b32 s{SC}, s{T0}, 1")
    A(f"s_cmp_ge_u32 s{WV}, 4")
    A(f"s_cselect_b32 s{T2}, 4, 0")
    A(f"s_lshl_b32 s{T0}, s{SI}, 7")
    A(f"s_lshl_b32 s{T1}, s{WV}, 4")
    A(f"s_add_u32 s{T0}, s{T0}, s{T1}")
    A(f"s_mul_i32 s{SOX}, s{T0}, 896")
    A(f"s_and_b32 s{T0}, s{WV}, 3")
    A(f"s_mul_i32 s{SOW}, s{T0}, {16*3584}")
    A(f"s_lshl_b32 s{T1}, s{SJ}, 8")
    A(f"s_add_u32 s{SOW}, s{SOW}, s{T1}")
    A(f"s_lshl_b32 s{SMX}, s{WV}, 11")
    A(f"s_lshl_b32 s{SMW}, s{T0}, 12")
    A(f"s_mul_i32 s{T1}, s{T2}, {49152//4}")
    A(f"s_add_u32 s{SMW}, s{SMW}, s{T1}")
    A(f"s_add_u32 s{SMW}, s{SMW}, 49152")
    VX, VW = 2, 4
    A("v_lshrrev_b32 v8, 3, v1")
    A("v_and_b32 v9, 7, v1")
    A("v_lshrrev_b32 v10, 1, v8")
    A("v_xor_b32 v10, v9, v10")
    A("v_mul_u32_u24 v11, 896, v8")
    A(f"v_lshl_add_u32 v{VX}, v10, 4, v11")
    A("v_xor_b32 v10, 4, v10")
    A(f"v_lshl_add_u32 v{VX+1}, v10, 4, v11")
    A(f"v_add_u32 v{VX+1}, {8*896-1024}, v{VX+1}")
    A("v_lshrrev_b32 v8, 4, v1")
    A("v_bfe_u32 v9, v1, 1, 3")
    A("v_xor_b32 v9, v9, v8")
    A(f"v_xor_b32 v9, s{T2}, v9")
    A("v_and_b32 v10, 1, v1")
    A("v_lshlrev_b32 v10, 4, v10")
    A("v_lshl_add_u32 v10, v9, 5, v10")
    A("v_mul_u32_u24 v11, 3584, v8")
    A(f"v_add_u32 v{VW}, v10, v11")
    for e in range(1, 4):
        A(f"v_add_u32 v{VW+e}, {e*(14336-1024)}, v{VW}")
    take_ptrs(A)
    A(f"s_cmp_ge_u32 s{WV}, 4")
    A(f"s_cselect_b32 s{W13}, s{SW3}, s{W13}")
    A(f"s_cselect_b32 s{W13+1}, s{SW3+1}, s{W13+1}")
    stamp(A, "kernarg", 5)
    load_epoch(A)
    dma_tag = {}
    def dma_parts(stage):
        slot = stage % 3
        def p0():
            A(f"s_mul_i32 s{T5}, s{SC}, {64*3584}")
            A(f"s_add_u32 s{T5}, s{T5}, s{SOW}")
            A(f"s_add_u32 m0, s{SMW}, {slot*16384}")
            for e in range(2):
                A(f"buffer_load_dwordx4 v{VW+e}, {srd(W13)}, s{T5} offen offset:{e*1024} lds")
        def p1():
            A(f"s_add_u32 m0, s{SMW}, {slot*16384}")
            for e in range(2, 4):
                A(f"buffer_load_dwordx4 v{VW+e}, {srd(W13)}, s{T5} offen offset:{e*1024} lds")
        def p2():
            A(f"s_lshl_b32 s{T5}, s{SC}, 7")
            A(f"s_add_u32 s{T5}, s{T5}, s{SOX}")
            A(f"s_add_u32 m0, s{SMX}, {slot*16384}")
            for e in range(2):
                A(f"buffer_load_dwordx4 v{VX+e}, {srd(Q)}, s{T5} offen offset:{e*1024} lds")
            dma_tag[stage] = A.vm_tag()
            A(f"s_add_u32 s{SC}, s{SC}, 1")
            A(f"s_cmp_ge_u32 s{SC}, 7")
            A(f"s_cselect_b32 s{SC}, 0, s{SC}")
        return [p0, p1, p2]
    def dma(stage):
        for p in dma_parts(stage): p()
    PB = 128
    only(A, "hi", lambda: stats_load(A, PB))
    tag_sl = A.vm_tag()
    dma(0)
    stamp(A, "dma0_issued", 5)
    XA, WA = 8, 12
    A(f"s_and_b32 s{SSH}, s{WV}, 1")
    A(f"s_lshr_b32 s{SKQ}, s{WV}, 1")
    A("v_and_b32 v14, 31, v1")
    A("v_lshrrev_b32 v15, 5, v1")
    A("v_bfe_u32 v16, v1, 1, 3")
    A("v_xor_b32 v16, v16, v15")
    A(f"s_lshl_b32 s{T0}, s{SSH}, 13")
    A(f"v_lshl_add_u32 v17, v14, 7, s{T0}")
    for ks in range(4):
        A(f"v_xor_b32 v18, {2*ks}, v16")
        A(f"v_lshl_add_u32 v{XA+ks}, v18, 4, v17")
    A("v_bfe_u32 v16, v1, 4, 1")
    A("v_bfe_u32 v17, v1, 2, 2")
    A("v_lshl_add_u32 v18, v15, 3, v17")
    A("v_lshlrev_b32 v18, 8, v18")
    A("v_mul_u32_u24 v19, 49152, v16")
    A("v_add_u32 v18, v18, v19")
    A("v_add_u32 v18, 49152, v18")
    A("v_and_b32 v19, 1, v1")
    A("v_lshlrev_b32 v19, 4, v19")
    A("v_bfe_u32 v20, v1, 1, 1")
    A("v_lshl_add_u32 v19, v20, 3, v19")
    A("v_add_u32 v18, v18, v19")
    A("v_lshlrev_b32 v16, 2, v16")
    A("v_xor_b32 v16, v16, v17")
    A(f"s_lshl_b32 s{T0}, s{SKQ}, 1")
    A(f"v_xor_b32 v16, s{T0}, v16")
    A(f"v_lshl_add_u32 v{WA}, v16, 5, v18")
    A("v_xor_b32 v16, 1, v16")
    A(f"v_lshl_add_u32 v{WA+1}, v16, 5, v18")
    A(f"s_mul_i32 s{T0}, s{SKQ}, 448")
    A(f"s_lshl_b32 s{T1}, s{SSH}, 3")
    A(f"s_add_u32 s{T0}, s{T0}, s{T1}")
    A(f"s_mul_i32 s{T0}, s{T0}, 896")
    A(f"s_lshl_b32 s{T1}, s{SJR}, 7")
    A(f"s_add_u32 s{SOW2}, s{T0}, s{T1}")
    A(f"v_lshlrev_b32 v{VHL}, 4, v1")
    A("v_lshrrev_b32 v16, 3, v1")
    A("v_and_b32 v17, 7, v1")
    A("v_bfe_u32 v18, v1, 4, 1")
    A("v_lshlrev_b32 v18, 2, v18")
    A("v_xor_b32 v17, v17, v18")
    A("v_mul_u32_u24 v18, 896, v16")
    A(f"v_lshl_add_u32 v{VW2}, v17, 4, v18")
    A(f"v_add_u32 v{VW2+1}, {14336-1024}, v{VW2}")
    A("v_bfe_u32 v17, v1, 2, 2")
    A("v_lshlrev_b32 v18, 11, v15")
    A("v_lshl_add_u32 v18, v17, 7, v18")
    A("v_and_b32 v16, 1, v1")
    A("v_lshl_add_u32 v18, v16, 5, v18")
    A("v_bfe_u32 v16, v1, 4, 1")
    A("v_lshl_add_u32 v18, v16, 4, v18")
    A("v_bfe_u32 v16, v1, 1, 1")
    A("v_lshl_add_u32 v18, v16, 3, v18")
    A(f"s_lshl_b32 s{T0}, s{SKQ}, 12")
    A(f"v_add_u32 v18, s{T0}, v18")
    A("v_bfe_u32 v16, v1, 3, 1")
    A("v_xor_b32 v17, 1, v16")
    A(f"v_lshl_add_u32 v{W2A}, v16, 6, v18")
    A(f"v_lshl_add_u32 v{W2A+1}, v17, 6, v18")
    A(f"v_add_u32 v{W2A+2}, 65536, v{W2A}")
    A(f"v_add_u32 v{W2A+3}, 65536, v{W2A+1}")
    w2tag = {}
    def w2dma(lu):
        reg = REG[UNIT_REG[lu % 7]]
        A(f"s_add_u32 s{T3}, s{SOW2}, {lu*32*896}")
        A(f"s_add_u32 m0, s{SMX}, {reg}")
        for e in range(2):
            A(f"buffer_load_dwordx4 v{VW2+e}, {srd(W2)}, s{T3} offen offset:{e*1024} lds")
        w2tag[lu] = A.vm_tag()
    def w2dma_both(lu):
        reg = REG[UNIT_REG[lu % 7]]
        for hf in range(2):
            A(f"s_add_u32 s{T3}, s{SOW2}, {lu*32*896 + hf*896*896}")
            A(f"s_add_u32 m0, s{SMX}, {reg + hf*8192}")
            for e in range(2):
                A(f"buffer_load_dwordx4 v{VW2+e}, {srd(W2)}, s{T3} offen offset:{e*1024} lds")
        w2tag[lu] = A.vm_tag()
    def w2read(lu, tl, dstbase):
        reg = REG[UNIT_REG[lu % 7]]
        hi = reg >= 65536
        for dt in range(2):
            for sec in range(2):
                b = dstbase + 4*dt + 2*sec
                A(f"ds_read_b64_tr_b16 v[{b}:{b+1}], v{W2A + 2*hi + dt} offset:{reg - 65536*hi + tl*1024 + sec*512}")
    def w2toreg(lu):
        for tl in range(2):
            w2read(lu, tl, WR + ((lu - 7)*2 + tl)*8)
    A("s_waitcnt lgkmcnt(0)")
    fix_epoch(A)
    A("v_mov_b32 v58, 0")
    stamp(A, "issued"); stamp(A, "setup_done", 5)
    A("s_barrier")
    stamp(A, "bar0", 5)
    only(A, "hi", lambda: stats_compute(A, PB, nafter(A, tag_sl, "hi")))
    tag_ss = A.vm_tag()
    stamp(A, "stats_done", 5)
    dma(1)
    stamp(A, "dma1_issued", 5)
    FR = [16, 32]
    ACC = 64
    def reads(stage, ks, fs):
        slot = stage % 3
        b = FR[fs]
        for tt in range(2):
            for sec in range(2):
                A(f"ds_read_b64_tr_b16 v[{b+8+4*tt+2*sec}:{b+9+4*tt+2*sec}], v{WA+tt} offset:{slot*16384 + ks*4096 + sec*1024}")
        for nt in range(2):
            A(f"ds_read_b128 v[{b+4*nt}:{b+4*nt+3}], v{XA+ks} offset:{slot*16384 + nt*4096}")
        return A.lg_tag()
    def mfmas(first, fs):
        b = FR[fs]
        for tt in range(2):
            for nt in range(2):
                a = ACC + (tt*2 + nt)*16
                c = "0" if first else f"v[{a}:{a+15}]"
                A(f"v_mfma_f32_32x32x16_bf16 v[{a}:{a+15}], v[{b+8+4*tt}:{b+11+4*tt}], v[{b+4*nt}:{b+4*nt+3}], {c}")
    CS, STT, KC, BM, T = 192, 200, 204, 208, 216
    def epi_operands():
        A(f"s_lshl_b32 s{T0}, s{SI}, 10")
        A(f"s_lshl_b32 s{T1}, s{SSH}, 9")
        A(f"s_add_u32 s{T0}, s{T0}, s{T1}")
        A(f"s_add_u32 s{T0}, s{T0}, {WS_STATS}")
        A("v_lshlrev_b32 v48, 3, v14")
        for nt in range(2):
            A(f"buffer_load_dwordx2 v[{STT+2*nt}:{STT+2*nt+1}], v48, {srd(WS)}, s{T0} offen offset:{nt*256} sc1")
        A(f"s_lshl_b32 s{T0}, s{SJ}, 10")
        A(f"s_lshl_b32 s{T1}, s{SKQ}, 8")
        A(f"s_add_u32 s{T0}, s{T0}, s{T1}")
        A(f"s_add_u32 s{T0}, s{T0}, {WS_CS}")
        A("v_and_b32 v48, 3, v1")
        A("v_bfe_u32 v49, v1, 2, 1")
        A("v_lshl_add_u32 v48, v49, 3, v48")
        A("v_bfe_u32 v49, v1, 3, 1")
        A("v_lshl_add_u32 v48, v49, 2, v48")
        A("v_lshlrev_b32 v48, 3, v48")
        A("v_bfe_u32 v49, v1, 4, 1")
        A(f"v_mul_u32_u24 v49, {F*8}, v49")
        A("v_add_u32 v48, v48, v49")
        A("v_lshl_add_u32 v48, v15, 30, v48")
        for tt in range(2):
            A(f"buffer_load_dwordx2 v[{CS+4*tt}:{CS+4*tt+1}], v48, {srd(WS)}, s{T0} offen offset:{tt*128} sc1")
        Ctx.tag_epi = A.vm_tag()
        for tt in range(2):
            A(f"v_mov_b32 v{CS+4*tt+2}, 0"); A(f"v_mov_b32 v{CS+4*tt+3}, 0")
            A(f"v_mov_b32 v{BM+4*tt+2}, 0"); A(f"v_mov_b32 v{BM+4*tt+3}, 0")
    def epi_consts():
        A.wait_vm(Ctx.tag_epi)
        for nt in range(2):
            A(f"v_xor_b32 v{BM+4*nt}, 0x80000000, v{STT+2*nt}")
            A(f"v_lshrrev_b32 v{BM+4*nt+1}, 16, v{BM+4*nt}")
            A(f"v_or_b32 v{BM+4*nt}, v{BM+4*nt}, v{BM+4*nt+1}")
            A(f"v_mov_b32 v{BM+4*nt+1}, v{BM+4*nt}")
            A(f"v_mul_f32 v{KC+2*nt}, {hex(f2u(-1.4426950408889634))}, v{STT+2*nt+1}")
            A(f"v_mul_f32 v{KC+2*nt+1}, v{STT+2*nt+1}, v{STT+2*nt+1}")
            A(f"v_rcp_f32 v{KC+2*nt+1}, v{KC+2*nt+1}")
    def conv_zero():
        A("v_mov_b32 v252, 0"); A("v_mov_b32 v253, 0"); A("v_mov_b32 v254, 0"); A("v_mov_b32 v255, 0")
        A(f"s_bfe_u32 s{T0}, s{WV}, 0x10001")
        A(f"s_mul_i32 s{T0}, s{T0}, {CH_STRIDE}")
        def zr():
            A(f"s_mul_i32 s{T1}, s{SSH}, {R1_OFF-R0_OFF}")
            A(f"s_add_u32 s{T1}, s{T1}, {R0_OFF+4096}")
            A(f"s_add_u32 s{T1}, s{T1}, s{T0}")
            A(f"v_lshl_add_u32 v48, v1, 4, s{T1}")
            A("s_mov_b64 exec, 0xfffffff")
            A("ds_write_b128 v48, v[252:255]")
            A("s_mov_b64 exec, -1")
        def zh():
            A(f"s_mul_i32 s{T1}, s{SSH}, {H1A_OFF-4-H0_OFF}")
            A(f"s_add_u32 s{T1}, s{T1}, {H0_OFF-64}")
            A(f"s_add_u32 s{T1}, s{T1}, s{T0}")
            A(f"v_lshl_add_u32 v48, v1, 2, s{T1}")
            A("s_mov_b64 exec, 0xffff")
            A("ds_write_b32 v48, v252")
            A("s_mov_b64 exec, -1")
        lg = A.lg
        only(A, "lo", zr)
        A.lg = lg
        only(A, "hi", zh)
        A(f"v_mov_b32 v48, {CNT_OFF}")
        A("ds_write_b64 v48, v[252:253]")
    def conv_hdma():
        A(f"s_lshl_b32 s{T0}, s2, 13")
        A("v_lshlrev_b32 v48, 4, v0")
        A(f"s_lshr_b32 s{T1}, s{WV}, 2")
        A(f"s_mul_i32 s{T1}, s{T1}, {CH_STRIDE}")
        A(f"s_and_b32 s{T2}, s{WV}, 3")
        A(f"s_lshl_b32 s{T2}, s{T2}, 10")
        A(f"s_add_u32 s{T2}, s{T2}, s{T1}")
        A(f"s_add_u32 m0, s{T2}, {H0_OFF}")
        A(f"buffer_load_dwordx4 v48, {srd(SSMK)}, s{T0} offen lds")
        A(f"s_add_u32 m0, s{T2}, {H1A_OFF}")
        A(f"s_add_u32 s{T0}, s{T0}, 4")
        A(f"buffer_load_dwordx4 v48, {srd(SSMK)}, s{T0} offen lds")
        conv_d0()
        Ctx.tag_hd = A.vm_tag()
    def conv_d0():
        lab = A.label("L_nod0")
        with nocount(A):
            A(f"s_and_b32 s{T0}, s{WV}, 3")
            A(f"s_cmp_lg_u32 s{T0}, 0")
            A(f"s_cbranch_scc1 {lab}")
            A(f"s_lshr_b32 s{T1}, s{WV}, 2")
            A(f"s_mul_i32 s{T1}, s{T1}, {CH_STRIDE}")
            A(f"s_add_u32 m0, s{T1}, {H1A_OFF-4}")
            A(f"s_lshl_b32 s{T0}, s2, 13")
            A("v_lshlrev_b32 v48, 4, v0")
            A("s_mov_b64 exec, 1")
            A(f"buffer_load_dword v48, {srd(SSMK)}, s{T0} offen lds")
            A("s_mov_b64 exec, -1")
            A(f"{lab}:")
    KVR_ = 240
    def conv_kvload():
        A(f"s_lshl_b32 s{T0}, s2, 13")
        A("v_lshlrev_b32 v48, 4, v0")
        A("v_and_b32 v49, 255, v0")
        A("v_cmp_eq_u32 vcc, 255, v49")
        A("v_add_u32 v49, 16, v48")
        A("v_mov_b32 v245, 0x7fffff00")
        A("v_cndmask_b32 v49, v49, v245, vcc")
        A(f"buffer_load_dwordx4 v[{KVR_}:{KVR_+3}], v48, {srd(WS)}, s{T0} offen sc1")
        A(f"buffer_load_dword v{KVR_+4}, v49, {srd(WS)}, s{T0} offen sc1")
        Ctx.tag_kv = A.vm_tag()
    def id_p1(A, v):
        A(f"s_and_b32 s{T0}, s{SIQ}, 1")
        A(f"s_lshl_b32 s{T0}, s{T0}, 7")
        A(f"s_lshr_b32 s{T1}, s{SIQ}, 1")
        A(f"s_lshl_b32 s{T1}, s{T1}, 2")
        A(f"s_add_u32 s{T0}, s{T0}, s{T1}")
        A(f"s_and_b32 s{T1}, s{SXCD}, 3")
        A(f"s_add_u32 s{T0}, s{T0}, s{T1}")
        A(f"v_lshl_add_u32 v{v}, v1, 3, s{T0}")
        for mat in range(2):
            A(f"s_add_u32 s{T0}, s{SJR}, {7*mat}")
            A(f"s_and_b32 s{T1}, s{T0}, 3")
            A(f"s_lshl_b32 s{T1}, s{T1}, 3")
            A(f"s_lshr_b32 s{T0}, s{T0}, 2")
            A(f"s_add_u32 s{T0}, s{T0}, s{T1}")
            A(f"s_and_b32 s{T1}, s{SXCD}, 4")
            A(f"s_add_u32 s{T0}, s{T0}, s{T1}")
            A(f"s_add_u32 s{T0}, s{T0}, 224")
            A(f"v_mov_b32 v{v+1}, s{T0}")
            A(f"v_cmp_lt_u32 vcc, {15+mat}, v1")
            A(f"v_cndmask_b32 v{v}, v{v}, v{v+1}, vcc")
    def id_p2(A, v):
        A(f"s_lshr_b32 s{T0}, s2, 5")
        A(f"v_and_b32 v{v}, 31, v1")
        A(f"v_mul_u32_u24 v{v}, 7, v{v}")
        A(f"v_add_u32 v{v}, s{T0}, v{v}")
    def id_p3(A, v):
        A(f"s_bfe_u32 s{T0}, s{SSB}, 0x20001")
        A(f"s_mul_i32 s{T0}, s{T0}, 56")
        A(f"s_lshr_b32 s{T1}, s{SSB}, 3")
        A(f"s_add_u32 s{T0}, s{T0}, s{T1}")
        A(f"s_and_b32 s{T1}, s{SKQ}, 1")
        A(f"s_mul_i32 s{T1}, s{T1}, 24")
        A(f"s_add_u32 s{T0}, s{T0}, s{T1}")
        A(f"s_and_b32 s{T1}, s{WV}, 4")
        A(f"s_add_u32 s{T0}, s{T0}, s{T1}")
        A(f"v_and_b32 v{v}, 3, v1")
        A(f"v_lshl_add_u32 v{v}, v{v}, 3, s{T0}")
    def id_p4(A, v):
        A(f"s_lshl_b32 s{T0}, s{SJR}, 5")
        A(f"s_lshl_b32 s{T1}, s{WV}, 2")
        A(f"s_add_u32 s{T0}, s{T0}, s{T1}")
        A(f"v_and_b32 v{v}, 3, v1")
        A(f"v_add_u32 v{v}, s{T0}, v{v}")

    A.wait_vm(dma_tag[0])
    stamp(A, "dma0_landed", 5)
    A("s_barrier")
    stamp(A, "g1_start"); stamp(A, "g1_start", 2); stamp(A, "g1_start", 5)
    tag = reads(0, 0, 0)
    fs = 0
    side = {}
    def add(s, ks, fn): side.setdefault((s, ks), []).append(fn)
    tg = {}
    def at(idx): return (idx // 4, idx % 4)
    for i, p in enumerate(dma_parts(2)): add(0, i, p)
    def kvl():
        only(A, "lo", lambda: kv_load(A, PB)); tg["kvl"] = A.vm_tag()
    def kvc():
        only(A, "lo", lambda: kv_compute(A, PB, nafter(A, tg["kvl"], "lo"))); tg["kvs"] = A.vm_tag()
    for s in range(4):
        ps = dma_parts(s + 3)
        add(s, 3, ps[0]); add(s + 1, 0, ps[1]); add(s + 1, 1, ps[2])
    add(*at(OPT["kvl"]), kvl)
    add(1, 3, lambda: set_flag(A, 1, 48))
    add(*at(OPT["kvc"]), kvc)
    ptag = {}
    add(3, 3, lambda: ptag.__setitem__(1, poll_issue(A, 1, id_p1, 57)))
    add(OPT["f2"], 3, lambda: set_flag(A, 2, 48))
    add(4, 3, epi_operands)
    add(4, 3, lambda: ptag.__setitem__(2, poll_issue(A, 2, id_p2, 57)))
    add(5, 0, lambda: w2dma(7)); add(5, 1, lambda: w2dma(8))
    add(5, 3, conv_kvload)
    add(5, 3, conv_hdma)
    add(5, 3, conv_zero)
    add(6, 0, lambda: w2dma(9)); add(6, 1, lambda: w2dma(10))
    add(6, 1, epi_consts)
    def conv_kvwrite():
        A("v_lshrrev_b32 v48, 8, v0")
        A(f"v_mul_u32_u24 v48, {CH_STRIDE}, v48")
        A("v_and_b32 v49, 255, v0")
        A("v_lshl_add_u32 v48, v49, 4, v48")
        A(f"v_add_u32 v48, {CB}, v48")
        A.wait_vm(Ctx.tag_hd)
        for q in range(4):
            A(f"v_alignbit_b32 v{248+q}, v{KVR_+1+q}, v{KVR_+q}, 16")
        A(f"ds_write_b128 v48, v[{KVR_}:{KVR_+3}] offset:{R1_OFF-CB}")
        A(f"ds_write_b128 v48, v[248:251] offset:{R0_OFF-CB}")
    add(6, 2, conv_kvwrite)
    for s in range(7):
        for ks in range(4):
            if ks < 3:
                ntag = reads(s, ks + 1, fs ^ 1)
                A.wait_lg(tag)
            else:
                A("s_waitcnt lgkmcnt(0)")
                if s < 6:
                    t = dma_tag[s+1]
                    if s == 1: t = max(t, tag_ss)
                    if s == OPT["f2"]: t = max(t, tg["kvs"])
                    A.wait_vm(t)
                    if s == 4: poll_check(A, 57, ptag[1])
                    if s == 5: poll_check(A, 57, ptag[2])
                    stamp(A, f"st{s}_prebar", 2)
                    A("s_barrier")
                    stamp(A, f"st{s}_postbar", 2)
                    ntag = reads(s + 1, 0, fs ^ 1)
                else:
                    A("s_barrier")
            mfmas(s == 0 and ks == 0, fs)
            for fn in side.get((s, ks), []): fn()
            tag = ntag
            fs ^= 1
    for tt in range(2):
        for nt in range(2):
            a = ACC + (tt*2 + nt)*16
            A(f"v_mfma_f32_32x32x16_bf16 v[{a}:{a+15}], v[{CS+4*tt}:{CS+4*tt+3}], v[{BM+4*nt}:{BM+4*nt+3}], v[{a}:{a+15}]")
    stamp(A, "g1_mfma_end"); stamp(A, "g1_mfma_end", 3)
    if OPT["prio"]: A("s_setprio 2")
    for lu in (11, 12, 13): w2dma(lu)
    w2toreg(7); w2toreg(8)
    A(f"s_lshl_b32 s{T0}, s2, 2")
    A(f"s_load_dword s{SDV}, s[{SD}:{SD+1}], s{T0}")
    A(f"s_lshl_b32 s{T0}, s{SI}, 2")
    A(f"s_lshl_b32 s{T1}, s{SSH}, 1")
    A(f"s_add_u32 s{T0}, s{T0}, s{T1}")
    A(f"s_mul_i32 s{T0}, s{T0}, 112")
    A(f"s_lshl_b32 s{T1}, s{SJ}, 3")
    A(f"s_add_u32 s{T0}, s{T0}, s{T1}")
    A(f"s_lshl_b32 s{T1}, s{SKQ}, 1")
    A(f"s_add_u32 s{T0}, s{T0}, s{T1}")
    A(f"s_lshl_b32 s{T0}, s{T0}, 10")
    A(f"s_add_u32 s{T0}, s{T0}, {WS_H}")
    A(f"s_add_u32 s{T1}, s{T0}, {112*1024}")
    SCHB, SRH = 52, 53
    A(f"s_mul_i32 s{SCHB}, s{SSH}, {CH_STRIDE}")
    A(f"s_bfe_u32 s{SRH}, s{WV}, 0x10001")
    A(f"s_lshl_b32 s{T2}, s{SRH}, 8")
    A(f"s_add_u32 s{T2}, s{T2}, s{SCHB}")
    A("v_and_b32 v2, 15, v1")
    A("v_lshrrev_b32 v3, 4, v1")
    A("v_and_b32 v4, 1, v1")
    A(f"v_mul_u32_u24 v5, {H1A_OFF-4-H0_OFF}, v4")
    A(f"v_sub_u32 v5, {H1A_OFF-4-60}, v5")
    A("v_lshl_add_u32 v5, v2, 2, v5")
    A("v_lshl_add_u32 v5, v3, 4, v5")
    A(f"v_add_u32 v5, s{T2}, v5")
    A(f"v_mul_u32_u24 v6, {R1_OFF-R0_OFF}, v4")
    A(f"v_add_u32 v6, {R0_OFF+4032-3584}, v6")
    A("v_lshl_add_u32 v6, v3, 4, v6")
    A("v_lshrrev_b32 v7, 1, v2")
    A("v_lshlrev_b32 v13, 6, v7")
    A("v_sub_u32 v6, v6, v13")
    A(f"v_add_u32 v6, s{T2}, v6")
    A(f"s_lshl_b32 s{T2}, s{SKQ}, 10")
    A(f"s_sub_u32 s{T2}, s{SCHB}, s{T2}")
    A(f"s_add_u32 s{T2}, s{T2}, {R1_OFF+4080}")
    A(f"v_sub_u32 v13, s{T2}, v{VHL}")
    for tt in range(2):
        for nt in range(2):
            a = ACC + (tt*2 + nt)*16
            kc = f"v[{KC+2*nt}:{KC+2*nt+1}]"
            pk = OPT["pk"]
            if pk & 1:
                for r in range(0, 8, 2):
                    A(f"v_pk_mul_f32 v[{T+r}:{T+r+1}], v[{a+r}:{a+r+1}], {kc} op_sel_hi:[1,0]")
            else:
                for r in range(8): A(f"v_mul_f32 v{T+r}, v{a+r}, v{KC+2*nt}")
            for r in range(8):
                A(f"v_exp_f32 v{T+r}, v{T+r}")
            if pk & 2:
                for r in range(0, 8, 2):
                    A(f"v_pk_mul_f32 v[{a+r}:{a+r+1}], v[{a+r}:{a+r+1}], v[{a+8+r}:{a+9+r}]")
            else:
                for r in range(8): A(f"v_mul_f32 v{a+r}, v{a+r}, v{a+8+r}")
            if pk & 4:
                for r in range(0, 8, 2):
                    A(f"v_pk_fma_f32 v[{T+r}:{T+r+1}], v[{T+r}:{T+r+1}], {kc}, {kc} op_sel:[0,1,1] op_sel_hi:[1,1,1]")
            else:
                for r in range(8): A(f"v_fma_f32 v{T+r}, v{T+r}, v{KC+2*nt+1}, v{KC+2*nt+1}")
            for r in range(8):
                A(f"v_rcp_f32 v{T+r}, v{T+r}")
            if pk & 8:
                for r in range(0, 8, 2):
                    A(f"v_pk_mul_f32 v[{a+r}:{a+r+1}], v[{a+r}:{a+r+1}], v[{T+r}:{T+r+1}]")
            else:
                for r in range(8): A(f"v_mul_f32 v{a+r}, v{a+r}, v{T+r}")
            for q in range(4):
                A(f"v_cvt_pk_bf16_f32 v{a+8+q}, v{a+2*q}, v{a+2*q+1}")
            A(f"buffer_store_dwordx4 v[{a+8}:{a+11}], v{VHL}, {srd(WS)}, s{T0+nt} offen offset:{tt*1024} sc1")
    tag_h = A.vm_tag()
    if OPT["prio"]: A("s_setprio 0")
    stamp(A, "g1_epi_end"); stamp(A, "g1_epi_end", 3)
    TS = 1088
    Y = 16
    POOL = list(range(32, 48, 4)) + [240, 244, 248, 252] + list(range(64, 128, 4))
    def conv_variant(J, bx_at, by_at, arr_at, role):
        nf = max(J) + 1
        ml = []
        for rr in range(4):
            for t in range(nf):
                pairs = [(p, t) for p in range(t)] + [(t, q) for q in range(t + 1)]
                ml += [(rr, p, q) for p, q in pairs if (p + q) in J]
        loads = []
        for rr in range(4):
            for t in range(nf):
                loads += [(rr, "A", t), (rr, "B", t)]
        last_use = {}; first_use = {}
        for i, (rr, p, q) in enumerate(ml):
            for key in ((rr, "A", p), (rr, "B", q)):
                last_use[key] = i
                first_use.setdefault(key, i)
        loads.sort(key=lambda k: first_use[k])
        free = list(POOL); slot = {}; ltag = {}
        st = dict(li=0, waited=0)
        seen = set()
        def issue(maxn):
            n = 0
            while st["li"] < len(loads) and free and n < maxn:
                key = loads[st["li"]]; rr, kind, t = key
                sl = free.pop(0); slot[key] = sl
                if kind == "A":
                    for h in range(2):
                        A(f"ds_read_b64 v[{sl+2*h}:{sl+2*h+1}], v5 offset:{64*rr + 512*t + 8*h}")
                else:
                    A(f"ds_read_b128 v[{sl}:{sl+3}], v6 offset:{64*rr + 512*(7-t)}")
                ltag[key] = A.lg_tag()
                st["li"] += 1; n += 1
        extra = {}
        def ex(i, fn): extra.setdefault(i, []).append(fn)
        def bx():
            A.wait_vm(w2tag[13], role)
            A("s_waitcnt lgkmcnt(0)"); st["waited"] = A.lg
            A("s_barrier")
            stamp(A, "bx", 3)
        def by():
            A("s_waitcnt lgkmcnt(0)"); st["waited"] = A.lg
            A("s_barrier")
            stamp(A, "by", 3)
        def arr():
            A.wait_vm(tag_h, role)
            arrive_flag(A, 3, CNT_OFF, 8)
            st["waited"] = A.lg
            stamp(A, "arr3", 3)
        ex(bx_at, bx)
        n = len(ml)
        span = max(by_at - bx_at, 1)
        for k in range(10):
            ex(min(bx_at + (k*span)//12, by_at), (lambda k=k: w2read(9 + k // 2, k % 2, WR + (4 + k)*8)))
        ex(bx_at, lambda: w2dma(0)); ex(min(bx_at + 2, by_at), lambda: w2dma(1))
        ex(by_at, by)
        ex(arr_at, arr)
        def lrest(k):
            A.role = "lo"; w2dma_both(2 + k); A.role = None
        if role == "lo":
            for k in range(5):
                ex(min(by_at + 3*k, n), (lambda k=k: lrest(k)))
        issue(10)
        for fn in extra.get(-1, []): fn()
        for i, (rr, p, q) in enumerate(ml):
            ka, kb = (rr, "A", p), (rr, "B", q)
            while ka not in slot or kb not in slot:
                issue(1)
            need = max(ltag[ka], ltag[kb])
            if need > st["waited"]:
                A.wait_lg(need); st["waited"] = need
            u = J.index(p + q)
            c = f"v[{Y+4*u}:{Y+4*u+3}]" if u in seen else "0"
            seen.add(u)
            A(f"v_mfma_f32_16x16x32_bf16 v[{Y+4*u}:{Y+4*u+3}], v[{slot[ka]}:{slot[ka]+3}], v[{slot[kb]}:{slot[kb]+3}], {c}")
            for key in (ka, kb):
                if last_use[key] == i:
                    free.append(slot[key])
            issue(1)
            for fn in extra.get(i, []): fn()
        for fn in extra.get(n, []): fn()
        A("ds_read_b128 v[8:11], v13")
        A(f"s_lshl_b32 s{T0}, s{SSH}, 1")
        A(f"s_add_u32 s{T0}, s{T0}, s{SRH}")
        A(f"s_mul_i32 s{T0}, s{T0}, {8*TS}")
        A(f"s_add_u32 s{T0}, s{T0}, {CB}")
        A("v_mul_u32_u24 v12, 544, v4")
        A("v_lshl_add_u32 v12, v7, 6, v12")
        A("v_lshl_add_u32 v12, v3, 4, v12")
        A(f"v_add_u32 v12, s{T0}, v12")
        A("s_waitcnt lgkmcnt(0)")
        A("s_barrier")
        for u, j in enumerate(J):
            A(f"ds_write_b128 v12, v[{Y+4*u}:{Y+4*u+3}] offset:{j*TS}")
    lv1 = A.label("L_cv1"); lvj = A.label("L_cvj")
    A(f"s_cmp_ge_u32 s{WV}, 4")
    A(f"s_cbranch_scc1 {lv1}")
    vm0 = A.vm; ns0 = Ctx.nstamp; nn0 = len(Ctx.names)
    conv_variant([0, 3, 4, 7], OPT["bx0"], OPT["by0"], OPT["ar0"], "lo")
    A(f"s_branch {lvj}")
    vm1 = A.vm
    A.vm = vm0; Ctx.nstamp = ns0; del Ctx.names[nn0:]
    A(f"{lv1}:")
    conv_variant([1, 2, 5, 6], OPT["bx1"], OPT["by1"], OPT["ar1"], "hi")
    assert A.vm == vm1
    A(f"{lvj}:")
    stamp(A, "conv_mfma_end"); stamp(A, "conv_mfma_end", 3)
    A("v_lshrrev_b32 v2, 5, v1")
    A("v_and_b32 v3, 31, v1")
    A(f"v_mul_u32_u24 v12, {TS}, v2")
    A("v_lshl_add_u32 v12, v3, 4, v12")
    A(f"s_mul_i32 s{T0}, s{SKQ}, {2*TS}")
    A(f"s_mul_i32 s{T1}, s{SSH}, {16*TS}")
    A(f"s_add_u32 s{T0}, s{T0}, s{T1}")
    A(f"s_add_u32 s{T0}, s{T0}, {CB}")
    A(f"v_add_u32 v12, s{T0}, v12")
    A(f"s_lshl_b32 s{T0}, s{SDV}, 16")
    A(f"s_and_b32 s{T1}, s{SDV}, 0xffff0000")
    A(f"s_cmp_eq_u32 s{SSH}, 1")
    A(f"s_cselect_b32 s{SDV}, s{T1}, s{T0}")
    A(f"s_and_b32 s{T0}, s{SXCD}, 3")
    A(f"s_lshl_b32 s{T0}, s{T0}, 3")
    A(f"s_lshr_b32 s{T1}, s{SXCD}, 2")
    A(f"s_lshl_b32 s{T1}, s{T1}, 2")
    A(f"s_add_u32 s{SSB}, s{T0}, s{T1}")
    A(f"s_add_u32 s{SSB}, s{SSB}, s{SIQ}")
    A(f"s_lshl_b32 s{T0}, s{SSB}, 1")
    A(f"s_add_u32 s{T0}, s{T0}, s{SSH}")
    A(f"s_mul_i32 s{T0}, s{T0}, 112")
    A(f"s_mul_i32 s{T1}, s{SKQ}, 28")
    A(f"s_add_u32 s{T0}, s{T0}, s{T1}")
    A(f"s_lshl_b32 s{T0}, s{T0}, 10")
    A(f"s_add_u32 s{SOH}, s{T0}, {WS_H}")
    ptag3 = wpoll_issue(A, 3, id_p3, 57)
    A("s_waitcnt lgkmcnt(0)")
    A("s_barrier")
    for src in range(2):
        for w in range(2):
            A(f"ds_read_b128 v[{64+8*src+4*w}:{67+8*src+4*w}], v12 offset:{src*8*TS + w*544}")
    A("s_waitcnt lgkmcnt(0)")
    for e in range(8):
        A(f"v_add_f32 v{64+e}, v{64+e}, v{72+e}")
    for q in range(4):
        unpack(A, 20, 21, 8 + q)
        r = 3 - q
        A(f"v_fmac_f32 v{68+r}, s{SDV}, v20")
        A(f"v_fmac_f32 v{64+r}, s{SDV}, v21")
    for r in range(4):
        A(f"v_cvt_pk_bf16_f32 v{8+r}, v{64+r}, v{68+r}")
    A(f"s_lshl_b32 s{T0}, s2, 13")
    A(f"s_lshl_b32 s{T1}, s{SSH}, 12")
    A(f"s_add_u32 s{T0}, s{T0}, s{T1}")
    A(f"s_lshl_b32 s{T1}, s{SKQ}, 10")
    A(f"s_add_u32 s{T0}, s{T0}, s{T1}")
    A(f"s_add_u32 s{T0}, s{T0}, {WS_ZT}")
    A(f"buffer_store_dwordx4 v[8:11], v{VHL}, {srd(WS)}, s{T0} offen sc1")
    stamp(A, "conv_end"); stamp(A, "conv_end", 3)
    wpoll_check(A, 57, ptag3)
    stamp(A, "g2_go"); stamp(A, "g2_go", 4); stamp(A, "g2_go", 3)
    HS = list(range(96, 128, 4)) + list(range(32, 48, 4)) + [240, 244, 248, 252]
    NH = len(HS)
    htag = {}
    def hload(t):
        if t % 4 == 0:
            A(f"s_add_u32 s{T5}, s{SOH}, {t*1024}")
        r = HS[t % NH]
        A(f"buffer_load_dwordx4 v[{r}:{r+3}], v{VHL}, {srd(WS)}, s{T5} offen offset:{(t % 4)*1024} sc1")
        htag[t] = A.vm_tag()
    HW = OPT["hwin"]
    for t in range(HW): hload(t)
    A("v_lshrrev_b32 v8, 3, v1")
    A("v_and_b32 v11, 7, v1")
    A(f"s_lshl_b32 s{T0}, s{SSB}, 6")
    A(f"s_lshl_b32 s{T1}, s{SSH}, 5")
    A(f"s_add_u32 s{T0}, s{T0}, s{T1}")
    A(f"s_lshl_b32 s{T1}, s{SKQ}, 3")
    A(f"s_add_u32 s{T0}, s{T0}, s{T1}")
    A(f"v_add_u32 v9, s{T0}, v8")
    A("v_mul_u32_u24 v10, 896, v9")
    A("v_lshl_add_u32 v3, v11, 4, v10")
    A("v_lshlrev_b32 v5, 3, v9")
    A("v_lshrrev_b32 v9, 3, v0")
    A("v_lshlrev_b32 v9, 12, v9")
    A("v_lshl_add_u32 v4, v11, 4, v9")
    SNB = 53
    A(f"s_lshl_b32 s{SNB}, s{SJR}, 7")
    FR2 = [16, 24]
    ACC2 = 64
    XR, STT2, ZR = 16, 20, 24
    XF, TT, ZF, TP = 128, 136, 144, 152
    def rnd(base):
        for q in range(4):
            A(f"v_cvt_pk_bf16_f32 v{TP+q}, v{base+2*q}, v{base+2*q+1}")
        for q in range(4):
            unpack(A, base+2*q, base+2*q+1, TP+q)
    A("s_barrier")
    w2read(0, 0, FR2[0]); tag = A.lg_tag()
    fs = 0
    TZ, TZW, TZR = OPT["tz"], OPT["tzw"], OPT["tzr"]
    for t in range(28):
        if t < 13:
            w2read((t + 1) // 2, (t + 1) % 2, FR2[fs ^ 1]); ntag = A.lg_tag()
        if t < 14:
            A.wait_lg(tag)
            wb = FR2[fs]
        else:
            wb = WR + (t - 14)*8
        A.wait_vm(htag[t])
        if t == 0:
            stamp(A, "g2_first")
        if t % 4 == 0: stamp(A, f"g2_t{t}", 4)
        h = HS[t % NH]
        for dt in range(2):
            a = ACC2 + 16*dt
            c = "0" if t == 0 else f"v[{a}:{a+15}]"
            A(f"v_mfma_f32_32x32x16_bf16 v[{a}:{a+15}], v[{wb+4*dt}:{wb+4*dt+3}], v[{h}:{h+3}], {c}")
        if t + HW < 28:
            hload(t + HW)
        if t == 0:
            arrive_flag(A, 4, CNT_OFF + 4, 12)
        if t == TZ - 4:
            ptag4 = wpoll_issue(A, 4, id_p4, 57)
        if t == TZ:
            wpoll_check(A, 57, ptag4)
            stamp(A, "zpoll", 4)
            A(f"s_lshl_b32 s{T0}, s{SJR}, 18")
            A(f"s_lshl_b32 s{T1}, s{SSB}, 7")
            A(f"s_add_u32 s{T0}, s{T0}, s{T1}")
            A(f"s_add_u32 s{T0}, s{T0}, {WS_ZT}")
            A(f"buffer_load_dwordx4 v[{ZR}:{ZR+3}], v4, {srd(WS)}, s{T0} offen sc1")
            A(f"buffer_load_dwordx4 v[{XR}:{XR+3}], v3, {srd(Q)}, s{SNB} offen")
            A(f"s_mov_b32 s{T0}, {WS_STATS}")
            A(f"buffer_load_dwordx2 v[{STT2}:{STT2+1}], v5, {srd(WS)}, s{T0} offen sc1")
            tagZ = A.vm_tag()
            A("v_and_b32 v9, 31, v1")
            A("v_lshrrev_b32 v10, 5, v1")
            A("v_lshlrev_b32 v10, 2, v10")
            A("v_xor_b32 v10, v10, v11")
            A(f"s_lshl_b32 s{T0}, s{WV}, 13")
            A(f"v_lshl_add_u32 v9, v9, 8, s{T0}")
            for rho in range(4):
                A(f"v_xor_b32 v12, {rho}, v10")
                A(f"v_lshl_add_u32 v{28+rho}, v12, 4, v9")
            A(f"v_xor_b32 v6, s{WV}, v11")
            A("v_lshlrev_b32 v6, 4, v6")
            A("v_lshl_add_u32 v6, v11, 10, v6")
            A("v_lshl_add_u32 v6, v8, 1, v6")
            A(f"v_add_u32 v6, {ZB}, v6")
            A(f"s_lshl_b32 s{T0}, s{SKQ}, 3")
            A(f"v_add_u32 v9, s{T0}, v8")
            A("v_lshlrev_b32 v10, 1, v11")
            A("v_xor_b32 v10, v10, v8")
            A("v_lshlrev_b32 v9, 8, v9")
            A(f"s_lshl_b32 s{T0}, s{SSH}, 13")
            A(f"v_add_u32 v9, s{T0}, v9")
            A("v_lshl_add_u32 v12, v10, 4, v9")
            A("v_xor_b32 v10, 1, v10")
            A("v_lshl_add_u32 v13, v10, 4, v9")
            A(f"s_lshl_b32 s{T0}, s{SSH}, 2")
            A(f"s_add_u32 s{T0}, s{T0}, s{SKQ}")
            A(f"v_xor_b32 v10, s{T0}, v11")
            A("v_lshlrev_b32 v10, 4, v10")
            A("v_lshl_add_u32 v10, v8, 7, v10")
            A(f"s_lshl_b32 s{T0}, s{T0}, 10")
            A(f"s_add_u32 s{T0}, s{T0}, {ZB}")
            A(f"v_add_u32 v10, s{T0}, v10")
        if t == TZW:
            A.wait_vm(tagZ)
            for e in range(8):
                op = "ds_write_b16" if e % 2 == 0 else "ds_write_b16_d16_hi"
                A(f"{op} v6, v{ZR + e//2} offset:{e*128}")
            for q in range(4):
                unpack(A, XF+2*q, XF+2*q+1, XR+q)
            for e in range(8):
                A(f"v_sub_f32 v{TT+e}, v{XF+e}, v{STT2}")
            rnd(TT)
            for e in range(8):
                A(f"v_mul_f32 v{TT+e}, v{TT+e}, v{STT2+1}")
            rnd(TT)
        if t == TZR:
            A("s_waitcnt lgkmcnt(0)")
            A("s_barrier")
            A(f"ds_read_b128 v[{ZR}:{ZR+3}], v10")
        tag = ntag
        fs ^= 1
    stamp(A, "g2_mfma_end"); stamp(A, "g2_mfma_end", 4)
    A("s_waitcnt lgkmcnt(0)")
    for q in range(4):
        unpack(A, ZF+2*q, ZF+2*q+1, ZR+q)
    for dt in range(2):
        for rho in range(4):
            a = ACC2 + 16*dt + 4*rho
            A(f"ds_write_b128 v{28+rho}, v[{a}:{a+3}] offset:{dt*128}")
    for e in range(8):
        A(f"v_mul_f32 v{TT+e}, v{TT+e}, v{ZF+e}")
    rnd(TT)
    for e in range(8):
        A(f"v_add_f32 v{TT+e}, v{TT+e}, v{XF+e}")
    rnd(TT)
    A("s_waitcnt lgkmcnt(0)")
    A("s_barrier")
    stamp(A, "xbar", 4)
    P = 160
    for src in range(4):
        for hf in range(2):
            A(f"ds_read_b128 v[{P+8*src+4*hf}:{P+8*src+4*hf+3}], v{12+hf} offset:{src*16384}")
    A("s_waitcnt lgkmcnt(4)")
    for e in range(0, 8, 2):
        A(f"v_pk_add_f32 v[{P+e}:{P+e+1}], v[{P+e}:{P+e+1}], v[{P+8+e}:{P+9+e}]")
    A("s_waitcnt lgkmcnt(0)")
    for e in range(0, 8, 2):
        A(f"v_pk_add_f32 v[{P+16+e}:{P+17+e}], v[{P+16+e}:{P+17+e}], v[{P+24+e}:{P+25+e}]")
    for e in range(0, 8, 2):
        A(f"v_pk_add_f32 v[{P+e}:{P+e+1}], v[{P+e}:{P+e+1}], v[{P+16+e}:{P+17+e}]")
    rnd(P)
    for e in range(0, 8, 2):
        A(f"v_pk_add_f32 v[{P+e}:{P+e+1}], v[{P+e}:{P+e+1}], v[{TT+e}:{TT+e+1}]")
    for q in range(4):
        A(f"v_cvt_pk_bf16_f32 v{TP+q}, v{P+2*q}, v{P+2*q+1}")
    A(f"buffer_store_dwordx4 v[{TP}:{TP+3}], v3, {srd(OUT)}, s{SNB} offen")
    stamp(A, "end"); stamp(A, "end", 4); stamp(A, "end", 3)

def build():
    name = NAME + "_kernel"
    out = [f"; @launch grid=(256,1,1) block=(512,1,1) lds=163840"]
    out.append('.amdgcn_target "amdgcn-amd-amdhsa--gfx950"')
    out.append(".text")
    A = Asm()
    A(f".globl {name}"); A(".p2align 8"); A(f".type {name},@function"); A(f"{name}:")
    prologue(A, 256, "L_exit")
    A("s_cmp_ge_u32 s2, 224")
    A("s_cbranch_scc1 L_free")
    busy_path(A)
    stamp_dump(A)
    A("s_endpgm")
    A("L_free:")
    free_path(A)
    A("L_exit:")
    A("s_endpgm")
    A("L_codeend:")
    out.append(A.text())
    out.append('.section .rodata,"a"')
    out.append(".p2align 6")
    out.append(kd(name))
    return "\n".join(out)

if __name__ == "__main__":
    for a in sys.argv[2:]:
        k, v = a.split("=")
        OPT[k] = int(v)
    open(sys.argv[1], "w").write(build())
    if OPT["prof"]:
        open(sys.argv[1] + ".names", "w").write(",".join(Ctx.names))
```

```python
import sys, struct
from asmlib import *
NAME = "parallel_sum__ssm_conv_h3__glu_gated_swiglu__prompt"
S, D, F = 2048, 448, 1792
WS_KVR = 0
WS_H = 2 << 20
WS_ZT = 10 << 20
WS_STATS = 12 << 20
WS_CS = (12 << 20) + (64 << 10)
WS_FLAG = 13 << 20
WS_PROF = 14 << 20
WS_W2T = 16 << 20
WS_SIZE = 18 << 20
Q, Kb, Vb, SSMK, W13, W2, OUT, WS, SHK = 4, 8, 12, 16, 20, 24, 28, 32, 40
SD, SW3, WV = 44, 46, 3
SXCD, SIDX, SIQ, SJR = 48, 49, 50, 51
SI, SJ, SOX, SOW, SMX, SMW, SC = 52, 53, 55, 56, 57, 58, 47
SSB, SOH, SOW2, SKQ, SSH, SDV, SNB = 54, 59, 63, 60, 61, 62, 53
T0, T1, T2, T3, T4, T5 = 64, 65, 66, 67, 68, 69
SPOLL, STAG, STAMP0 = 70, 71, 72
OPT = dict(prof=0, stag=1, ffirst=1, codepf=1, ftouch=1, prio=1, rot2=1, csf=44, kvl=10, kvc=30, ko=2, sto=44, f2=3, pwi=62, pwc=74, nw2=14, p1i=80, p1c=91, p2i=96, p2c=106, vper=5, pkhi=0, ar0=71, tz=12, tzw=22)
def srd(x): return f"s[{x}:{x+3}]"
def f2u(x): return struct.unpack("<I", struct.pack("<f", x))[0]
class Ctx: nstamp = 0; names = []
class nocount:
    def __init__(self, A): self.A = A
    def __enter__(self): self.v = (self.A.vm, self.A.vm_lo, self.A.vm_hi)
    def __exit__(self, *a): self.A.vm, self.A.vm_lo, self.A.vm_hi = self.v
def stamp(A, name, *lv):
    if OPT["prof"] and OPT["prof"] in lv:
        r = STAMP0 + 2*Ctx.nstamp
        assert r + 1 < 102, "too many stamps"
        A(f"{'s_memrealtime' if OPT.get('rt') else 's_memtime'} s[{r}:{r+1}]")
        Ctx.nstamp += 1; Ctx.names.append(name)
def stamp_dump(A):
    if not OPT["prof"]: return
    A("s_waitcnt lgkmcnt(0)")
    A("s_memrealtime s[64:65]"); A("s_memtime s[66:67]")
    A("s_lshl_b32 s68, s2, 3"); A(f"s_add_u32 s68, s68, s{WV}"); A("s_lshl_b32 s68, s68, 7"); A(f"s_add_u32 s68, s68, {WS_PROF}")
    A("s_waitcnt lgkmcnt(0)")
    A("v_mov_b32 v2, 0")
    A(f"s_mov_b32 s{STAMP0}, s{38 if OPT.get('rt') else 36}")
    for sreg, off in [(64, 0), (66, 4), (38, 124)] + [(STAMP0 + 2*q, 8 + 4*q) for q in range(Ctx.nstamp)]:
        A(f"v_mov_b32 v3, s{sreg}")
        A(f"buffer_store_dword v3, v2, {srd(WS)}, s68 offen offset:{off}")
def div7(A, dst, src):
    A(f"s_mul_i32 s{dst}, s{src}, 37"); A(f"s_lshr_b32 s{dst}, s{dst}, 8")
def unpack(A, lo, hi, src):
    A(f"v_lshlrev_b32 v{lo}, 16, v{src}"); A(f"v_and_b32 v{hi}, 0xffff0000, v{src}")
def allreduce32(A, v, t):
    for m in ("quad_perm:[1,0,3,2]", "quad_perm:[2,3,0,1]", "row_half_mirror", "row_mirror"):
        A(f"v_add_f32_dpp v{v}, v{v}, v{v} {m} row_mask:0xf bank_mask:0xf")
    A(f"v_mov_b32 v{t}, v{v}")
    A(f"v_permlane16_swap_b32 v{t}, v{v}")
    A(f"v_add_f32 v{v}, v{v}, v{t}")
def round_bf16(A, dst, src):
    A(f"v_cvt_pk_bf16_f32 v{dst}, v{src}, v{src}"); A(f"v_and_b32 v{dst}, 0xffff0000, v{dst}")

def flag_store(A, val, vt):
    A(f"v_mov_b32 v{vt}, s{STAG}")
    A(f"s_lshl_b32 s{T0}, s2, 7")
    A(f"s_add_u32 s{T0}, s{T0}, {WS_FLAG + val*32768}")
    A(f"v_mov_b32 v{vt+1}, s{T0}")
    A("s_mov_b64 exec, 1")
    A(f"buffer_store_dword v{vt}, v{vt+1}, {srd(WS)}, 0 offen sc1")
    A("s_mov_b64 exec, -1")
def set_flag(A, val, vt):
    lab = A.label("L_nf")
    with nocount(A):
        A(f"s_cmp_lg_u32 s{WV}, 0"); A(f"s_cbranch_scc1 {lab}")
        flag_store(A, val, vt)
        A(f"{lab}:")
def arrive_flag(A, val, cnt_addr, vt):
    lab = A.label("L_na")
    with nocount(A):
        A(f"v_mov_b32 v{vt}, {cnt_addr}"); A(f"v_mov_b32 v{vt+1}, 1")
        A("s_mov_b64 exec, 1")
        A(f"ds_add_rtn_u32 v{vt+1}, v{vt}, v{vt+1}")
        A("s_mov_b64 exec, -1")
        A("s_waitcnt lgkmcnt(0)")
        A(f"v_readfirstlane_b32 s{T0}, v{vt+1}")
        A(f"s_cmp_lg_u32 s{T0}, 7"); A(f"s_cbranch_scc1 {lab}")
        flag_store(A, val, vt)
        A(f"{lab}:")
def poll_issue(A, phase, mkid, vt):
    mkid(A, vt + 1)
    A(f"v_lshlrev_b32 v{vt+1}, 7, v{vt+1}")
    A(f"v_add_u32 v{vt+1}, {WS_FLAG + phase*32768}, v{vt+1}")
    A(f"buffer_load_dword v{vt}, v{vt+1}, {srd(WS)}, 0 offen sc1")
    return A.vm_tag()
def poll_check(A, vt, tag, sleep=0):
    lab = A.label("L_np"); loop = A.label("L_poll"); chk = A.label("L_chk")
    A(f"s_mov_b32 s{SPOLL}, 0")
    A.wait_vm(tag)
    with nocount(A):
        A(f"s_branch {chk}")
        A(f"{loop}:")
        if sleep: A(f"s_sleep {sleep}")
        A(f"buffer_load_dword v{vt}, v{vt+1}, {srd(WS)}, 0 offen sc1")
        A("s_waitcnt vmcnt(0)")
        A(f"{chk}:")
        A(f"v_cmp_ne_u32 vcc, s{STAG}, v{vt}")
        A("s_nop 1")
        A("s_cmp_eq_u64 vcc, 0")
        A(f"s_cbranch_scc1 {lab}")
        A(f"s_add_u32 s{SPOLL}, s{SPOLL}, 1")
        A(f"s_cmp_lt_u32 s{SPOLL}, 100000")
        A(f"s_cbranch_scc1 {loop}")
        A(f"{lab}:")
def load_epoch(A):
    A(f"s_mov_b32 s{SPOLL}, {WS_FLAG}")
    A(f"s_load_dword s{STAG}, s[{WS}:{WS+1}], s{SPOLL}")
def fix_epoch(A):
    A(f"s_add_u32 s{STAG}, s{STAG}, 0x9e3779b9")
def only(A, cond, fn):
    l = A.label("L_o")
    A(f"s_cmp_ge_u32 s{WV}, 4")
    A(f"s_cbranch_scc{'1' if cond == 'lo' else '0'} {l}")
    A.role = cond; lg = A.lg
    fn()
    A.role = None
    A(f"{l}:")

def prologue(A):
    if OPT["prof"]:
        A("s_memtime s[36:37]"); A("s_memrealtime s[38:39]")
        Ctx.nstamp = 1; Ctx.names.append("start")
    A("s_cmp_ge_u32 s2, 256"); A("s_cbranch_scc1 L_exit")
    if OPT["ffirst"]:
        A("s_add_u32 s2, s2, 224"); A("s_and_b32 s2, s2, 255")
    A("s_load_dwordx16 s[72:87], s[0:1], 0")
    A("s_load_dwordx8 s[88:95], s[0:1], 64")
    A(f"s_load_dwordx2 s[{WS}:{WS+1}], s[0:1], 96")
    A("v_and_b32 v1, 63, v0")
    A("v_lshrrev_b32 v2, 6, v0")
    A(f"v_readfirstlane_b32 s{WV}, v2")
    for reg, size in ((Q, S*D*2), (Kb, S*D*2), (Vb, S*D*2), (SHK, D*8), (SSMK, D*S*2), (W13, D*F*2), (W2, F*D*2), (OUT, S*D*2), (WS, WS_SIZE)):
        A(f"s_mov_b32 s{reg+2}, {size}"); A(f"s_mov_b32 s{reg+3}, 0x00020000")
    A(f"s_and_b32 s{SXCD}, s2, 7")
    A(f"s_lshr_b32 s{SIDX}, s2, 3")
    div7(A, SIQ, SIDX)
    A(f"s_mul_i32 s{SJR}, s{SIQ}, 7")
    A(f"s_sub_u32 s{SJR}, s{SIDX}, s{SJR}")
def take_ptrs(A):
    A("s_waitcnt lgkmcnt(0)")
    for reg, slot in ((Q, 0), (W13, 7), (SW3, 8), (Kb, 1), (Vb, 2), (SHK, 3), (SSMK, 4), (SD, 5), (W2, 9), (OUT, 10)):
        A(f"s_mov_b64 s[{reg}:{reg+1}], s[{72+2*slot}:{73+2*slot}]")

def allreduce8(A, v):
    for m in ("quad_perm:[1,0,3,2]", "quad_perm:[2,3,0,1]", "row_half_mirror"):
        A(f"v_add_f32_dpp v{v}, v{v}, v{v} {m} row_mask:0xf bank_mask:0xf")
def stats_addr(A):
    A(f"s_and_b32 s{T0}, s{SXCD}, 3"); A(f"s_lshl_b32 s{T0}, s{T0}, 9")
    A(f"s_lshr_b32 s{T1}, s{SXCD}, 2"); A(f"s_lshl_b32 s{T1}, s{T1}, 8"); A(f"s_add_u32 s{T0}, s{T0}, s{T1}")
    A(f"s_lshl_b32 s{T1}, s{SJR}, 6"); A(f"s_add_u32 s{T0}, s{T0}, s{T1}")
    A(f"v_lshrrev_b32 v13, 3, v0"); A(f"v_add_u32 v13, s{T0}, v13")
    A("v_mul_u32_u24 v12, 896, v13"); A("v_and_b32 v14, 7, v0"); A("v_lshl_add_u32 v12, v14, 4, v12")
    A("v_lshlrev_b32 v13, 3, v13"); A("v_lshl_add_u32 v13, v14, 28, v13")
def stats_load(A, R):
    for e in range(7): A(f"buffer_load_dwordx4 v[{R+4*e}:{R+4*e+3}], v12, {srd(Q)}, 0 offen offset:{e*128}")
def stats_compute(A, R, U, O):
    for e in range(28): unpack(A, U+2*e, U+2*e+1, R+e)
    A(f"v_pk_add_f32 v[16:17], v[{U}:{U+1}], v[{U+2}:{U+3}]"); A(f"v_pk_add_f32 v[18:19], v[{U+4}:{U+5}], v[{U+6}:{U+7}]")
    for e in range(4, 28):
        d = 16 + 2*(e & 1)
        A(f"v_pk_add_f32 v[{d}:{d+1}], v[{d}:{d+1}], v[{U+2*e}:{U+2*e+1}]")
    A("v_pk_add_f32 v[16:17], v[16:17], v[18:19]"); A("v_add_f32 v16, v16, v17")
    allreduce8(A, 16)
    A(f"v_mul_f32 v16, {hex(f2u(-1.0/448))}, v16"); A("v_mov_b32 v17, v16")
    for e in range(28): A(f"v_pk_add_f32 v[{U+2*e}:{U+2*e+1}], v[{U+2*e}:{U+2*e+1}], v[16:17]")
    A(f"v_pk_mul_f32 v[18:19], v[{U}:{U+1}], v[{U}:{U+1}]"); A(f"v_pk_mul_f32 v[20:21], v[{U+2}:{U+3}], v[{U+2}:{U+3}]")
    for e in range(2, 28):
        d = 18 + 2*(e & 1)
        A(f"v_pk_fma_f32 v[{d}:{d+1}], v[{U+2*e}:{U+2*e+1}], v[{U+2*e}:{U+2*e+1}], v[{d}:{d+1}]")
    A("v_pk_add_f32 v[18:19], v[18:19], v[20:21]"); A("v_add_f32 v18, v18, v19")
    allreduce8(A, 18)
    A(f"v_mul_f32 v18, {hex(f2u(1.0/448))}, v18")
    round_bf16(A, 18, 18)
    A(f"v_add_f32 v18, {hex(f2u(1e-5))}, v18")
    round_bf16(A, 18, 18)
    A("v_sqrt_f32 v18, v18")
    round_bf16(A, 18, 18)
    A(f"v_rcp_f32 v{O+1}, v18")
    A("v_xor_b32 v16, 0x80000000, v16")
    round_bf16(A, O, 16)

def free_path(A):
    lab_nw = A.label("L_fw"); lab_nw2 = A.label("L_fw")
    stats_addr(A)
    A(f"s_sub_u32 s{T2}, s2, 224")
    A("v_lshrrev_b32 v2, 3, v1"); A("v_and_b32 v3, 7, v1")
    A("v_bfe_u32 v4, v1, 4, 1"); A("v_lshlrev_b32 v4, 2, v4"); A("v_xor_b32 v3, v3, v4")
    A("v_mul_u32_u24 v6, 896, v2"); A("v_lshl_add_u32 v6, v3, 4, v6")
    A(f"s_mul_i32 s{SOH}, s{T2}, {64*896}"); A(f"s_lshl_b32 s{T5}, s{WV}, 7"); A(f"s_add_u32 s{SOH}, s{SOH}, s{T5}")
    A(f"s_mul_i32 s{SKQ}, s{WV}, 224"); A(f"s_lshl_b32 s{T4}, s{T2}, 2"); A(f"s_add_u32 s{SKQ}, s{SKQ}, s{T4}")
    A(f"s_lshl_b32 s{SKQ}, s{SKQ}, 10"); A(f"s_add_u32 s{SKQ}, s{SKQ}, {WS_W2T}")
    A(f"s_lshl_b32 s{SMX}, s{WV}, 13")
    A(f"s_cmp_lt_u32 s{T2}, 28"); A(f"s_cselect_b32 s{SI}, 7, 0")
    take_ptrs(A)
    stamp(A, "f_kernarg", 6)
    load_epoch(A)
    stats_load(A, 64)
    A("s_barrier")
    A(f"s_cmp_ge_u32 s{WV}, s{SI}"); A(f"s_cbranch_scc1 {lab_nw}")
    for e in range(8):
        A(f"s_add_u32 s{T0}, s{SOH}, {e*8*896}")
        A(f"s_add_u32 m0, s{SMX}, {e*1024}")
        A(f"buffer_load_dwordx4 v6, {srd(W2)}, s{T0} offen lds")
    A("s_waitcnt vmcnt(8)")
    A(f"s_branch {lab_nw2}")
    A(f"{lab_nw}:")
    if OPT["codepf"]:
        A(f"s_getpc_b64 s[{T2}:{T3}]")
        A("L_pc:")
        A(f"s_sub_u32 s{T2}, s{T2}, L_pc-{NAME}_kernel")
        A(f"s_subb_u32 s{T3}, s{T3}, 0")
        for k in range(3):
            A(f"v_lshlrev_b32 v2, 7, v1"); A(f"v_add_u32 v2, {k*8192}, v2")
            A(f"v_min_u32 v2, L_codeend-{NAME}_kernel-4, v2")
            A(f"global_load_dword v{250+k}, v2, s[{T2}:{T3}]")
    A("s_waitcnt vmcnt(3)")
    A(f"{lab_nw2}:")
    stamp(A, "f_xlanded", 6)
    stats_compute(A, 64, 160, 22)
    A("v_lshrrev_b32 v8, 5, v1"); A("v_lshlrev_b32 v8, 10, v8")
    A("v_bfe_u32 v9, v1, 2, 2"); A("v_lshl_add_u32 v8, v9, 7, v8")
    A("v_and_b32 v9, 1, v1"); A("v_lshl_add_u32 v8, v9, 5, v8")
    A("v_bfe_u32 v9, v1, 4, 1"); A("v_lshl_add_u32 v8, v9, 4, v8")
    A("v_bfe_u32 v9, v1, 1, 1"); A("v_lshl_add_u32 v8, v9, 3, v8")
    A(f"v_add_u32 v8, s{SMX}, v8")
    A("v_bfe_u32 v9, v1, 3, 1"); A("v_xor_b32 v10, 1, v9")
    A("v_lshl_add_u32 v11, v10, 6, v8"); A("v_lshl_add_u32 v10, v9, 6, v8")
    A("v_lshlrev_b32 v9, 4, v1")
    A("s_waitcnt vmcnt(0)")
    stamp(A, "f_w2landed", 6)
    lab3 = A.label("L_fw")
    A(f"s_cmp_ge_u32 s{WV}, s{SI}"); A(f"s_cbranch_scc1 {lab3}")
    for dt in range(2):
        for e in range(4):
            for sec in range(2):
                r = 128 + 16*dt + 4*e + 2*sec
                A(f"ds_read_b64_tr_b16 v[{r}:{r+1}], v{10+dt} offset:{e*2048 + sec*512}")
    A("s_waitcnt lgkmcnt(0)")
    A(f"s_add_u32 s{T0}, s{SKQ}, {112*1024}")
    for dt in range(2):
        for e in range(4):
            r = 128 + 16*dt + 4*e
            A(f"buffer_store_dwordx4 v[{r}:{r+3}], v9, {srd(WS)}, s{T0 if dt else SKQ} offen offset:{e*1024} sc1")
    A(f"{lab3}:")
    A(f"s_mov_b32 s{T4}, {WS_STATS}")
    A(f"buffer_store_dwordx2 v[22:23], v13, {srd(WS)}, s{T4} offen sc1")
    stamp(A, "f_stored", 6)
    A("s_waitcnt vmcnt(0) lgkmcnt(0)")
    fix_epoch(A)
    A("s_barrier")
    stamp(A, "f_flags", 6)
    set_flag(A, 1, 2)
    lab = A.label("L_nf")
    A(f"s_cmp_lg_u32 s{WV}, 0"); A(f"s_cbranch_scc1 {lab}")
    A(f"s_add_u32 s{T0}, s2, 224"); A(f"s_lshl_b32 s{T0}, s{T0}, 7"); A(f"s_add_u32 s{T0}, s{T0}, {WS_FLAG + 8*32768}")
    A(f"v_mov_b32 v2, s{STAG}"); A(f"v_mov_b32 v3, s{T0}")
    A("s_mov_b64 exec, 1")
    A(f"buffer_store_dword v2, v3, {srd(WS)}, 0 offen sc1")
    A("s_mov_b64 exec, -1")
    A(f"{lab}:")
    if OPT["prof"] == 6: stamp_dump(A)
    if OPT["ftouch"]:
        A(f"s_sub_u32 s{T0}, s2, 224")
        A("v_lshlrev_b32 v6, 7, v0")
        A(f"s_mul_i32 s{T1}, s{T0}, {D*S*2//32}")
        A("v_cmp_gt_u32 vcc, 448, v0")
        A("v_mov_b32 v7, 0x7fffff00"); A("v_cndmask_b32 v7, v7, v6, vcc")
        A(f"buffer_load_dword v251, v7, {srd(SSMK)}, s{T1} offen")
    A("s_cmp_lg_u32 s2, 255"); A("s_cbranch_scc1 L_exit")
    def idall(A, v):
        A(f"v_and_b32 v{v}, 255, v0"); A(f"v_cmp_gt_u32 vcc, 224, v{v}")
        A(f"v_cndmask_b32 v{v+1}, 0, 1, vcc"); A(f"v_mul_u32_u24 v{v+1}, 768, v{v+1}"); A(f"v_add_u32 v{v}, v{v}, v{v+1}")
    A("s_sleep 100")
    tg = poll_issue(A, 1, idall, 2)
    poll_check(A, 2, tg, sleep=40)
    A("s_barrier")
    A(f"s_cmp_lg_u32 s{WV}, 0"); A("s_cbranch_scc1 L_exit")
    A(f"v_mov_b32 v2, {WS_FLAG}"); A(f"v_mov_b32 v3, s{STAG}")
    A("s_mov_b64 exec, 1")
    A(f"buffer_store_dword v3, v2, {srd(WS)}, 0 offen sc1")

class Jobs:
    def __init__(self): self.q = []; self.cur = None
    def add(self, start, gen): self.q.append((start, len(self.q), gen)); self.q.sort(key=lambda x: x[:2])
    def step(self, now, n=1):
        for _ in range(n):
            while True:
                if self.cur is None:
                    if not self.q or self.q[0][0] > now: return
                    self.cur = self.q.pop(0)[2]()
                try:
                    next(self.cur); break
                except StopIteration:
                    self.cur = None
    def flush(self, now):
        while self.cur is not None or (self.q and self.q[0][0] <= now): self.step(now)
def lines(A, ls, n=4):
    for i, l in enumerate(ls):
        A(l)
        if i % n == n - 1: yield
    yield
def atom(fn):
    def g():
        fn(); yield
    return g

RB, RS, R1D = 16384, 9216, 4640
CNT_OFF = RB + 2*RS
CX, ZB = 49152, 118784
HBC, HS_, HCP = 127056, 16720, 4160
KB, VB = 147456, 155648
X2 = 49152
WR = 128
VHL, VP = 56, 57
WS_CSP = WS_CS

def busy_path(A):
    PB = 128
    A(f"s_and_b32 s{T0}, s{SXCD}, 3"); A(f"s_lshl_b32 s{T0}, s{T0}, 2"); A(f"s_add_u32 s{SI}, s{T0}, s{SIQ}")
    A(f"s_lshr_b32 s{T0}, s{SXCD}, 2"); A(f"s_mul_i32 s{T0}, s{T0}, 7"); A(f"s_add_u32 s{SJ}, s{T0}, s{SJR}")
    A(f"s_and_b32 s{T2}, s{WV}, 4")
    A(f"s_lshl_b32 s{T0}, s{SI}, 7"); A(f"s_lshl_b32 s{T1}, s{WV}, 4"); A(f"s_add_u32 s{T0}, s{T0}, s{T1}")
    A(f"s_mul_i32 s{SOX}, s{T0}, 896")
    A(f"s_and_b32 s{T0}, s{WV}, 3")
    A(f"s_mul_i32 s{SOW}, s{T0}, {16*3584}"); A(f"s_lshl_b32 s{T1}, s{SJ}, 8"); A(f"s_add_u32 s{SOW}, s{SOW}, s{T1}")
    A(f"s_lshl_b32 s{SMX}, s{WV}, 11")
    A(f"s_lshl_b32 s{SMW}, s{T0}, 12"); A(f"s_mul_i32 s{T1}, s{T2}, {49152//4}")
    A(f"s_add_u32 s{SMW}, s{SMW}, s{T1}"); A(f"s_add_u32 s{SMW}, s{SMW}, 49152")
    VX, VW = 2, 4
    A("v_lshrrev_b32 v8, 3, v1"); A("v_and_b32 v9, 7, v1")
    A("v_lshrrev_b32 v10, 1, v8"); A("v_xor_b32 v10, v9, v10")
    A("v_mul_u32_u24 v11, 896, v8")
    A(f"v_lshl_add_u32 v{VX}, v10, 4, v11")
    A("v_xor_b32 v10, 4, v10")
    A(f"v_lshl_add_u32 v{VX+1}, v10, 4, v11")
    A(f"v_add_u32 v{VX+1}, {8*896-1024}, v{VX+1}")
    A("v_lshrrev_b32 v8, 4, v1"); A("v_bfe_u32 v9, v1, 1, 3")
    A("v_xor_b32 v9, v9, v8"); A(f"v_xor_b32 v9, s{T2}, v9")
    A("v_and_b32 v10, 1, v1"); A("v_lshlrev_b32 v10, 4, v10"); A("v_lshl_add_u32 v10, v9, 5, v10")
    A("v_mul_u32_u24 v11, 3584, v8")
    A(f"v_add_u32 v{VW}, v10, v11")
    for e in range(1, 4): A(f"v_add_u32 v{VW+e}, {e*(14336-1024)}, v{VW}")
    tg = {}
    take_ptrs(A)
    A(f"s_cmp_ge_u32 s{WV}, 4")
    A(f"s_cselect_b32 s{W13}, s{SW3}, s{W13}"); A(f"s_cselect_b32 s{W13+1}, s{SW3+1}, s{W13+1}")
    A(f"s_and_b32 s{SC}, s{SXCD}, 3"); A(f"s_lshl_b32 s{SC}, s{SC}, 1")
    if OPT["rot2"]:
        A(f"s_and_b32 s{T0}, s{SIQ}, 1"); A(f"s_add_u32 s{SC}, s{SC}, s{T0}")
        A(f"s_cmp_eq_u32 s{SC}, 7"); A(f"s_cselect_b32 s{SC}, 0, s{SC}")
    stamp(A, "kernarg", 5)
    load_epoch(A)
    dma_tag = {}
    def dma_parts(stage):
        slot = stage % 3
        def pw(lo):
            A(f"s_mul_i32 s{T5}, s{SC}, {64*3584}"); A(f"s_add_u32 s{T5}, s{T5}, s{SOW}")
            A(f"s_add_u32 m0, s{SMW}, {slot*16384}")
            for e in range(lo, lo + 2):
                A(f"buffer_load_dwordx4 v{VW+e}, {srd(W13)}, s{T5} offen offset:{e*1024} lds")
        def px():
            A(f"s_lshl_b32 s{T5}, s{SC}, 7"); A(f"s_add_u32 s{T5}, s{T5}, s{SOX}")
            A(f"s_add_u32 m0, s{SMX}, {slot*16384}")
            for e in range(2):
                A(f"buffer_load_dwordx4 v{VX+e}, {srd(Q)}, s{T5} offen offset:{e*1024} lds")
            dma_tag[stage] = A.vm_tag()
            A(f"s_add_u32 s{SC}, s{SC}, 1"); A(f"s_cmp_ge_u32 s{SC}, 7"); A(f"s_cselect_b32 s{SC}, 0, s{SC}")
        return [lambda: pw(0), lambda: pw(2), px]
    def dma(stage):
        for p in dma_parts(stage): p()
    dma(0)
    stamp(A, "dma0_issued", 5)
    XA, WA = 8, 12
    SCS = 46
    A(f"s_and_b32 s{SSH}, s{WV}, 1"); A(f"s_lshr_b32 s{SKQ}, s{WV}, 1")
    A("v_and_b32 v14, 31, v1"); A("v_lshrrev_b32 v15, 5, v1")
    A("v_bfe_u32 v16, v1, 1, 3"); A("v_xor_b32 v16, v16, v15")
    A(f"s_lshl_b32 s{T0}, s{SSH}, 13")
    A(f"v_lshl_add_u32 v17, v14, 7, s{T0}")
    for ks in range(4):
        A(f"v_xor_b32 v18, {2*ks}, v16"); A(f"v_lshl_add_u32 v{XA+ks}, v18, 4, v17")
    A("v_bfe_u32 v16, v1, 4, 1"); A("v_bfe_u32 v17, v1, 2, 2")
    A("v_lshl_add_u32 v18, v15, 3, v17")
    A("v_lshlrev_b32 v18, 8, v18")
    A("v_mul_u32_u24 v19, 49152, v16"); A("v_add_u32 v18, v18, v19"); A("v_add_u32 v18, 49152, v18")
    A("v_and_b32 v19, 1, v1"); A("v_lshlrev_b32 v19, 4, v19")
    A("v_bfe_u32 v20, v1, 1, 1")
    A("v_lshl_add_u32 v19, v20, 3, v19"); A("v_add_u32 v18, v18, v19")
    A("v_lshlrev_b32 v16, 2, v16"); A("v_xor_b32 v16, v16, v17")
    A(f"s_lshl_b32 s{T0}, s{SKQ}, 1"); A(f"v_xor_b32 v16, s{T0}, v16")
    A(f"v_lshl_add_u32 v{WA}, v16, 5, v18")
    A("v_xor_b32 v16, 1, v16")
    A(f"v_lshl_add_u32 v{WA+1}, v16, 5, v18")
    A(f"v_lshlrev_b32 v{VHL}, 4, v1")
    A(f"s_and_b32 s{T0}, s{SXCD}, 3"); A(f"s_lshl_b32 s{T0}, s{T0}, 3")
    A(f"s_and_b32 s{T1}, s{SXCD}, 4"); A(f"s_add_u32 s{SSB}, s{T0}, s{T1}"); A(f"s_add_u32 s{SSB}, s{SSB}, s{SIQ}")
    A(f"s_mul_i32 s{T1}, s{SKQ}, 28")
    A(f"s_lshl_b32 s{T0}, s{SSB}, 1"); A(f"s_add_u32 s{T0}, s{T0}, s{SSH}"); A(f"s_mul_i32 s{T0}, s{T0}, 112")
    A(f"s_add_u32 s{T0}, s{T0}, s{T1}"); A(f"s_lshl_b32 s{T0}, s{T0}, 10"); A(f"s_add_u32 s{SOH}, s{T0}, {WS_H}")
    A(f"s_lshl_b32 s{T0}, s{SJR}, 1"); A(f"s_add_u32 s{T0}, s{T0}, s{SSH}"); A(f"s_mul_i32 s{T0}, s{T0}, 112")
    A(f"s_add_u32 s{T0}, s{T0}, s{T1}"); A(f"s_lshl_b32 s{T0}, s{T0}, 10"); A(f"s_add_u32 s{SOW2}, s{T0}, {WS_W2T}")
    A(f"s_lshl_b32 s{T0}, s{SSH}, 1"); A(f"s_or_b32 s{SCS}, s{T0}, s{SIQ}")
    ONES, CACC = 204, 208
    A(f"s_and_b32 s{T0}, s{SXCD}, 3"); A(f"s_lshl_b32 s{T0}, s{T0}, 1"); A(f"s_add_u32 s{T0}, s{T0}, s{SIQ}")
    A(f"s_cmp_eq_u32 s{T0}, 7"); A(f"s_cselect_b32 s{T0}, 0, 0x3f803f80")
    for r in range(4): A(f"v_mov_b32 v{ONES+r}, s{T0}")
    A("s_waitcnt lgkmcnt(0)")
    fix_epoch(A)
    stamp(A, "setup_done", 1, 5)
    A("s_barrier")
    dma(1)
    stamp(A, "dma1_issued", 5)
    FR = [16, 32]
    ACC = 64
    def reads(stage, ks, fs):
        slot = stage % 3; b = FR[fs]
        for tt in range(2):
            for sec in range(2):
                A(f"ds_read_b64_tr_b16 v[{b+8+4*tt+2*sec}:{b+9+4*tt+2*sec}], v{WA+tt} offset:{slot*16384 + ks*4096 + sec*1024}")
        for nt in range(2):
            A(f"ds_read_b128 v[{b+4*nt}:{b+4*nt+3}], v{XA+ks} offset:{slot*16384 + nt*4096}")
        return A.lg_tag()
    KF, KRW, VRW, VF, WRW, WF, O, PK, KA = PB+4, PB+16, PB+20, PB+24, PB+32, PB+34, PB+38, PB+48, PB+52
    def kv_dma():
        yield from lines(A, [
            f"s_mul_i32 s{T0}, s2, 9363", f"s_lshr_b32 s{T0}, s{T0}, 16",
            f"s_mul_i32 s{T1}, s{T0}, 7", f"s_sub_u32 s{T1}, s2, s{T1}",
            f"s_lshl_b32 s{T2}, s{T0}, 3", f"s_add_u32 s{T2}, s{T2}, s{WV}",
            f"s_mul_i32 s{T2}, s{T2}, {8*896}", f"s_lshl_b32 s{T3}, s{T1}, 7", f"s_add_u32 s{T2}, s{T2}, s{T3}",
            "v_lshrrev_b32 v50, 3, v1", "v_and_b32 v49, 7, v1",
            "v_mul_u32_u24 v48, 896, v50", "v_lshl_add_u32 v48, v49, 4, v48",
            f"s_lshl_b32 s{T3}, s{WV}, 10"], 5)
        A(f"s_add_u32 m0, s{T3}, {KB}")
        if not OPT.get("abl", 0) & 128:
            A(f"buffer_load_dwordx4 v48, {srd(Kb)}, s{T2} offen lds")
            A(f"s_add_u32 m0, s{T3}, {VB}")
            A(f"buffer_load_dwordx4 v48, {srd(Vb)}, s{T2} offen lds")
        yield
        yield from lines(A, [
            f"s_sub_u32 s{T2}, s{T2}, 2688", f"v_lshl_add_u32 v48, v1, 1, s{T2}",
            f"v_mov_b32 v{KF}, 0", f"v_mov_b32 v{KF+1}, 0", f"v_mov_b32 v{KF+2}, 0",
            f"s_lshl_b32 s{T2}, s{T1}, 9", f"v_lshl_add_u32 v51, v1, 3, s{T2}"], 4)
        if not OPT.get("abl", 0) & 16:
            for r in range(3):
                A(f"buffer_load_short_d16_hi v{KF+r}, v48, {srd(Kb)}, 0 offen offset:{r*896}")
            A(f"buffer_load_dwordx2 v[{WRW}:{WRW+1}], v51, {srd(SHK)}, 0 offen")
        tg["kvd"] = A.vm_tag()
        yield
        yield from lines(A, [
            f"s_lshl_b32 s{T1}, s{T1}, 3", f"s_add_u32 s{T1}, s{T1}, s{WV}", f"s_lshl_b32 s{T1}, s{T1}, 15",
            f"s_lshl_b32 s{T0}, s{T0}, 7", f"s_sub_u32 s{T1}, s{T1}, s{T0}", f"s_add_u32 s{T1}, s{T1}, 3968",
            f"v_lshl_add_u32 v{KA+1}, v50, 12, s{T1}", f"v_lshl_add_u32 v{KA+1}, v49, 4, v{KA+1}",
            f"s_lshl_b32 s{T0}, s{WV}, 7", f"s_add_u32 s{T0}, s{T0}, {KB + 7168}",
            f"v_lshl_add_u32 v{KA+2}, v50, 4, s{T0}", "v_lshlrev_b32 v48, 10, v49", f"v_sub_u32 v{KA+2}, v{KA+2}, v48",
            "v_bfe_u32 v48, v1, 2, 2", "v_lshlrev_b32 v48, 7, v48",
            "v_lshrrev_b32 v49, 4, v1", "v_lshl_add_u32 v48, v49, 5, v48",
            "v_and_b32 v49, 3, v1", "v_lshl_add_u32 v48, v49, 3, v48",
            f"s_add_u32 s{T3}, s{T3}, {KB}", f"v_add_u32 v{KA}, s{T3}, v48", f"v_add_u32 v{KA+3}, s{T3}, v{VHL}"], 5)
    def kv_comp():
        A.wait_vm(tg["kvd"])
        for sec in range(2): A(f"ds_read_b64_tr_b16 v[{KRW+2*sec}:{KRW+2*sec+1}], v{KA} offset:{sec*512}")
        for sec in range(2): A(f"ds_read_b64_tr_b16 v[{VRW+2*sec}:{VRW+2*sec+1}], v{KA} offset:{VB-KB + sec*512}")
        t = A.lg_tag()
        yield
        ls = []
        def up(lo, hi, src): ls.extend([f"v_lshlrev_b32 v{lo}, 16, v{src}", f"v_and_b32 v{hi}, 0xffff0000, v{src}"])
        for q in range(2): up(WF+2*q, WF+2*q+1, WRW+q)
        yield from lines(A, ls, 4)
        A.wait_lg(t)
        ls = []
        for q in range(4): up(KF+3+2*q, KF+4+2*q, KRW+q)
        for s_ in range(8): ls.append(f"v_mul_f32 v{O+s_}, v{WF+3}, v{KF+s_}")
        for j in (2, 1, 0):
            for s_ in range(8): ls.append(f"v_fmac_f32 v{O+s_}, v{WF+j}, v{KF+s_+3-j}")
        for q in range(4): up(VF+2*q, VF+2*q+1, VRW+q)
        for s_ in range(8): ls.append(f"v_mul_f32 v{O+s_}, v{O+s_}, v{VF+s_}")
        for q in range(4): ls.append(f"v_cvt_pk_bf16_f32 v{PK+q}, v{O+7-2*q}, v{O+6-2*q}")
        if not OPT.get("abl", 0) & 32: yield from lines(A, ls, OPT["vper"])
        A(f"ds_write_b128 v{KA+3}, v[{PK}:{PK+3}]")
        tg["kvw"] = True
        yield
    def kv_out():
        A(f"ds_read_b128 v[{PK}:{PK+3}], v{KA+2}")
        t = A.lg_tag()
        yield; yield; yield
        A.wait_lg(t)
        if not OPT.get("abl", 0) & 64: A(f"buffer_store_dwordx4 v[{PK}:{PK+3}], v{KA+1}, {srd(WS)}, 0 offen sc1")
        tg["kvs"] = A.vm_tag()
        yield
    def cs_out():
        lab = A.label("L_ncs")
        with nocount(A):
            A(f"s_cmp_ge_u32 s{SCS}, 2"); A(f"s_cbranch_scc1 {lab}")
            A(f"s_lshl_b32 s{T0}, s{SJ}, 3"); A(f"s_lshl_b32 s{T1}, s{SKQ}, 1"); A(f"s_add_u32 s{T0}, s{T0}, s{T1}"); A(f"s_lshl_b32 s{T0}, s{T0}, 3")
            A(f"s_and_b32 s{T1}, s{SXCD}, 3"); A(f"s_lshl_b32 s{T1}, s{T1}, 1"); A(f"s_add_u32 s{T0}, s{T0}, s{T1}"); A(f"s_add_u32 s{T0}, s{T0}, s{SIQ}")
            A(f"s_lshl_b32 s{T0}, s{T0}, 7"); A(f"s_add_u32 s{T0}, s{T0}, {WS_CSP}")
            A("v_lshlrev_b32 v48, 2, v1")
            A("s_mov_b32 exec_hi, 0")
            for tt in range(2):
                c = CACC + 16*tt
                round_bf16(A, 49, c)
                A(f"v_sub_f32 v50, v{c}, v49")
                A(f"v_cvt_pk_bf16_f32 v{50+tt}, v49, v50")
                A(f"buffer_store_dword v{50+tt}, v48, {srd(WS)}, s{T0} offen offset:{tt*1024} sc1")
            A("s_mov_b64 exec, -1")
            A(f"{lab}:")
        tg["css"] = A.vm_tag()
    def cs_flag():
        lab = A.label("L_ncf")
        A(f"s_cmp_ge_u32 s{SCS}, 2"); A(f"s_cbranch_scc1 {lab}")
        A.wait_vm(tg["css"])
        with nocount(A):
            A(f"s_lshl_b32 s{T0}, s2, 2"); A(f"s_add_u32 s{T0}, s{T0}, s{SKQ}"); A(f"s_lshl_b32 s{T0}, s{T0}, 7"); A(f"s_add_u32 s{T0}, s{T0}, {WS_FLAG + 8*32768}")
            A(f"v_mov_b32 v48, s{STAG}"); A(f"v_mov_b32 v49, s{T0}")
            A("s_mov_b64 exec, 1")
            A(f"buffer_store_dword v48, v49, {srd(WS)}, 0 offen sc1")
            A("s_mov_b64 exec, -1")
        A(f"{lab}:")
    CS, BM, STT, T, KC = 240, 248, 52, 16, 24
    def stat_operands():
        A(f"s_lshl_b32 s{T0}, s{SI}, 10"); A(f"s_lshl_b32 s{T1}, s{SSH}, 9"); A(f"s_add_u32 s{T0}, s{T0}, s{T1}"); A(f"s_add_u32 s{T0}, s{T0}, {WS_STATS}")
        A("v_lshlrev_b32 v48, 3, v14")
        for nt in range(2):
            A(f"buffer_load_dwordx2 v[{STT+2*nt}:{STT+2*nt+1}], v48, {srd(WS)}, s{T0} offen offset:{nt*256} sc1")
        yield
        A(f"s_lshl_b32 s{T0}, s{SJ}, 3"); A(f"s_lshl_b32 s{T1}, s{SKQ}, 1"); A(f"s_add_u32 s{T0}, s{T0}, s{T1}")
        A(f"s_lshl_b32 s{T0}, s{T0}, 10"); A(f"s_add_u32 s{T0}, s{T0}, {WS_CSP}")
        A("v_lshlrev_b32 v48, 2, v14"); A("v_lshl_add_u32 v48, v15, 9, v48")
        yield
        for tt in range(2):
            for e in range(4):
                A(f"buffer_load_dword v{CS+4*tt+e}, v48, {srd(WS)}, s{T0} offen offset:{tt*1024 + e*128} sc1")
                if e % 2: yield
        tg["epi"] = A.vm_tag()
    def epi_bm():
        A.wait_vm(tg["epi"])
        for nt in range(2):
            A(f"v_xor_b32 v{BM+4*nt}, 0x80000000, v{STT+2*nt}")
            A(f"v_lshrrev_b32 v{BM+4*nt+1}, 16, v{BM+4*nt}")
            A(f"v_or_b32 v{BM+4*nt}, v{BM+4*nt}, v{BM+4*nt+1}")
            yield
            for r in range(1, 4): A(f"v_mov_b32 v{BM+4*nt+r}, v{BM+4*nt}")
            yield
    def w2load(t):
        assert t >= 14 or "kvs" in tg, "W2T load collides with kv temporaries"
        A(f"s_add_u32 s{T4}, s{SOW2}, {(t // 4)*4096}")
        A(f"buffer_load_dwordx4 v[{WR+4*t}:{WR+4*t+3}], v{VHL}, {srd(WS)}, s{T4} offen offset:{(t % 4)*1024} sc1")
    def conv_prep():
        A(f"s_lshl_b32 s{T0}, s2, 13")
        A("v_lshlrev_b32 v48, 4, v0")
        A(f"s_lshr_b32 s{T1}, s{WV}, 2"); A(f"s_mul_i32 s{T1}, s{T1}, {HS_}")
        A(f"s_and_b32 s{T3}, s{WV}, 3"); A(f"s_lshl_b32 s{T2}, s{T3}, 10"); A(f"s_add_u32 s{T2}, s{T2}, s{T1}")
        yield
        for u in range(4):
            A(f"s_add_u32 m0, s{T2}, {HBC + u*HCP - (16 if u == 0 else 0) - 4*u}")
            A(f"buffer_load_dwordx4 v48, {srd(SSMK)}, s{T0} offen offset:{4*u} lds")
            yield
        A(f"s_mul_i32 s{T2}, s{T3}, {HCP}"); A(f"s_add_u32 s{T2}, s{T2}, s{T1}"); A(f"s_add_u32 s{T2}, s{T2}, {HBC}")
        A(f"s_cmp_eq_u32 s{T3}, 0"); A(f"s_cselect_b32 s{T1}, 16, 0"); A(f"s_sub_u32 s{T2}, s{T2}, s{T1}")
        yield
        for r in (48, 49, 50, 51): A(f"v_mov_b32 v{r}, 0")
        A(f"s_sub_u32 s{T1}, s{T2}, 64"); A(f"v_lshl_add_u32 v62, v1, 2, s{T1}")
        yield
        A(f"s_lshr_b32 exec_lo, 0xffff, s{T3}"); A("s_mov_b32 exec_hi, 0")
        A("ds_write_b32 v62, v48")
        A("s_mov_b64 exec, -1")
        lab = A.label("L_nod0")
        with nocount(A):
            A(f"s_cmp_eq_u32 s{T3}, 0"); A(f"s_cbranch_scc1 {lab}")
            A(f"s_lshl_b32 s{T1}, s{T3}, 2"); A(f"s_sub_u32 m0, s{T2}, s{T1}")
            A(f"s_lshr_b32 s{T1}, s{WV}, 2"); A(f"s_lshl_b32 s{T1}, s{T1}, 12"); A(f"s_add_u32 s{T0}, s{T0}, s{T1}")
            A("v_lshlrev_b32 v62, 2, v1")
            A(f"s_bfm_b64 exec, s{T3}, 0")
            A(f"buffer_load_dword v62, {srd(SSMK)}, s{T0} offen lds")
            A("s_mov_b64 exec, -1")
            A(f"{lab}:")
        yield
        A(f"s_bfe_u32 s{T0}, s{WV}, 0x10001"); A(f"s_mul_i32 s{T0}, s{T0}, {RS}")
        A(f"s_mul_i32 s{T1}, s{SSH}, {R1D}"); A(f"s_add_u32 s{T1}, s{T1}, s{T0}"); A(f"s_add_u32 s{T1}, s{T1}, {RB+4096}")
        A(f"v_add_u32 v62, s{T1}, v{VHL}")
        yield
        A("s_mov_b64 exec, 0xfffffff"); A("ds_write_b128 v62, v[48:51]"); A("s_mov_b64 exec, -1")
        A(f"v_mov_b32 v62, {CNT_OFF}"); A("ds_write_b64 v62, v[48:49]")
        yield
    KVR_, KVT = 60, 48
    def p2_loads():
        A(f"s_lshl_b32 s{T0}, s2, 13")
        A("v_lshlrev_b32 v48, 4, v0"); A("v_and_b32 v49, 255, v0")
        A("v_cmp_eq_u32 vcc, 255, v49")
        A("v_add_u32 v49, 16, v48"); A("v_mov_b32 v50, 0x7fffff00")
        A("v_cndmask_b32 v49, v49, v50, vcc")
        yield
        poll_check(A, VP, tg["p2"])
        A(f"buffer_load_dwordx4 v[{KVR_}:{KVR_+3}], v48, {srd(WS)}, s{T0} offen sc1")
        A(f"buffer_load_dword v59, v49, {srd(WS)}, s{T0} offen sc1")
        tg["kv"] = A.vm_tag()
        yield
    def conv_kvwrite(role):
        A("v_lshrrev_b32 v57, 8, v0"); A(f"v_mul_u32_u24 v57, {RS}, v57")
        A("v_and_b32 v58, 255, v0"); A("v_lshl_add_u32 v57, v58, 4, v57")
        A.wait_vm(tg["kv"], role)
        for q in range(3): A(f"v_alignbit_b32 v{KVT+q}, v{KVR_+1+q}, v{KVR_+q}, 16")
        A(f"v_alignbit_b32 v{KVT+3}, v59, v{KVR_+3}, 16")
        A(f"ds_write_b128 v57, v[{KVR_}:{KVR_+3}] offset:{RB+R1D}")
        A(f"ds_write_b128 v57, v[{KVT}:{KVT+3}] offset:{RB}")
        A("s_waitcnt lgkmcnt(0)")
        A("s_barrier")
    def id_pw(A, v):
        A(f"s_mul_i32 s{T0}, s{SKQ}, 7"); A(f"s_add_u32 s{T0}, s{T0}, 224")
        A(f"v_min_u32 v{v}, 6, v1"); A(f"v_add_u32 v{v}, s{T0}, v{v}")
    def id_p1(A, v):
        A(f"s_lshl_b32 s{T0}, s{SJR}, 3"); A(f"s_and_b32 s{T1}, s{SXCD}, 4"); A(f"s_add_u32 s{T0}, s{T0}, s{T1}")
        A(f"s_lshl_b32 s{T0}, s{T0}, 2"); A(f"s_add_u32 s{T0}, s{T0}, s{SKQ}")
        A(f"v_bfe_u32 v{v+1}, v1, 2, 1"); A(f"v_mul_u32_u24 v{v+1}, 224, v{v+1}"); A(f"v_and_b32 v{v}, 3, v1")
        A(f"v_lshl_add_u32 v{v}, v{v}, 2, v{v+1}"); A(f"v_add_u32 v{v}, s{T0}, v{v}")
        A(f"s_and_b32 s{T0}, s{SIQ}, 1"); A(f"s_lshl_b32 s{T0}, s{T0}, 1"); A(f"s_add_u32 s{T0}, s{T0}, s{SSH}"); A(f"s_lshl_b32 s{T0}, s{T0}, 3")
        A(f"s_lshr_b32 s{T1}, s{SIQ}, 1"); A(f"s_lshl_b32 s{T1}, s{T1}, 2"); A(f"s_add_u32 s{T0}, s{T0}, s{T1}")
        A(f"s_and_b32 s{T1}, s{SXCD}, 3"); A(f"s_add_u32 s{T0}, s{T0}, s{T1}"); A(f"s_add_u32 s{T0}, s{T0}, 448")
        A(f"v_mov_b32 v{v+1}, s{T0}")
        A(f"v_cmp_lt_u32 vcc, 7, v1")
        A(f"v_cndmask_b32 v{v}, v{v}, v{v+1}, vcc")
    def id_p2(A, v):
        A(f"s_and_b32 s{T0}, s{WV}, 3"); A(f"s_lshl_b32 s{T0}, s{T0}, 3"); A(f"s_sub_u32 s{T0}, 31, s{T0}")
        A(f"v_min_u32 v{v}, 8, v1"); A(f"v_sub_u32 v{v}, s{T0}, v{v}"); A(f"v_max_i32 v{v}, 0, v{v}")
        A(f"v_mul_u32_u24 v{v}, 7, v{v}")
        A(f"s_lshr_b32 s{T0}, s2, 5"); A(f"v_add_u32 v{v}, s{T0}, v{v}")
    def id_p3(A, v):
        A(f"s_bfe_u32 s{T0}, s{SSB}, 0x20001"); A(f"s_mul_i32 s{T0}, s{T0}, 56")
        A(f"s_lshr_b32 s{T1}, s{SSB}, 3"); A(f"s_add_u32 s{T0}, s{T0}, s{T1}")
        A(f"s_and_b32 s{T1}, s{SKQ}, 1"); A(f"s_mul_i32 s{T1}, s{T1}, 24"); A(f"s_add_u32 s{T0}, s{T0}, s{T1}")
        A(f"s_and_b32 s{T1}, s{WV}, 4"); A(f"s_add_u32 s{T0}, s{T0}, s{T1}")
        A(f"v_and_b32 v{v}, 3, v1"); A(f"v_lshl_add_u32 v{v}, v{v}, 3, s{T0}")
    def id_p4(A, v):
        A(f"s_lshl_b32 s{T0}, s{SJR}, 5"); A(f"s_lshl_b32 s{T1}, s{WV}, 2"); A(f"s_add_u32 s{T0}, s{T0}, s{T1}")
        A(f"v_and_b32 v{v}, 3, v1"); A(f"v_add_u32 v{v}, s{T0}, v{v}")

    A.wait_vm(dma_tag[0])
    A("s_barrier")
    stamp(A, "g1_start", 1, 2, 5)
    tag = reads(0, 0, 0)
    fs = 0
    JV, JS_ = Jobs(), Jobs()
    for i, p in enumerate(dma_parts(2)): JV.add(1 + 4*i, atom(p))
    for s in range(4):
        for i, p in enumerate(dma_parts(s + 3)): JV.add(16*s + 13 + 4*i, atom(p))
    KO, F2 = OPT["ko"], OPT["f2"]
    ABL = OPT.get("abl", 0)
    if not ABL & 1: JS_.add(OPT["kvl"], kv_dma)
    else: tg["kvw"] = True; tg["kvs"] = A.vm_tag()
    if not ABL & 4: JS_.add(21 if OPT['rot2'] else 36, atom(cs_out))
    if not ABL & 1: JS_.add(OPT["kvc"], kv_comp)
    if not ABL & 4: JS_.add(OPT["csf"], atom(cs_flag))
    if not ABL & 1: JS_.add(max(OPT["sto"], 16*KO + 12), kv_out)
    if not ABL & 4: JS_.add(OPT["p1i"], atom(lambda: tg.__setitem__("p1", poll_issue(A, 8, id_p1, VP))))
    JS_.add(16*F2 + 12, atom(lambda: set_flag(A, 2, 48)))
    NW2 = OPT["nw2"]
    JS_.add(OPT["pwi"] if not ABL & 2 else 151, atom(lambda: tg.__setitem__("pw", poll_issue(A, 1, id_pw, VP))))
    def pwchk():
        poll_check(A, VP, tg["pw"])
        for k in range(NW2):
            JV.add(OPT["pwc"] + 1 + (k*(108 - OPT["pwc"])) // NW2, atom(lambda t=27-k: w2load(t)))
    JS_.add(OPT["pwc"] if not ABL & 2 else 152, atom(pwchk))
    if not ABL & 4: JS_.add(OPT["p1c"], atom(lambda: poll_check(A, VP, tg["p1"])))
    JS_.add(OPT["p1c"] if not ABL & 4 else 160, stat_operands)
    JS_.add(OPT["p2i"] if not ABL & 1 else 180, atom(lambda: tg.__setitem__("p2", poll_issue(A, 2, id_p2, VP))))
    assert KO < 5 or F2 == 6
    JS_.add((92 if KO < 5 else 108) if not ABL & 8 else 160, conv_prep)
    JS_.add(100 if not ABL & 4 else 170, epi_bm)
    JS_.add(OPT["p2c"] if not ABL & 1 else 190, p2_loads)
    for s in range(7):
        for ks in range(4):
            if ks < 3:
                ntag = reads(s, ks + 1, fs ^ 1)
                A.wait_lg(tag)
            else:
                for st_, need in ((KO, "kvw"), (F2, "kvs"), (KO + 1, "kvs")):
                    while st_ == s and need not in tg: JS_.step(16*s + 11)
                A("s_waitcnt lgkmcnt(0)")
                if s < 6:
                    t = dma_tag[s+1]
                    if s == F2: t = max(t, tg["kvs"])
                    A.wait_vm(t)
                    stamp(A, f"st{s}_prebar", 2)
                    A("s_barrier")
                    stamp(A, f"st{s}_postbar", 2)
                    ntag = reads(s + 1, 0, fs ^ 1)
                elif F2 == 6:
                    A.wait_vm(tg["kvs"])
                    A("s_barrier")
            b = FR[fs]
            for m in range(4):
                tt, nt = m >> 1, m & 1
                a = ACC + m*16
                c = "0" if (s == 0 and ks == 0) else f"v[{a}:{a+15}]"
                A(f"v_mfma_f32_32x32x16_bf16 v[{a}:{a+15}], v[{b+8+4*tt}:{b+11+4*tt}], v[{b+4*nt}:{b+4*nt+3}], {c}")
                now = 16*s + 4*ks + m
                JV.step(now); JS_.step(now)
            if s == 0 or (s == 1 and not OPT["rot2"]):
                lab = A.label("L_cs")
                if OPT["rot2"]: A(f"s_cmp_ge_u32 s{SCS}, 2")
                else: A(f"s_cmp_lg_u32 s{SCS}, {s}")
                A(f"s_cbranch_scc1 {lab}")
                for tt in range(2):
                    a = CACC + 16*tt
                    c = "0" if ks == 0 else f"v[{a}:{a+15}]"
                    A(f"v_mfma_f32_32x32x16_bf16 v[{a}:{a+15}], v[{ONES}:{ONES+3}], v[{b+8+4*tt}:{b+11+4*tt}], {c}")
                A(f"{lab}:")
            tag = ntag
            fs ^= 1
    JV.flush(999); JS_.flush(150)
    A(f"s_lshl_b32 s{T0}, s2, 2")
    A(f"s_load_dword s{SDV}, s[{SD}:{SD+1}], s{T0}")
    SH0, SH1 = 55, 56
    A(f"s_lshl_b32 s{T0}, s{SI}, 2"); A(f"s_lshl_b32 s{T1}, s{SSH}, 1"); A(f"s_add_u32 s{T0}, s{T0}, s{T1}"); A(f"s_mul_i32 s{T0}, s{T0}, 112")
    A(f"s_lshl_b32 s{T1}, s{SJ}, 3"); A(f"s_add_u32 s{T0}, s{T0}, s{T1}")
    A(f"s_lshl_b32 s{T1}, s{SKQ}, 1"); A(f"s_add_u32 s{T0}, s{T0}, s{T1}")
    A(f"s_lshl_b32 s{T0}, s{T0}, 10"); A(f"s_add_u32 s{SH0}, s{T0}, {WS_H}"); A(f"s_add_u32 s{SH1}, s{SH0}, {112*1024}")
    A("v_and_b32 v2, 15, v1"); A("v_lshrrev_b32 v3, 4, v1"); A("v_and_b32 v4, 1, v1")
    A("v_add_u32 v7, 1, v2"); A("v_and_b32 v5, 3, v7"); A("v_lshrrev_b32 v7, 2, v7")
    A("v_cmp_eq_u32 vcc, 0, v5")
    A(f"v_mul_u32_u24 v5, {HCP}, v5")
    A("v_add_u32 v7, v7, v3"); A("v_lshl_add_u32 v5, v7, 4, v5")
    A("v_cndmask_b32 v7, 0, 16, vcc"); A("v_sub_u32 v5, v5, v7")
    A(f"s_mul_i32 s{T0}, s{SSH}, {HS_}"); A(f"s_lshl_b32 s{T2}, s{SKQ}, 7"); A(f"s_add_u32 s{T0}, s{T0}, s{T2}"); A(f"s_add_u32 s{T0}, s{T0}, {HBC-64}")
    A(f"v_add_u32 v5, s{T0}, v5")
    A(f"v_mul_u32_u24 v6, {R1D}, v4"); A("v_lshl_add_u32 v6, v3, 4, v6")
    A("v_lshrrev_b32 v7, 1, v2"); A("v_lshlrev_b32 v13, 6, v7"); A("v_sub_u32 v6, v6, v13")
    A(f"s_mul_i32 s{T1}, s{SSH}, {RS}"); A(f"s_add_u32 s{T0}, s{T1}, s{T2}"); A(f"s_add_u32 s{T0}, s{T0}, {RB+4032-3584}")
    A(f"v_add_u32 v6, s{T0}, v6")
    A(f"s_lshl_b32 s{T2}, s{SKQ}, 10"); A(f"s_sub_u32 s{T2}, s{T1}, s{T2}"); A(f"s_add_u32 s{T2}, s{T2}, {RB+R1D+4080}")
    A(f"v_sub_u32 v13, s{T2}, v{VHL}")
    for tt in range(2):
        for nt in range(2):
            a = ACC + (tt*2 + nt)*16
            A(f"v_mfma_f32_32x32x16_bf16 v[{a}:{a+15}], v[{CS+4*tt}:{CS+4*tt+3}], v[{BM+4*nt}:{BM+4*nt+3}], v[{a}:{a+15}]")
    stamp(A, "g1_mfma_end", 1, 2, 3)
    JS_.flush(999 if OPT["stag"] else 200); JV.flush(999)
    def epilogue(pk, wl, mid=None):
        wl = list(wl); per = (len(wl) + 6) // 7
        def drain():
            for _ in range(per):
                if wl: w2load(wl.pop(0))
        for nt in range(2):
            A(f"v_mul_f32 v{KC+4*nt}, {hex(f2u(-1.4426950408889634))}, v{STT+2*nt+1}")
            A(f"v_mul_f32 v{KC+4*nt+2}, v{STT+2*nt+1}, v{STT+2*nt+1}")
            A(f"v_mov_b32 v{KC+4*nt+1}, v{KC+4*nt}")
            A(f"v_rcp_f32 v{KC+4*nt+2}, v{KC+4*nt+2}")
            A(f"v_mov_b32 v{KC+4*nt+3}, v{KC+4*nt+2}")
        for tt in range(2):
            for nt in range(2):
                a = ACC + (tt*2 + nt)*16
                k1 = f"v[{KC+4*nt}:{KC+4*nt+1}]"; kq = f"v[{KC+4*nt+2}:{KC+4*nt+3}]"
                if pk:
                    for r in range(0, 8, 2): A(f"v_pk_mul_f32 v[{T+r}:{T+r+1}], v[{a+r}:{a+r+1}], {k1}")
                else:
                    for r in range(8): A(f"v_mul_f32 v{T+r}, v{a+r}, v{KC+4*nt}")
                for r in range(8): A(f"v_exp_f32 v{T+r}, v{T+r}")
                if pk:
                    for r in range(0, 8, 2): A(f"v_pk_mul_f32 v[{a+r}:{a+r+1}], v[{a+r}:{a+r+1}], v[{a+8+r}:{a+9+r}]")
                    for r in range(0, 8, 2): A(f"v_pk_fma_f32 v[{T+r}:{T+r+1}], v[{T+r}:{T+r+1}], {kq}, {kq}")
                else:
                    for r in range(8): A(f"v_mul_f32 v{a+r}, v{a+r}, v{a+8+r}")
                    for r in range(8): A(f"v_fma_f32 v{T+r}, v{T+r}, v{KC+4*nt+2}, v{KC+4*nt+2}")
                drain()
                for r in range(8): A(f"v_rcp_f32 v{T+r}, v{T+r}")
                if pk:
                    for r in range(0, 8, 2): A(f"v_pk_mul_f32 v[{a+r}:{a+r+1}], v[{a+r}:{a+r+1}], v[{T+r}:{T+r+1}]")
                else:
                    for r in range(8): A(f"v_mul_f32 v{a+r}, v{a+r}, v{T+r}")
                for q in range(4): A(f"v_cvt_pk_bf16_f32 v{a+8+q}, v{a+2*q}, v{a+2*q+1}")
                A(f"buffer_store_dwordx4 v[{a+8}:{a+11}], v{VHL}, {srd(WS)}, s{SH0+nt} offen offset:{tt*1024} sc1")
                if tt*2 + nt < 3: drain()
                if tt*2 + nt == 2 and mid: mid()
        assert not wl
    if OPT["stag"]:
        lv1 = A.label("L_cv1"); lvj = A.label("L_cvj")
        A(f"s_cmp_ge_u32 s{WV}, 4"); A(f"s_cbranch_scc1 {lv1}")
        ns0 = Ctx.nstamp; nn0 = len(Ctx.names)
        rest = list(range(28 - NW2))
        wconv = rest; rest = []
        NLE = NHE = 0
        A.role = "lo"
        epilogue(True, rest[:NLE])
        stamp(A, "epi_end", 3)
        conv_kvwrite("lo")
        stamp(A, "bk", 3)
        A(f"s_branch {lvj}")
        Ctx.nstamp = ns0; del Ctx.names[nn0:]
        A(f"{lv1}:")
        A.role = "hi"
        for t in rest[NHE:]: w2load(t)
        conv_kvwrite("hi")
        if OPT["prof"] == 3: Ctx.nstamp += 1; Ctx.names.append("epi_end")
        stamp(A, "bk", 3)
        if OPT["prio"]: A("s_setprio 1")
        epilogue(OPT["pkhi"], rest[:NHE])
        if OPT["prio"]: A("s_setprio 0")
        if OPT["prof"] == 3: A(f"s_memtime s[{STAMP0+2*ns0}:{STAMP0+2*ns0+1}]")
        A.role = None
        A(f"{lvj}:")

    else:
        wconv = list(range(28 - NW2))
        epilogue(True, [], mid=lambda: JS_.flush(300))
        stamp(A, "epi_end", 3)
        tg["h0"] = A.vm_tag()
        JS_.flush(999)
        conv_kvwrite(None)
        stamp(A, "bk", 3)
    tg["h"] = tg.get("h0", A.vm_tag())
    TS = 1088
    Y = 16
    POOL = [240, 244, 248, 252] + list(range(64, 128, 4))
    ml = []
    for rr in range(2):
        for t in range(8):
            pairs = [(p, t) for p in range(t)] + [(t, q) for q in range(t + 1)]
            ml += [(rr, p, q) for p, q in pairs if p + q <= 7]
    loads = [(rr, k, t) for rr in range(2) for t in range(8) for k in "AB"]
    last_use = {}; first_use = {}
    for i, (rr, p, q) in enumerate(ml):
        for key in ((rr, "A", p), (rr, "B", q)):
            last_use[key] = i; first_use.setdefault(key, i)
    loads.sort(key=lambda k: first_use[k])
    free = list(POOL); slot = {}; ltag = {}
    st = dict(li=0, waited=0)
    seen = set()
    def issue(maxn):
        n = 0
        while st["li"] < len(loads) and free and n < maxn:
            key = loads[st["li"]]; rr, kind, t = key
            sl = free.pop(0); slot[key] = sl
            if kind == "A": A(f"ds_read_b128 v[{sl}:{sl+3}], v5 offset:{64*rr + 512*t}")
            else: A(f"ds_read_b128 v[{sl}:{sl+3}], v6 offset:{64*rr + 512*(7-t)}")
            ltag[key] = A.lg_tag(); st["li"] += 1; n += 1
    issue(10)
    for i, (rr, p, q) in enumerate(ml):
        ka, kb = (rr, "A", p), (rr, "B", q)
        while ka not in slot or kb not in slot: issue(1)
        need = max(ltag[ka], ltag[kb])
        if need > st["waited"]:
            A.wait_lg(need); st["waited"] = need
        j = p + q
        c = f"v[{Y+4*j}:{Y+4*j+3}]" if j in seen else "0"
        seen.add(j)
        A(f"v_mfma_f32_16x16x32_bf16 v[{Y+4*j}:{Y+4*j+3}], v[{slot[ka]}:{slot[ka]+3}], v[{slot[kb]}:{slot[kb]+3}], {c}")
        for key in (ka, kb):
            if last_use[key] == i: free.append(slot[key])
        issue(1)
        if wconv and i > OPT["ar0"] and i % 2 == 0: w2load(wconv.pop(0))
        if i == OPT["ar0"]:
            A.wait_vm(tg["h"])
            arrive_flag(A, 3, CNT_OFF, 8)
            st["waited"] = A.lg
            stamp(A, "arr3", 3)
    for t in wconv: w2load(t)
    A("ds_read_b128 v[8:11], v13")
    A(f"s_mul_i32 s{T0}, s{WV}, {8*TS}"); A(f"s_add_u32 s{T0}, s{T0}, {CX}")
    A("v_mul_u32_u24 v12, 544, v4"); A("v_lshl_add_u32 v12, v7, 6, v12"); A("v_lshl_add_u32 v12, v3, 4, v12")
    A(f"v_add_u32 v12, s{T0}, v12")
    for j in range(8): A(f"ds_write_b128 v12, v[{Y+4*j}:{Y+4*j+3}] offset:{j*TS}")
    stamp(A, "conv_mfma_end", 1, 3)
    A(f"v_mul_u32_u24 v12, {TS}, v15"); A("v_lshl_add_u32 v12, v14, 4, v12")
    A(f"s_mul_i32 s{T0}, s{SKQ}, {2*TS}"); A(f"s_mul_i32 s{T1}, s{SSH}, {8*TS}"); A(f"s_add_u32 s{T0}, s{T0}, s{T1}"); A(f"s_add_u32 s{T0}, s{T0}, {CX}")
    A(f"v_add_u32 v12, s{T0}, v12")
    tg["p3"] = poll_issue(A, 3, id_p3, VP)
    A("s_waitcnt lgkmcnt(0)")
    A(f"s_lshl_b32 s{T0}, s{SDV}, 16"); A(f"s_and_b32 s{T1}, s{SDV}, 0xffff0000")
    A(f"s_cmp_eq_u32 s{SSH}, 1"); A(f"s_cselect_b32 s{SDV}, s{T1}, s{T0}")
    A("s_barrier")
    for src in range(4):
        for w in range(2):
            A(f"ds_read_b128 v[{64+8*src+4*w}:{67+8*src+4*w}], v12 offset:{src*16*TS + w*544}")
    for q in range(4): unpack(A, 20+2*q, 21+2*q, 8 + q)
    A("s_waitcnt lgkmcnt(4)")
    for e in range(0, 8, 2): A(f"v_pk_add_f32 v[{64+e}:{65+e}], v[{64+e}:{65+e}], v[{72+e}:{73+e}]")
    for q in range(4):
        r = 3 - q
        A(f"v_fmac_f32 v{68+r}, s{SDV}, v{20+2*q}"); A(f"v_fmac_f32 v{64+r}, s{SDV}, v{21+2*q}")
    A("s_waitcnt lgkmcnt(0)")
    for e in range(0, 8, 2): A(f"v_pk_add_f32 v[{80+e}:{81+e}], v[{80+e}:{81+e}], v[{88+e}:{89+e}]")
    for e in range(0, 8, 2): A(f"v_pk_add_f32 v[{64+e}:{65+e}], v[{64+e}:{65+e}], v[{80+e}:{81+e}]")
    for r in range(4): A(f"v_cvt_pk_bf16_f32 v{8+r}, v{64+r}, v{68+r}")
    A(f"s_lshl_b32 s{T0}, s2, 13"); A(f"s_lshl_b32 s{T1}, s{SSH}, 12"); A(f"s_add_u32 s{T0}, s{T0}, s{T1}")
    A(f"s_lshl_b32 s{T1}, s{SKQ}, 10"); A(f"s_add_u32 s{T0}, s{T0}, s{T1}"); A(f"s_add_u32 s{T0}, s{T0}, {WS_ZT}")
    A(f"buffer_store_dwordx4 v[8:11], v{VHL}, {srd(WS)}, s{T0} offen sc1")
    stamp(A, "conv_end", 1, 3)
    HSL = [0, 126976, 49152]
    poll_check(A, VP, tg["p3"])
    stamp(A, "g2_go", 1, 3, 4)
    A(f"s_lshl_b32 s{SMX}, s{WV}, 12")
    htag = {}
    def hdma(sg, lo, n):
        A(f"s_add_u32 s{T5}, s{SOH}, {sg*4096}")
        A(f"s_add_u32 m0, s{SMX}, {HSL[sg % 3]}")
        for e in range(lo, lo + n):
            A(f"buffer_load_dwordx4 v{VHL}, {srd(WS)}, s{T5} offen offset:{e*1024} sc1 lds")
        htag[sg] = A.vm_tag()
    hdma(0, 0, 4); hdma(1, 0, 4)
    A("v_lshrrev_b32 v8, 3, v1"); A("v_and_b32 v11, 7, v1")
    A(f"s_lshl_b32 s{T0}, s{SSB}, 6"); A(f"s_lshl_b32 s{T1}, s{WV}, 3"); A(f"s_add_u32 s{T0}, s{T0}, s{T1}")
    A(f"v_add_u32 v9, s{T0}, v8")
    A("v_mul_u32_u24 v10, 896, v9"); A("v_lshl_add_u32 v3, v11, 4, v10")
    A("v_lshlrev_b32 v5, 3, v9")
    A("v_lshrrev_b32 v9, 3, v0"); A("v_lshlrev_b32 v9, 12, v9"); A("v_lshl_add_u32 v4, v11, 4, v9")
    A(f"s_lshl_b32 s{SNB}, s{SJR}, 7")
    A(f"s_lshl_b32 s{T0}, s{SKQ}, 13")
    A(f"v_add_u32 v6, s{T0}, v{VHL}"); A(f"v_add_u32 v7, {HSL[1]}, v6")
    FR2 = [16, 24]
    ACC2 = 64
    XR, STT2, ZR, XW = 32, 36, 40, 44
    XF, TT, ZF, TP, P = 96, 104, 112, 120, 128
    A(f"buffer_load_dwordx4 v[{XR}:{XR+3}], v3, {srd(Q)}, s{SNB} offen")
    A(f"s_mov_b32 s{T0}, {WS_STATS}")
    A(f"buffer_load_dwordx2 v[{STT2}:{STT2+1}], v5, {srd(WS)}, s{T0} offen sc1")
    tg["x"] = A.vm_tag()
    A("v_bfe_u32 v9, v1, 1, 2"); A("v_and_b32 v10, 1, v1"); A("v_lshl_add_u32 v9, v10, 2, v9")
    A("v_lshlrev_b32 v10, 2, v15"); A("v_xor_b32 v10, v10, v9")
    A(f"s_lshl_b32 s{T0}, s{WV}, 13"); A(f"s_add_u32 s{T0}, s{T0}, {X2}")
    A(f"v_lshl_add_u32 v9, v14, 7, s{T0}")
    for rho in range(4):
        A(f"v_xor_b32 v12, {rho}, v10"); A(f"v_lshl_add_u32 v{XW+rho}, v12, 4, v9")
    A(f"v_xor_b32 v2, s{WV}, v11"); A("v_lshlrev_b32 v2, 4, v2"); A("v_lshl_add_u32 v10, v8, 7, v2")
    A("v_lshl_add_u32 v2, v11, 10, v2"); A("v_lshl_add_u32 v2, v8, 1, v2"); A(f"v_add_u32 v2, {ZB}, v2")
    A(f"s_lshl_b32 s{T0}, s{WV}, 10"); A(f"s_add_u32 s{T1}, s{T0}, {ZB}"); A(f"v_add_u32 v10, s{T1}, v10")
    A("v_bfe_u32 v9, v1, 4, 2"); A("v_bfe_u32 v12, v1, 3, 1"); A("v_lshl_add_u32 v9, v12, 2, v9")
    A("v_and_b32 v13, 3, v1"); A("v_lshlrev_b32 v13, 1, v13"); A("v_xor_b32 v13, v13, v9")
    A("v_bfe_u32 v9, v1, 2, 1"); A("v_lshlrev_b32 v9, 13, v9"); A("v_lshl_add_u32 v9, v8, 7, v9")
    A(f"s_add_u32 s{T0}, s{T0}, {X2}"); A(f"v_add_u32 v9, s{T0}, v9")
    A("v_lshl_add_u32 v12, v13, 4, v9"); A("v_xor_b32 v13, 1, v13"); A("v_lshl_add_u32 v13, v13, 4, v9")
    def rndl(base):
        ls = [f"v_cvt_pk_bf16_f32 v{TP+q}, v{base+2*q}, v{base+2*q+1}" for q in range(4)]
        for q in range(4): ls += [f"v_lshlrev_b32 v{base+2*q}, 16, v{TP+q}", f"v_and_b32 v{base+2*q+1}, 0xffff0000, v{TP+q}"]
        return ls
    def upl(base, src):
        ls = []
        for q in range(4): ls += [f"v_lshlrev_b32 v{base+2*q}, 16, v{src+q}", f"v_and_b32 v{base+2*q+1}, 0xffff0000, v{src+q}"]
        return ls
    def hreads(sg, tl, fs):
        sl = sg % 3
        for st_ in range(2):
            A(f"ds_read_b128 v[{FR2[fs]+4*st_}:{FR2[fs]+4*st_+3}], v{7 if sl == 1 else 6} offset:{(0 if sl == 1 else HSL[sl]) + st_*4096 + tl*1024}")
        return A.lg_tag()
    JV, JS_ = Jobs(), Jobs()
    JV.add(0, atom(lambda: hdma(2, 0, 2))); JV.add(2, atom(lambda: hdma(2, 2, 2)))
    for sg in range(4):
        JV.add(8*sg + 6, atom(lambda sg=sg: hdma(sg + 3, 0, 2))); JV.add(8*sg + 8, atom(lambda sg=sg: hdma(sg + 3, 2, 2)))
    JS_.add(0, atom(lambda: set_flag(A, 4, 48)))
    def xmath():
        A.wait_vm(tg["x"])
        ls = upl(XF, XR) + [f"v_sub_f32 v{TT+e}, v{XF+e}, v{STT2}" for e in range(8)] + rndl(TT)
        ls += [f"v_mul_f32 v{TT+e}, v{TT+e}, v{STT2+1}" for e in range(8)] + rndl(TT)
        yield from lines(A, ls, 4)
    JS_.add(8, xmath)
    TZ, TZW = OPT["tz"], OPT["tzw"]
    JS_.add(2*TZ, atom(lambda: tg.__setitem__("p4", poll_issue(A, 4, id_p4, VP))))
    def zload():
        poll_check(A, VP, tg["p4"])
        stamp(A, "zpoll", 4)
        A(f"s_lshl_b32 s{T0}, s{SJR}, 18"); A(f"s_lshl_b32 s{T1}, s{SSB}, 7"); A(f"s_add_u32 s{T0}, s{T0}, s{T1}"); A(f"s_add_u32 s{T0}, s{T0}, {WS_ZT}")
        A(f"buffer_load_dwordx4 v[{ZR}:{ZR+3}], v4, {srd(WS)}, s{T0} offen sc1")
        tg["z"] = A.vm_tag()
    JS_.add(2*TZ + 10, atom(zload))
    def zwrite():
        A.wait_vm(tg["z"])
        for e in range(8):
            op = "ds_write_b16" if e % 2 == 0 else "ds_write_b16_d16_hi"
            A(f"{op} v2, v{ZR + e//2} offset:{e*128}")
        tg["zw"] = True
    JS_.add(2*TZW, atom(zwrite))
    def zmath():
        A(f"ds_read_b128 v[{ZR}:{ZR+3}], v10")
        t = A.lg_tag()
        yield; yield
        A.wait_lg(t)
        ls = upl(ZF, ZR) + [f"v_mul_f32 v{TT+e}, v{TT+e}, v{ZF+e}" for e in range(8)] + rndl(TT)
        ls += [f"v_add_f32 v{TT+e}, v{TT+e}, v{XF+e}" for e in range(8)] + rndl(TT)
        yield from lines(A, ls, 6)
    JS_.add(46, zmath)
    A.wait_vm(htag[0])
    A("s_barrier")
    stamp(A, "g2_first", 1, 4)
    tag = hreads(0, 0, 0)
    fs = 0
    for sg in range(7):
        for tl in range(4):
            t = 4*sg + tl
            if tl < 3:
                ntag = hreads(sg, tl + 1, fs ^ 1)
                A.wait_lg(tag)
            else:
                if sg == 5:
                    while "zw" not in tg: JS_.step(45)
                A("s_waitcnt lgkmcnt(0)")
                if sg < 6:
                    A.wait_vm(htag[sg+1])
                    A("s_barrier")
                    stamp(A, f"g2_b{sg}", 4)
                    ntag = hreads(sg + 1, 0, fs ^ 1)
            for st_ in range(2):
                a = ACC2 + 16*st_
                c = "0" if t == 0 else f"v[{a}:{a+15}]"
                A(f"v_mfma_f32_32x32x16_bf16 v[{a}:{a+15}], v[{WR+4*t}:{WR+4*t+3}], v[{FR2[fs]+4*st_}:{FR2[fs]+4*st_+3}], {c}")
                JV.step(2*t + st_); JS_.step(2*t + st_)
            tag = ntag
            fs ^= 1
    stamp(A, "g2_mfma_end", 1, 4)
    for st_ in range(2):
        for rho in range(4):
            a = ACC2 + 16*st_ + 4*rho
            A(f"ds_write_b128 v{XW+rho}, v[{a}:{a+3}] offset:{st_*4096}")
    JS_.flush(999)
    A("s_waitcnt lgkmcnt(0)")
    A("s_barrier")
    stamp(A, "xbar", 4)
    for src in range(4):
        for hf in range(2):
            A(f"ds_read_b128 v[{P+8*src+4*hf}:{P+8*src+4*hf+3}], v{12 + hf} offset:{src*16384}")
    A("s_waitcnt lgkmcnt(4)")
    for e in range(0, 8, 2): A(f"v_pk_add_f32 v[{P+e}:{P+e+1}], v[{P+e}:{P+e+1}], v[{P+8+e}:{P+9+e}]")
    A("s_waitcnt lgkmcnt(0)")
    for e in range(0, 8, 2): A(f"v_pk_add_f32 v[{P+16+e}:{P+17+e}], v[{P+16+e}:{P+17+e}], v[{P+24+e}:{P+25+e}]")
    for e in range(0, 8, 2): A(f"v_pk_add_f32 v[{P+e}:{P+e+1}], v[{P+e}:{P+e+1}], v[{P+16+e}:{P+17+e}]")
    for l in rndl(P): A(l)
    for e in range(0, 8, 2): A(f"v_pk_add_f32 v[{P+e}:{P+e+1}], v[{P+e}:{P+e+1}], v[{TT+e}:{TT+e+1}]")
    for q in range(4): A(f"v_cvt_pk_bf16_f32 v{TP+q}, v{P+2*q}, v{P+2*q+1}")
    A(f"buffer_store_dwordx4 v[{TP}:{TP+3}], v3, {srd(OUT)}, s{SNB} offen{['', ' sc1', ' nt', ' sc0 sc1'][OPT.get('ost', 0)]}")
    stamp(A, "end", 1, 3, 4)

def build():
    name = NAME + "_kernel"
    out = ["; @launch grid=(256,1,1) block=(512,1,1) lds=163840", '.amdgcn_target "amdgcn-amd-amdhsa--gfx950"', ".text"]
    A = Asm()
    A.vm_tag_big = lambda: (A.vm - 63, A.vm_lo, A.vm_hi)
    A(f".globl {name}"); A(".p2align 8"); A(f".type {name},@function"); A(f"{name}:")
    prologue(A)
    A("s_cmp_ge_u32 s2, 224"); A("s_cbranch_scc1 L_free")
    busy_path(A)
    stamp_dump(A)
    A("s_endpgm")
    A("L_free:")
    free_path(A)
    A("L_exit:")
    A("s_endpgm")
    A("L_codeend:")
    out.append(A.text())
    out.append('.section .rodata,"a"'); out.append(".p2align 6")
    out.append(f""".amdhsa_kernel {name}
  .amdhsa_next_free_vgpr 256
  .amdhsa_next_free_sgpr 102
  .amdhsa_accum_offset 256
  .amdhsa_group_segment_fixed_size 0
  .amdhsa_kernarg_size 104
  .amdhsa_user_sgpr_count 2
  .amdhsa_user_sgpr_kernarg_segment_ptr 1
  .amdhsa_system_sgpr_workgroup_id_x 1
.end_amdhsa_kernel
""")
    return "\n".join(out)

if __name__ == "__main__":
    for a in sys.argv[2:]:
        k, v = a.split("="); OPT[k] = int(v)
    open(sys.argv[1], "w").write(build())
    if OPT["prof"]: open(sys.argv[1] + ".names", "w").write(",".join(Ctx.names))
```

```python
import sys, struct
from asmlib import *
NAME = "parallel_sum__ssm_conv_h3__glu_gated_swiglu__prompt"
S, D, F = 2048, 448, 1792
WS_KVR = 0
WS_H = 2 << 20
WS_ZT = 10 << 20
WS_STATS = 12 << 20
WS_CS = (12 << 20) + (64 << 10)
WS_FLAG = 13 << 20
WS_PROF = 14 << 20
WS_W2T = 16 << 20
WS_SIZE = 18 << 20
Q, Kb, Vb, SSMK, W13, W2, OUT, WS, SHK = 4, 8, 12, 16, 20, 24, 28, 32, 40
SD, SW3, WV = 44, 46, 3
SXCD, SIDX, SIQ, SJR = 48, 49, 50, 51
SI, SJ, SOX, SOW, SMX, SMW, SC = 52, 53, 55, 56, 57, 58, 47
SSB, SOH, SOW2, SKQ, SSH, SDV, SNB = 54, 59, 63, 60, 61, 62, 53
T0, T1, T2, T3, T4, T5 = 64, 65, 66, 67, 68, 69
SPOLL, STAG, STAMP0 = 70, 71, 72
OPT = dict(prof=0, stag=1, ffirst=1, codepf=1, ftouch=1, prio=1, rot2=1, csf=44, kvl=10, kvc=30, ko=2, sto=44, f2=3, pwi=62, pwc=74, nw2=14, p1i=80, p1c=91, p2i=96, p2c=106, vper=5, pkhi=0, ar0=71, tz=12, tzw=22)
def srd(x): return f"s[{x}:{x+3}]"
def f2u(x): return struct.unpack("<I", struct.pack("<f", x))[0]
class Ctx: nstamp = 0; names = []
class nocount:
    def __init__(self, A): self.A = A
    def __enter__(self): self.v = (self.A.vm, self.A.vm_lo, self.A.vm_hi)
    def __exit__(self, *a): self.A.vm, self.A.vm_lo, self.A.vm_hi = self.v
def stamp(A, name, *lv):
    if OPT["prof"] and OPT["prof"] in lv:
        r = STAMP0 + 2*Ctx.nstamp
        assert r + 1 < 102, "too many stamps"
        A(f"{'s_memrealtime' if OPT.get('rt') else 's_memtime'} s[{r}:{r+1}]")
        Ctx.nstamp += 1; Ctx.names.append(name)
def stamp_dump(A):
    if not OPT["prof"]: return
    A("s_waitcnt lgkmcnt(0)")
    A("s_memrealtime s[64:65]"); A("s_memtime s[66:67]")
    A("s_lshl_b32 s68, s2, 3"); A(f"s_add_u32 s68, s68, s{WV}"); A("s_lshl_b32 s68, s68, 7"); A(f"s_add_u32 s68, s68, {WS_PROF}")
    A("s_waitcnt lgkmcnt(0)")
    A("v_mov_b32 v2, 0")
    A(f"s_mov_b32 s{STAMP0}, s{38 if OPT.get('rt') else 36}")
    for sreg, off in [(64, 0), (66, 4), (38, 124)] + [(STAMP0 + 2*q, 8 + 4*q) for q in range(Ctx.nstamp)]:
        A(f"v_mov_b32 v3, s{sreg}")
        A(f"buffer_store_dword v3, v2, {srd(WS)}, s68 offen offset:{off}")
def div7(A, dst, src):
    A(f"s_mul_i32 s{dst}, s{src}, 37"); A(f"s_lshr_b32 s{dst}, s{dst}, 8")
def unpack(A, lo, hi, src):
    A(f"v_lshlrev_b32 v{lo}, 16, v{src}"); A(f"v_and_b32 v{hi}, 0xffff0000, v{src}")
def allreduce32(A, v, t):
    for m in ("quad_perm:[1,0,3,2]", "quad_perm:[2,3,0,1]", "row_half_mirror", "row_mirror"):
        A(f"v_add_f32_dpp v{v}, v{v}, v{v} {m} row_mask:0xf bank_mask:0xf")
    A(f"v_mov_b32 v{t}, v{v}")
    A(f"v_permlane16_swap_b32 v{t}, v{v}")
    A(f"v_add_f32 v{v}, v{v}, v{t}")
def round_bf16(A, dst, src):
    A(f"v_cvt_pk_bf16_f32 v{dst}, v{src}, v{src}"); A(f"v_and_b32 v{dst}, 0xffff0000, v{dst}")

def flag_store(A, val, vt):
    A(f"v_mov_b32 v{vt}, s{STAG}")
    A(f"s_lshl_b32 s{T0}, s2, 7")
    A(f"s_add_u32 s{T0}, s{T0}, {WS_FLAG + val*32768}")
    A(f"v_mov_b32 v{vt+1}, s{T0}")
    A("s_mov_b64 exec, 1")
    A(f"buffer_store_dword v{vt}, v{vt+1}, {srd(WS)}, 0 offen sc1")
    A("s_mov_b64 exec, -1")
def set_flag(A, val, vt):
    lab = A.label("L_nf")
    with nocount(A):
        A(f"s_cmp_lg_u32 s{WV}, 0"); A(f"s_cbranch_scc1 {lab}")
        flag_store(A, val, vt)
        A(f"{lab}:")
def arrive_flag(A, val, cnt_addr, vt):
    lab = A.label("L_na")
    with nocount(A):
        A(f"v_mov_b32 v{vt}, {cnt_addr}"); A(f"v_mov_b32 v{vt+1}, 1")
        A("s_mov_b64 exec, 1")
        A(f"ds_add_rtn_u32 v{vt+1}, v{vt}, v{vt+1}")
        A("s_mov_b64 exec, -1")
        A("s_waitcnt lgkmcnt(0)")
        A(f"v_readfirstlane_b32 s{T0}, v{vt+1}")
        A(f"s_cmp_lg_u32 s{T0}, 7"); A(f"s_cbranch_scc1 {lab}")
        flag_store(A, val, vt)
        A(f"{lab}:")
def poll_issue(A, phase, mkid, vt):
    mkid(A, vt + 1)
    A(f"v_lshlrev_b32 v{vt+1}, 7, v{vt+1}")
    A(f"v_add_u32 v{vt+1}, {WS_FLAG + phase*32768}, v{vt+1}")
    A(f"buffer_load_dword v{vt}, v{vt+1}, {srd(WS)}, 0 offen sc1")
    return A.vm_tag()
def poll_check(A, vt, tag, sleep=0):
    lab = A.label("L_np"); loop = A.label("L_poll"); chk = A.label("L_chk")
    A(f"s_mov_b32 s{SPOLL}, 0")
    A.wait_vm(tag)
    with nocount(A):
        A(f"s_branch {chk}")
        A(f"{loop}:")
        if sleep: A(f"s_sleep {sleep}")
        A(f"buffer_load_dword v{vt}, v{vt+1}, {srd(WS)}, 0 offen sc1")
        A("s_waitcnt vmcnt(0)")
        A(f"{chk}:")
        A(f"v_cmp_ne_u32 vcc, s{STAG}, v{vt}")
        A("s_nop 1")
        A("s_cmp_eq_u64 vcc, 0")
        A(f"s_cbranch_scc1 {lab}")
        A(f"s_add_u32 s{SPOLL}, s{SPOLL}, 1")
        A(f"s_cmp_lt_u32 s{SPOLL}, 100000")
        A(f"s_cbranch_scc1 {loop}")
        A(f"{lab}:")
def load_epoch(A):
    A(f"s_mov_b32 s{SPOLL}, {WS_FLAG}")
    A(f"s_load_dword s{STAG}, s[{WS}:{WS+1}], s{SPOLL}")
def fix_epoch(A):
    A(f"s_add_u32 s{STAG}, s{STAG}, 0x9e3779b9")
def only(A, cond, fn):
    l = A.label("L_o")
    A(f"s_cmp_ge_u32 s{WV}, 4")
    A(f"s_cbranch_scc{'1' if cond == 'lo' else '0'} {l}")
    A.role = cond; lg = A.lg
    fn()
    A.role = None
    A(f"{l}:")

def prologue(A):
    if OPT["prof"]:
        A("s_memtime s[36:37]"); A("s_memrealtime s[38:39]")
        Ctx.nstamp = 1; Ctx.names.append("start")
    A("s_cmp_ge_u32 s2, 256"); A("s_cbranch_scc1 L_exit")
    if OPT["ffirst"]:
        A("s_add_u32 s2, s2, 224"); A("s_and_b32 s2, s2, 255")
    A("s_load_dwordx16 s[72:87], s[0:1], 0")
    A("s_load_dwordx8 s[88:95], s[0:1], 64")
    A(f"s_load_dwordx2 s[{WS}:{WS+1}], s[0:1], 96")
    A("v_and_b32 v1, 63, v0")
    A("v_lshrrev_b32 v2, 6, v0")
    A(f"v_readfirstlane_b32 s{WV}, v2")
    for reg, size in ((Q, S*D*2), (Kb, S*D*2), (Vb, S*D*2), (SHK, D*8), (SSMK, D*S*2), (W13, D*F*2), (W2, F*D*2), (OUT, S*D*2), (WS, WS_SIZE)):
        A(f"s_mov_b32 s{reg+2}, {size}"); A(f"s_mov_b32 s{reg+3}, 0x00020000")
    A(f"s_and_b32 s{SXCD}, s2, 7")
    A(f"s_lshr_b32 s{SIDX}, s2, 3")
    div7(A, SIQ, SIDX)
    A(f"s_mul_i32 s{SJR}, s{SIQ}, 7")
    A(f"s_sub_u32 s{SJR}, s{SIDX}, s{SJR}")
def take_ptrs(A):
    A("s_waitcnt lgkmcnt(0)")
    for reg, slot in ((Q, 0), (W13, 7), (SW3, 8), (Kb, 1), (Vb, 2), (SHK, 3), (SSMK, 4), (SD, 5), (W2, 9), (OUT, 10)):
        A(f"s_mov_b64 s[{reg}:{reg+1}], s[{72+2*slot}:{73+2*slot}]")

def allreduce8(A, v):
    for m in ("quad_perm:[1,0,3,2]", "quad_perm:[2,3,0,1]", "row_half_mirror"):
        A(f"v_add_f32_dpp v{v}, v{v}, v{v} {m} row_mask:0xf bank_mask:0xf")
def stats_addr(A):
    A(f"s_and_b32 s{T0}, s{SXCD}, 3"); A(f"s_lshl_b32 s{T0}, s{T0}, 9")
    A(f"s_lshr_b32 s{T1}, s{SXCD}, 2"); A(f"s_lshl_b32 s{T1}, s{T1}, 8"); A(f"s_add_u32 s{T0}, s{T0}, s{T1}")
    A(f"s_lshl_b32 s{T1}, s{SJR}, 6"); A(f"s_add_u32 s{T0}, s{T0}, s{T1}")
    A(f"v_lshrrev_b32 v13, 3, v0"); A(f"v_add_u32 v13, s{T0}, v13")
    A("v_mul_u32_u24 v12, 896, v13"); A("v_and_b32 v14, 7, v0"); A("v_lshl_add_u32 v12, v14, 4, v12")
    A("v_lshlrev_b32 v13, 3, v13"); A("v_lshl_add_u32 v13, v14, 28, v13")
def stats_load(A, R):
    for e in range(7): A(f"buffer_load_dwordx4 v[{R+4*e}:{R+4*e+3}], v12, {srd(Q)}, 0 offen offset:{e*128}")
def stats_compute(A, R, U, O):
    for e in range(28): unpack(A, U+2*e, U+2*e+1, R+e)
    A(f"v_pk_add_f32 v[16:17], v[{U}:{U+1}], v[{U+2}:{U+3}]"); A(f"v_pk_add_f32 v[18:19], v[{U+4}:{U+5}], v[{U+6}:{U+7}]")
    for e in range(4, 28):
        d = 16 + 2*(e & 1)
        A(f"v_pk_add_f32 v[{d}:{d+1}], v[{d}:{d+1}], v[{U+2*e}:{U+2*e+1}]")
    A("v_pk_add_f32 v[16:17], v[16:17], v[18:19]"); A("v_add_f32 v16, v16, v17")
    allreduce8(A, 16)
    A(f"v_mul_f32 v16, {hex(f2u(-1.0/448))}, v16"); A("v_mov_b32 v17, v16")
    for e in range(28): A(f"v_pk_add_f32 v[{U+2*e}:{U+2*e+1}], v[{U+2*e}:{U+2*e+1}], v[16:17]")
    A(f"v_pk_mul_f32 v[18:19], v[{U}:{U+1}], v[{U}:{U+1}]"); A(f"v_pk_mul_f32 v[20:21], v[{U+2}:{U+3}], v[{U+2}:{U+3}]")
    for e in range(2, 28):
        d = 18 + 2*(e & 1)
        A(f"v_pk_fma_f32 v[{d}:{d+1}], v[{U+2*e}:{U+2*e+1}], v[{U+2*e}:{U+2*e+1}], v[{d}:{d+1}]")
    A("v_pk_add_f32 v[18:19], v[18:19], v[20:21]"); A("v_add_f32 v18, v18, v19")
    allreduce8(A, 18)
    A(f"v_mul_f32 v18, {hex(f2u(1.0/448))}, v18")
    round_bf16(A, 18, 18)
    A(f"v_add_f32 v18, {hex(f2u(1e-5))}, v18")
    round_bf16(A, 18, 18)
    A("v_sqrt_f32 v18, v18")
    round_bf16(A, 18, 18)
    A(f"v_rcp_f32 v{O+1}, v18")
    A("v_xor_b32 v16, 0x80000000, v16")
    round_bf16(A, O, 16)

def free_path(A):
    lab_nw = A.label("L_fw"); lab_nw2 = A.label("L_fw")
    stats_addr(A)
    A(f"s_sub_u32 s{T2}, s2, 224")
    A("v_lshrrev_b32 v2, 3, v1"); A("v_and_b32 v3, 7, v1")
    A("v_bfe_u32 v4, v1, 4, 1"); A("v_lshlrev_b32 v4, 2, v4"); A("v_xor_b32 v3, v3, v4")
    A("v_mul_u32_u24 v6, 896, v2"); A("v_lshl_add_u32 v6, v3, 4, v6")
    A(f"s_mul_i32 s{SOH}, s{T2}, {64*896}"); A(f"s_lshl_b32 s{T5}, s{WV}, 7"); A(f"s_add_u32 s{SOH}, s{SOH}, s{T5}")
    A(f"s_mul_i32 s{SKQ}, s{WV}, 224"); A(f"s_lshl_b32 s{T4}, s{T2}, 2"); A(f"s_add_u32 s{SKQ}, s{SKQ}, s{T4}")
    A(f"s_lshl_b32 s{SKQ}, s{SKQ}, 10"); A(f"s_add_u32 s{SKQ}, s{SKQ}, {WS_W2T}")
    A(f"s_lshl_b32 s{SMX}, s{WV}, 13")
    A(f"s_cmp_lt_u32 s{T2}, 28"); A(f"s_cselect_b32 s{SI}, 7, 0")
    take_ptrs(A)
    stamp(A, "f_kernarg", 6)
    load_epoch(A)
    stats_load(A, 64)
    A("s_barrier")
    A(f"s_cmp_ge_u32 s{WV}, s{SI}"); A(f"s_cbranch_scc1 {lab_nw}")
    for e in range(8):
        A(f"s_add_u32 s{T0}, s{SOH}, {e*8*896}")
        A(f"s_add_u32 m0, s{SMX}, {e*1024}")
        A(f"buffer_load_dwordx4 v6, {srd(W2)}, s{T0} offen lds")
    A("s_waitcnt vmcnt(8)")
    A(f"s_branch {lab_nw2}")
    A(f"{lab_nw}:")
    if OPT["codepf"]:
        A(f"s_getpc_b64 s[{T2}:{T3}]")
        A("L_pc:")
        A(f"s_sub_u32 s{T2}, s{T2}, L_pc-{NAME}_kernel")
        A(f"s_subb_u32 s{T3}, s{T3}, 0")
        for k in range(3):
            A(f"v_lshlrev_b32 v2, 7, v1"); A(f"v_add_u32 v2, {k*8192}, v2")
            A(f"v_min_u32 v2, L_codeend-{NAME}_kernel-4, v2")
            A(f"global_load_dword v{250+k}, v2, s[{T2}:{T3}]")
    A(f"s_waitcnt vmcnt({3 if OPT['codepf'] else 0})")
    A(f"{lab_nw2}:")
    stamp(A, "f_xlanded", 6)
    stats_compute(A, 64, 160, 22)
    A("v_lshrrev_b32 v8, 5, v1"); A("v_lshlrev_b32 v8, 10, v8")
    A("v_bfe_u32 v9, v1, 2, 2"); A("v_lshl_add_u32 v8, v9, 7, v8")
    A("v_and_b32 v9, 1, v1"); A("v_lshl_add_u32 v8, v9, 5, v8")
    A("v_bfe_u32 v9, v1, 4, 1"); A("v_lshl_add_u32 v8, v9, 4, v8")
    A("v_bfe_u32 v9, v1, 1, 1"); A("v_lshl_add_u32 v8, v9, 3, v8")
    A(f"v_add_u32 v8, s{SMX}, v8")
    A("v_bfe_u32 v9, v1, 3, 1"); A("v_xor_b32 v10, 1, v9")
    A("v_lshl_add_u32 v11, v10, 6, v8"); A("v_lshl_add_u32 v10, v9, 6, v8")
    A("v_lshlrev_b32 v9, 4, v1")
    A("s_waitcnt vmcnt(0)")
    stamp(A, "f_w2landed", 6)
    lab3 = A.label("L_fw")
    A(f"s_cmp_ge_u32 s{WV}, s{SI}"); A(f"s_cbranch_scc1 {lab3}")
    for dt in range(2):
        for e in range(4):
            for sec in range(2):
                r = 128 + 16*dt + 4*e + 2*sec
                A(f"ds_read_b64_tr_b16 v[{r}:{r+1}], v{10+dt} offset:{e*2048 + sec*512}")
    A("s_waitcnt lgkmcnt(0)")
    A(f"s_add_u32 s{T0}, s{SKQ}, {112*1024}")
    for dt in range(2):
        for e in range(4):
            r = 128 + 16*dt + 4*e
            A(f"buffer_store_dwordx4 v[{r}:{r+3}], v9, {srd(WS)}, s{T0 if dt else SKQ} offen offset:{e*1024} sc1")
    A(f"{lab3}:")
    A(f"s_mov_b32 s{T4}, {WS_STATS}")
    A(f"buffer_store_dwordx2 v[22:23], v13, {srd(WS)}, s{T4} offen sc1")
    stamp(A, "f_stored", 6)
    A("s_waitcnt vmcnt(0) lgkmcnt(0)")
    fix_epoch(A)
    A("s_barrier")
    stamp(A, "f_flags", 6)
    set_flag(A, 1, 2)
    lab = A.label("L_nf")
    A(f"s_cmp_lg_u32 s{WV}, 0"); A(f"s_cbranch_scc1 {lab}")
    A(f"s_add_u32 s{T0}, s2, 224"); A(f"s_lshl_b32 s{T0}, s{T0}, 7"); A(f"s_add_u32 s{T0}, s{T0}, {WS_FLAG + 8*32768}")
    A(f"v_mov_b32 v2, s{STAG}"); A(f"v_mov_b32 v3, s{T0}")
    A("s_mov_b64 exec, 1")
    A(f"buffer_store_dword v2, v3, {srd(WS)}, 0 offen sc1")
    A("s_mov_b64 exec, -1")
    A(f"{lab}:")
    if OPT["prof"] == 6: stamp_dump(A)
    if OPT["ftouch"]:
        A(f"s_sub_u32 s{T0}, s2, 224")
        A("v_lshlrev_b32 v6, 7, v0")
        A(f"s_mul_i32 s{T1}, s{T0}, {D*S*2//32}")
        A("v_cmp_gt_u32 vcc, 448, v0")
        A("v_mov_b32 v7, 0x7fffff00"); A("v_cndmask_b32 v7, v7, v6, vcc")
        A(f"buffer_load_dword v251, v7, {srd(SSMK)}, s{T1} offen")
    A("s_cmp_lg_u32 s2, 255"); A("s_cbranch_scc1 L_exit")
    def idall(A, v):
        A(f"v_and_b32 v{v}, 255, v0"); A(f"v_cmp_gt_u32 vcc, 224, v{v}")
        A(f"v_cndmask_b32 v{v+1}, 0, 1, vcc"); A(f"v_mul_u32_u24 v{v+1}, 768, v{v+1}"); A(f"v_add_u32 v{v}, v{v}, v{v+1}")
    A("s_sleep 100")
    tg = poll_issue(A, 1, idall, 2)
    poll_check(A, 2, tg, sleep=40)
    A("s_barrier")
    A(f"s_cmp_lg_u32 s{WV}, 0"); A("s_cbranch_scc1 L_exit")
    A(f"v_mov_b32 v2, {WS_FLAG}"); A(f"v_mov_b32 v3, s{STAG}")
    A("s_mov_b64 exec, 1")
    A(f"buffer_store_dword v3, v2, {srd(WS)}, 0 offen sc1")

class Jobs:
    def __init__(self): self.q = []; self.cur = None
    def add(self, start, gen): self.q.append((start, len(self.q), gen)); self.q.sort(key=lambda x: x[:2])
    def step(self, now, n=1):
        for _ in range(n):
            while True:
                if self.cur is None:
                    if not self.q or self.q[0][0] > now: return
                    self.cur = self.q.pop(0)[2]()
                try:
                    next(self.cur); break
                except StopIteration:
                    self.cur = None
    def flush(self, now):
        while self.cur is not None or (self.q and self.q[0][0] <= now): self.step(now)
def lines(A, ls, n=4):
    for i, l in enumerate(ls):
        A(l)
        if i % n == n - 1: yield
    yield
def atom(fn):
    def g():
        fn(); yield
    return g

RB, RS, R1D = 16384, 9216, 4640
CNT_OFF = RB + 2*RS
CX, ZB = 49152, 118784
HBC, HS_, HCP = 127056, 16720, 4160
KB, VB = 147456, 155648
X2 = 49152
WR = 128
VHL, VP = 56, 57
WS_CSP = WS_CS

def busy_path(A):
    PB = 128
    A(f"s_and_b32 s{T0}, s{SXCD}, 3"); A(f"s_lshl_b32 s{T0}, s{T0}, 2"); A(f"s_add_u32 s{SI}, s{T0}, s{SIQ}")
    A(f"s_lshr_b32 s{T0}, s{SXCD}, 2"); A(f"s_mul_i32 s{T0}, s{T0}, 7"); A(f"s_add_u32 s{SJ}, s{T0}, s{SJR}")
    A(f"s_and_b32 s{T2}, s{WV}, 4")
    A(f"s_lshl_b32 s{T0}, s{SI}, 7"); A(f"s_lshl_b32 s{T1}, s{WV}, 4"); A(f"s_add_u32 s{T0}, s{T0}, s{T1}")
    A(f"s_mul_i32 s{SOX}, s{T0}, 896")
    A(f"s_and_b32 s{T0}, s{WV}, 3")
    A(f"s_mul_i32 s{SOW}, s{T0}, {16*3584}"); A(f"s_lshl_b32 s{T1}, s{SJ}, 8"); A(f"s_add_u32 s{SOW}, s{SOW}, s{T1}")
    A(f"s_lshl_b32 s{SMX}, s{WV}, 11")
    A(f"s_lshl_b32 s{SMW}, s{T0}, 12"); A(f"s_mul_i32 s{T1}, s{T2}, {49152//4}")
    A(f"s_add_u32 s{SMW}, s{SMW}, s{T1}"); A(f"s_add_u32 s{SMW}, s{SMW}, 49152")
    VX, VW = 2, 4
    A("v_lshrrev_b32 v8, 3, v1"); A("v_and_b32 v9, 7, v1")
    A("v_lshrrev_b32 v10, 1, v8"); A("v_xor_b32 v10, v9, v10")
    A("v_mul_u32_u24 v11, 896, v8")
    A(f"v_lshl_add_u32 v{VX}, v10, 4, v11")
    A("v_xor_b32 v10, 4, v10")
    A(f"v_lshl_add_u32 v{VX+1}, v10, 4, v11")
    A(f"v_add_u32 v{VX+1}, {8*896-1024}, v{VX+1}")
    A("v_lshrrev_b32 v8, 4, v1"); A("v_bfe_u32 v9, v1, 1, 3")
    A("v_xor_b32 v9, v9, v8"); A(f"v_xor_b32 v9, s{T2}, v9")
    A("v_and_b32 v10, 1, v1"); A("v_lshlrev_b32 v10, 4, v10"); A("v_lshl_add_u32 v10, v9, 5, v10")
    A("v_mul_u32_u24 v11, 3584, v8")
    A(f"v_add_u32 v{VW}, v10, v11")
    for e in range(1, 4): A(f"v_add_u32 v{VW+e}, {e*(14336-1024)}, v{VW}")
    tg = {}
    take_ptrs(A)
    A(f"s_cmp_ge_u32 s{WV}, 4")
    A(f"s_cselect_b32 s{W13}, s{SW3}, s{W13}"); A(f"s_cselect_b32 s{W13+1}, s{SW3+1}, s{W13+1}")
    A(f"s_and_b32 s{SC}, s{SXCD}, 3"); A(f"s_lshl_b32 s{SC}, s{SC}, 1")
    if OPT["rot2"]:
        A(f"s_and_b32 s{T0}, s{SIQ}, 1"); A(f"s_add_u32 s{SC}, s{SC}, s{T0}")
        A(f"s_cmp_eq_u32 s{SC}, 7"); A(f"s_cselect_b32 s{SC}, 0, s{SC}")
    stamp(A, "kernarg", 5)
    load_epoch(A)
    dma_tag = {}
    def dma_parts(stage):
        slot = stage % 3
        def pw(lo):
            A(f"s_mul_i32 s{T5}, s{SC}, {64*3584}"); A(f"s_add_u32 s{T5}, s{T5}, s{SOW}")
            A(f"s_add_u32 m0, s{SMW}, {slot*16384}")
            for e in range(lo, lo + 2):
                A(f"buffer_load_dwordx4 v{VW+e}, {srd(W13)}, s{T5} offen offset:{e*1024} lds")
        def px():
            A(f"s_lshl_b32 s{T5}, s{SC}, 7"); A(f"s_add_u32 s{T5}, s{T5}, s{SOX}")
            A(f"s_add_u32 m0, s{SMX}, {slot*16384}")
            for e in range(2):
                A(f"buffer_load_dwordx4 v{VX+e}, {srd(Q)}, s{T5} offen offset:{e*1024} lds")
            dma_tag[stage] = A.vm_tag()
            A(f"s_add_u32 s{SC}, s{SC}, 1"); A(f"s_cmp_ge_u32 s{SC}, 7"); A(f"s_cselect_b32 s{SC}, 0, s{SC}")
        return [lambda: pw(0), lambda: pw(2), px]
    def dma(stage):
        for p in dma_parts(stage): p()
    dma(0)
    if OPT.get("tlb"):
        lab = A.label("L_tlb")
        with nocount(A):
            A(f"s_cmp_lg_u32 s{WV}, 7"); A(f"s_cbranch_scc1 {lab}")
            A(f"v_lshlrev_b32 v16, {OPT['tlb']}, v1")
            A(f"s_lshl_b32 s{T0}, s2, 7")
            for k, b in enumerate((WS, Kb, Vb, SSMK, OUT, SHK)):
                A(f"buffer_load_dword v{250+k}, v16, {srd(b)}, s{T0} offen")
            A(f"{lab}:")
    if OPT.get("cpf2"):
        lab = A.label("L_cpf")
        with nocount(A):
            A(f"s_cmp_lg_u32 s{WV}, 6"); A(f"s_cbranch_scc1 {lab}")
            A(f"s_getpc_b64 s[{T2}:{T3}]")
            A("L_pc2:")
            A(f"s_sub_u32 s{T2}, s{T2}, L_pc2-{NAME}_kernel")
            A(f"s_subb_u32 s{T3}, s{T3}, 0")
            for k in range(2):
                A(f"v_lshlrev_b32 v16, 7, v1"); A(f"v_add_u32 v16, {k*8192}, v16")
                A(f"v_min_u32 v16, L_codeend-{NAME}_kernel-4, v16")
                A(f"global_load_dword v{250+k}, v16, s[{T2}:{T3}]")
            A(f"{lab}:")
    stamp(A, "dma0_issued", 5)
    XA, WA = 8, 12
    SCS = 46
    A(f"s_and_b32 s{SSH}, s{WV}, 1"); A(f"s_lshr_b32 s{SKQ}, s{WV}, 1")
    A("v_and_b32 v14, 31, v1"); A("v_lshrrev_b32 v15, 5, v1")
    A("v_bfe_u32 v16, v1, 1, 3"); A("v_xor_b32 v16, v16, v15")
    A(f"s_lshl_b32 s{T0}, s{SSH}, 13")
    A(f"v_lshl_add_u32 v17, v14, 7, s{T0}")
    for ks in range(4):
        A(f"v_xor_b32 v18, {2*ks}, v16"); A(f"v_lshl_add_u32 v{XA+ks}, v18, 4, v17")
    A("v_bfe_u32 v16, v1, 4, 1"); A("v_bfe_u32 v17, v1, 2, 2")
    A("v_lshl_add_u32 v18, v15, 3, v17")
    A("v_lshlrev_b32 v18, 8, v18")
    A("v_mul_u32_u24 v19, 49152, v16"); A("v_add_u32 v18, v18, v19"); A("v_add_u32 v18, 49152, v18")
    A("v_and_b32 v19, 1, v1"); A("v_lshlrev_b32 v19, 4, v19")
    A("v_bfe_u32 v20, v1, 1, 1")
    A("v_lshl_add_u32 v19, v20, 3, v19"); A("v_add_u32 v18, v18, v19")
    A("v_lshlrev_b32 v16, 2, v16"); A("v_xor_b32 v16, v16, v17")
    A(f"s_lshl_b32 s{T0}, s{SKQ}, 1"); A(f"v_xor_b32 v16, s{T0}, v16")
    A(f"v_lshl_add_u32 v{WA}, v16, 5, v18")
    A("v_xor_b32 v16, 1, v16")
    A(f"v_lshl_add_u32 v{WA+1}, v16, 5, v18")
    A(f"v_lshlrev_b32 v{VHL}, 4, v1")
    A(f"s_and_b32 s{T0}, s{SXCD}, 3"); A(f"s_lshl_b32 s{T0}, s{T0}, 3")
    A(f"s_and_b32 s{T1}, s{SXCD}, 4"); A(f"s_add_u32 s{SSB}, s{T0}, s{T1}"); A(f"s_add_u32 s{SSB}, s{SSB}, s{SIQ}")
    A(f"s_mul_i32 s{T1}, s{SKQ}, 28")
    A(f"s_lshl_b32 s{T0}, s{SSB}, 1"); A(f"s_add_u32 s{T0}, s{T0}, s{SSH}"); A(f"s_mul_i32 s{T0}, s{T0}, 112")
    A(f"s_add_u32 s{T0}, s{T0}, s{T1}"); A(f"s_lshl_b32 s{T0}, s{T0}, 10"); A(f"s_add_u32 s{SOH}, s{T0}, {WS_H}")
    A(f"s_lshl_b32 s{T0}, s{SJR}, 1"); A(f"s_add_u32 s{T0}, s{T0}, s{SSH}"); A(f"s_mul_i32 s{T0}, s{T0}, 112")
    A(f"s_add_u32 s{T0}, s{T0}, s{T1}"); A(f"s_lshl_b32 s{T0}, s{T0}, 10"); A(f"s_add_u32 s{SOW2}, s{T0}, {WS_W2T}")
    A(f"s_lshl_b32 s{T0}, s{SSH}, 1"); A(f"s_or_b32 s{SCS}, s{T0}, s{SIQ}")
    ONES, CACC = 204, 208
    A(f"s_and_b32 s{T0}, s{SXCD}, 3"); A(f"s_lshl_b32 s{T0}, s{T0}, 1"); A(f"s_add_u32 s{T0}, s{T0}, s{SIQ}")
    A(f"s_cmp_eq_u32 s{T0}, 7"); A(f"s_cselect_b32 s{T0}, 0, 0x3f803f80")
    for r in range(4): A(f"v_mov_b32 v{ONES+r}, s{T0}")
    A("s_waitcnt lgkmcnt(0)")
    fix_epoch(A)
    stamp(A, "setup_done", 1, 5)
    A("s_barrier")
    dma(1)
    stamp(A, "dma1_issued", 5)
    FR = [16, 32]
    ACC = 64
    def reads(stage, ks, fs):
        slot = stage % 3; b = FR[fs]
        for tt in range(2):
            for sec in range(2):
                A(f"ds_read_b64_tr_b16 v[{b+8+4*tt+2*sec}:{b+9+4*tt+2*sec}], v{WA+tt} offset:{slot*16384 + ks*4096 + sec*1024}")
        for nt in range(2):
            A(f"ds_read_b128 v[{b+4*nt}:{b+4*nt+3}], v{XA+ks} offset:{slot*16384 + nt*4096}")
        return A.lg_tag()
    KF, KRW, VRW, VF, WRW, WF, O, PK, KA = PB+4, PB+16, PB+20, PB+24, PB+32, PB+34, PB+38, PB+48, PB+52
    def kv_dma():
        yield from lines(A, [
            f"s_mul_i32 s{T0}, s2, 9363", f"s_lshr_b32 s{T0}, s{T0}, 16",
            f"s_mul_i32 s{T1}, s{T0}, 7", f"s_sub_u32 s{T1}, s2, s{T1}",
            f"s_lshl_b32 s{T2}, s{T0}, 3", f"s_add_u32 s{T2}, s{T2}, s{WV}",
            f"s_mul_i32 s{T2}, s{T2}, {8*896}", f"s_lshl_b32 s{T3}, s{T1}, 7", f"s_add_u32 s{T2}, s{T2}, s{T3}",
            "v_lshrrev_b32 v50, 3, v1", "v_and_b32 v49, 7, v1",
            "v_mul_u32_u24 v48, 896, v50", "v_lshl_add_u32 v48, v49, 4, v48",
            f"s_lshl_b32 s{T3}, s{WV}, 10"], 5)
        A(f"s_add_u32 m0, s{T3}, {KB}")
        if not OPT.get("abl", 0) & 128:
            A(f"buffer_load_dwordx4 v48, {srd(Kb)}, s{T2} offen lds")
            A(f"s_add_u32 m0, s{T3}, {VB}")
            A(f"buffer_load_dwordx4 v48, {srd(Vb)}, s{T2} offen lds")
        yield
        yield from lines(A, [
            f"s_sub_u32 s{T2}, s{T2}, 2688", f"v_lshl_add_u32 v48, v1, 1, s{T2}",
            f"v_mov_b32 v{KF}, 0", f"v_mov_b32 v{KF+1}, 0", f"v_mov_b32 v{KF+2}, 0",
            f"s_lshl_b32 s{T2}, s{T1}, 9", f"v_lshl_add_u32 v51, v1, 3, s{T2}"], 4)
        if not OPT.get("abl", 0) & 16:
            for r in range(3):
                A(f"buffer_load_short_d16_hi v{KF+r}, v48, {srd(Kb)}, 0 offen offset:{r*896}")
            A(f"buffer_load_dwordx2 v[{WRW}:{WRW+1}], v51, {srd(SHK)}, 0 offen")
        tg["kvd"] = A.vm_tag()
        yield
        yield from lines(A, [
            f"s_lshl_b32 s{T1}, s{T1}, 3", f"s_add_u32 s{T1}, s{T1}, s{WV}", f"s_lshl_b32 s{T1}, s{T1}, 15",
            f"s_lshl_b32 s{T0}, s{T0}, 7", f"s_sub_u32 s{T1}, s{T1}, s{T0}", f"s_add_u32 s{T1}, s{T1}, 3968",
            f"v_lshl_add_u32 v{KA+1}, v50, 12, s{T1}", f"v_lshl_add_u32 v{KA+1}, v49, 4, v{KA+1}",
            f"s_lshl_b32 s{T0}, s{WV}, 7", f"s_add_u32 s{T0}, s{T0}, {KB + 7168}",
            f"v_lshl_add_u32 v{KA+2}, v50, 4, s{T0}", "v_lshlrev_b32 v48, 10, v49", f"v_sub_u32 v{KA+2}, v{KA+2}, v48",
            "v_bfe_u32 v48, v1, 2, 2", "v_lshlrev_b32 v48, 7, v48",
            "v_lshrrev_b32 v49, 4, v1", "v_lshl_add_u32 v48, v49, 5, v48",
            "v_and_b32 v49, 3, v1", "v_lshl_add_u32 v48, v49, 3, v48",
            f"s_add_u32 s{T3}, s{T3}, {KB}", f"v_add_u32 v{KA}, s{T3}, v48", f"v_add_u32 v{KA+3}, s{T3}, v{VHL}"], 5)
    def kv_comp():
        A.wait_vm(tg["kvd"])
        for sec in range(2): A(f"ds_read_b64_tr_b16 v[{KRW+2*sec}:{KRW+2*sec+1}], v{KA} offset:{sec*512}")
        for sec in range(2): A(f"ds_read_b64_tr_b16 v[{VRW+2*sec}:{VRW+2*sec+1}], v{KA} offset:{VB-KB + sec*512}")
        t = A.lg_tag()
        yield
        ls = []
        def up(lo, hi, src): ls.extend([f"v_lshlrev_b32 v{lo}, 16, v{src}", f"v_and_b32 v{hi}, 0xffff0000, v{src}"])
        for q in range(2): up(WF+2*q, WF+2*q+1, WRW+q)
        yield from lines(A, ls, 4)
        A.wait_lg(t)
        ls = []
        for q in range(4): up(KF+3+2*q, KF+4+2*q, KRW+q)
        for s_ in range(8): ls.append(f"v_mul_f32 v{O+s_}, v{WF+3}, v{KF+s_}")
        for j in (2, 1, 0):
            for s_ in range(8): ls.append(f"v_fmac_f32 v{O+s_}, v{WF+j}, v{KF+s_+3-j}")
        for q in range(4): up(VF+2*q, VF+2*q+1, VRW+q)
        for s_ in range(8): ls.append(f"v_mul_f32 v{O+s_}, v{O+s_}, v{VF+s_}")
        for q in range(4): ls.append(f"v_cvt_pk_bf16_f32 v{PK+q}, v{O+7-2*q}, v{O+6-2*q}")
        if not OPT.get("abl", 0) & 32: yield from lines(A, ls, OPT["vper"])
        A(f"ds_write_b128 v{KA+3}, v[{PK}:{PK+3}]")
        tg["kvw"] = True
        yield
    def kv_out():
        A(f"ds_read_b128 v[{PK}:{PK+3}], v{KA+2}")
        t = A.lg_tag()
        yield; yield; yield
        A.wait_lg(t)
        if not OPT.get("abl", 0) & 64: A(f"buffer_store_dwordx4 v[{PK}:{PK+3}], v{KA+1}, {srd(WS)}, 0 offen sc1")
        tg["kvs"] = A.vm_tag()
        yield
    def cs_out():
        lab = A.label("L_ncs")
        with nocount(A):
            A(f"s_cmp_ge_u32 s{SCS}, 2"); A(f"s_cbranch_scc1 {lab}")
            A(f"s_lshl_b32 s{T0}, s{SJ}, 3"); A(f"s_lshl_b32 s{T1}, s{SKQ}, 1"); A(f"s_add_u32 s{T0}, s{T0}, s{T1}"); A(f"s_lshl_b32 s{T0}, s{T0}, 3")
            A(f"s_and_b32 s{T1}, s{SXCD}, 3"); A(f"s_lshl_b32 s{T1}, s{T1}, 1"); A(f"s_add_u32 s{T0}, s{T0}, s{T1}"); A(f"s_add_u32 s{T0}, s{T0}, s{SIQ}")
            A(f"s_lshl_b32 s{T0}, s{T0}, 7"); A(f"s_add_u32 s{T0}, s{T0}, {WS_CSP}")
            A("v_lshlrev_b32 v48, 2, v1")
            A("s_mov_b32 exec_hi, 0")
            for tt in range(2):
                c = CACC + 16*tt
                round_bf16(A, 49, c)
                A(f"v_sub_f32 v50, v{c}, v49")
                A(f"v_cvt_pk_bf16_f32 v{50+tt}, v49, v50")
                A(f"buffer_store_dword v{50+tt}, v48, {srd(WS)}, s{T0} offen offset:{tt*1024} sc1")
            A("s_mov_b64 exec, -1")
            A(f"{lab}:")
        tg["css"] = A.vm_tag()
    def cs_flag():
        lab = A.label("L_ncf")
        A(f"s_cmp_ge_u32 s{SCS}, 2"); A(f"s_cbranch_scc1 {lab}")
        A.wait_vm(tg["css"])
        with nocount(A):
            A(f"s_lshl_b32 s{T0}, s2, 2"); A(f"s_add_u32 s{T0}, s{T0}, s{SKQ}"); A(f"s_lshl_b32 s{T0}, s{T0}, 7"); A(f"s_add_u32 s{T0}, s{T0}, {WS_FLAG + 8*32768}")
            A(f"v_mov_b32 v48, s{STAG}"); A(f"v_mov_b32 v49, s{T0}")
            A("s_mov_b64 exec, 1")
            A(f"buffer_store_dword v48, v49, {srd(WS)}, 0 offen sc1")
            A("s_mov_b64 exec, -1")
        A(f"{lab}:")
    CS, BM, STT, T, KC = 240, 248, 52, 16, 24
    def stat_operands():
        A(f"s_lshl_b32 s{T0}, s{SI}, 10"); A(f"s_lshl_b32 s{T1}, s{SSH}, 9"); A(f"s_add_u32 s{T0}, s{T0}, s{T1}"); A(f"s_add_u32 s{T0}, s{T0}, {WS_STATS}")
        A("v_lshlrev_b32 v48, 3, v14")
        for nt in range(2):
            A(f"buffer_load_dwordx2 v[{STT+2*nt}:{STT+2*nt+1}], v48, {srd(WS)}, s{T0} offen offset:{nt*256} sc1")
        yield
        A(f"s_lshl_b32 s{T0}, s{SJ}, 3"); A(f"s_lshl_b32 s{T1}, s{SKQ}, 1"); A(f"s_add_u32 s{T0}, s{T0}, s{T1}")
        A(f"s_lshl_b32 s{T0}, s{T0}, 10"); A(f"s_add_u32 s{T0}, s{T0}, {WS_CSP}")
        A("v_lshlrev_b32 v48, 2, v14"); A("v_lshl_add_u32 v48, v15, 9, v48")
        yield
        for tt in range(2):
            for e in range(4):
                A(f"buffer_load_dword v{CS+4*tt+e}, v48, {srd(WS)}, s{T0} offen offset:{tt*1024 + e*128} sc1")
                if e % 2: yield
        tg["epi"] = A.vm_tag()
    def epi_bm():
        A.wait_vm(tg["epi"])
        for nt in range(2):
            A(f"v_xor_b32 v{BM+4*nt}, 0x80000000, v{STT+2*nt}")
            A(f"v_lshrrev_b32 v{BM+4*nt+1}, 16, v{BM+4*nt}")
            A(f"v_or_b32 v{BM+4*nt}, v{BM+4*nt}, v{BM+4*nt+1}")
            yield
            for r in range(1, 4): A(f"v_mov_b32 v{BM+4*nt+r}, v{BM+4*nt}")
            yield
    def w2load(t):
        assert t >= 14 or "kvs" in tg, "W2T load collides with kv temporaries"
        A(f"s_add_u32 s{T4}, s{SOW2}, {(t // 4)*4096}")
        A(f"buffer_load_dwordx4 v[{WR+4*t}:{WR+4*t+3}], v{VHL}, {srd(WS)}, s{T4} offen offset:{(t % 4)*1024} sc1")
    def conv_prep():
        A(f"s_lshl_b32 s{T0}, s2, 13")
        A("v_lshlrev_b32 v48, 4, v0")
        A(f"s_lshr_b32 s{T1}, s{WV}, 2"); A(f"s_mul_i32 s{T1}, s{T1}, {HS_}")
        A(f"s_and_b32 s{T3}, s{WV}, 3"); A(f"s_lshl_b32 s{T2}, s{T3}, 10"); A(f"s_add_u32 s{T2}, s{T2}, s{T1}")
        yield
        for u in range(4):
            A(f"s_add_u32 m0, s{T2}, {HBC + u*HCP - (16 if u == 0 else 0) - 4*u}")
            A(f"buffer_load_dwordx4 v48, {srd(SSMK)}, s{T0} offen offset:{4*u} lds")
            yield
        A(f"s_mul_i32 s{T2}, s{T3}, {HCP}"); A(f"s_add_u32 s{T2}, s{T2}, s{T1}"); A(f"s_add_u32 s{T2}, s{T2}, {HBC}")
        A(f"s_cmp_eq_u32 s{T3}, 0"); A(f"s_cselect_b32 s{T1}, 16, 0"); A(f"s_sub_u32 s{T2}, s{T2}, s{T1}")
        yield
        for r in (48, 49, 50, 51): A(f"v_mov_b32 v{r}, 0")
        A(f"s_sub_u32 s{T1}, s{T2}, 64"); A(f"v_lshl_add_u32 v62, v1, 2, s{T1}")
        yield
        A(f"s_lshr_b32 exec_lo, 0xffff, s{T3}"); A("s_mov_b32 exec_hi, 0")
        A("ds_write_b32 v62, v48")
        A("s_mov_b64 exec, -1")
        lab = A.label("L_nod0")
        with nocount(A):
            A(f"s_cmp_eq_u32 s{T3}, 0"); A(f"s_cbranch_scc1 {lab}")
            A(f"s_lshl_b32 s{T1}, s{T3}, 2"); A(f"s_sub_u32 m0, s{T2}, s{T1}")
            A(f"s_lshr_b32 s{T1}, s{WV}, 2"); A(f"s_lshl_b32 s{T1}, s{T1}, 12"); A(f"s_add_u32 s{T0}, s{T0}, s{T1}")
            A("v_lshlrev_b32 v62, 2, v1")
            A(f"s_bfm_b64 exec, s{T3}, 0")
            A(f"buffer_load_dword v62, {srd(SSMK)}, s{T0} offen lds")
            A("s_mov_b64 exec, -1")
            A(f"{lab}:")
        yield
        A(f"s_bfe_u32 s{T0}, s{WV}, 0x10001"); A(f"s_mul_i32 s{T0}, s{T0}, {RS}")
        A(f"s_mul_i32 s{T1}, s{SSH}, {R1D}"); A(f"s_add_u32 s{T1}, s{T1}, s{T0}"); A(f"s_add_u32 s{T1}, s{T1}, {RB+4096}")
        A(f"v_add_u32 v62, s{T1}, v{VHL}")
        yield
        A("s_mov_b64 exec, 0xfffffff"); A("ds_write_b128 v62, v[48:51]"); A("s_mov_b64 exec, -1")
        A(f"v_mov_b32 v62, {CNT_OFF}"); A("ds_write_b64 v62, v[48:49]")
        yield
    KVR_, KVT = 60, 48
    def p2_loads():
        A(f"s_lshl_b32 s{T0}, s2, 13")
        A("v_lshlrev_b32 v48, 4, v0"); A("v_and_b32 v49, 255, v0")
        A("v_cmp_eq_u32 vcc, 255, v49")
        A("v_add_u32 v49, 16, v48"); A("v_mov_b32 v50, 0x7fffff00")
        A("v_cndmask_b32 v49, v49, v50, vcc")
        yield
        poll_check(A, VP, tg["p2"])
        A(f"buffer_load_dwordx4 v[{KVR_}:{KVR_+3}], v48, {srd(WS)}, s{T0} offen sc1")
        A(f"buffer_load_dword v59, v49, {srd(WS)}, s{T0} offen sc1")
        tg["kv"] = A.vm_tag()
        yield
    def conv_kvwrite(role):
        A("v_lshrrev_b32 v57, 8, v0"); A(f"v_mul_u32_u24 v57, {RS}, v57")
        A("v_and_b32 v58, 255, v0"); A("v_lshl_add_u32 v57, v58, 4, v57")
        A.wait_vm(tg["kv"], role)
        for q in range(3): A(f"v_alignbit_b32 v{KVT+q}, v{KVR_+1+q}, v{KVR_+q}, 16")
        A(f"v_alignbit_b32 v{KVT+3}, v59, v{KVR_+3}, 16")
        A(f"ds_write_b128 v57, v[{KVR_}:{KVR_+3}] offset:{RB+R1D}")
        A(f"ds_write_b128 v57, v[{KVT}:{KVT+3}] offset:{RB}")
        A("s_waitcnt lgkmcnt(0)")
        A("s_barrier")
    def id_pw(A, v):
        A(f"s_mul_i32 s{T0}, s{SKQ}, 7"); A(f"s_add_u32 s{T0}, s{T0}, 224")
        A(f"v_min_u32 v{v}, 6, v1"); A(f"v_add_u32 v{v}, s{T0}, v{v}")
    def id_p1(A, v):
        A(f"s_lshl_b32 s{T0}, s{SJR}, 3"); A(f"s_and_b32 s{T1}, s{SXCD}, 4"); A(f"s_add_u32 s{T0}, s{T0}, s{T1}")
        A(f"s_lshl_b32 s{T0}, s{T0}, 2"); A(f"s_add_u32 s{T0}, s{T0}, s{SKQ}")
        A(f"v_bfe_u32 v{v+1}, v1, 2, 1"); A(f"v_mul_u32_u24 v{v+1}, 224, v{v+1}"); A(f"v_and_b32 v{v}, 3, v1")
        A(f"v_lshl_add_u32 v{v}, v{v}, 2, v{v+1}"); A(f"v_add_u32 v{v}, s{T0}, v{v}")
        A(f"s_and_b32 s{T0}, s{SIQ}, 1"); A(f"s_lshl_b32 s{T0}, s{T0}, 1"); A(f"s_add_u32 s{T0}, s{T0}, s{SSH}"); A(f"s_lshl_b32 s{T0}, s{T0}, 3")
        A(f"s_lshr_b32 s{T1}, s{SIQ}, 1"); A(f"s_lshl_b32 s{T1}, s{T1}, 2"); A(f"s_add_u32 s{T0}, s{T0}, s{T1}")
        A(f"s_and_b32 s{T1}, s{SXCD}, 3"); A(f"s_add_u32 s{T0}, s{T0}, s{T1}"); A(f"s_add_u32 s{T0}, s{T0}, 448")
        A(f"v_mov_b32 v{v+1}, s{T0}")
        A(f"v_cmp_lt_u32 vcc, 7, v1")
        A(f"v_cndmask_b32 v{v}, v{v}, v{v+1}, vcc")
    def id_p2(A, v):
        A(f"s_and_b32 s{T0}, s{WV}, 3"); A(f"s_lshl_b32 s{T0}, s{T0}, 3"); A(f"s_sub_u32 s{T0}, 31, s{T0}")
        A(f"v_min_u32 v{v}, 8, v1"); A(f"v_sub_u32 v{v}, s{T0}, v{v}"); A(f"v_max_i32 v{v}, 0, v{v}")
        A(f"v_mul_u32_u24 v{v}, 7, v{v}")
        A(f"s_lshr_b32 s{T0}, s2, 5"); A(f"v_add_u32 v{v}, s{T0}, v{v}")
    def id_p3(A, v):
        A(f"s_bfe_u32 s{T0}, s{SSB}, 0x20001"); A(f"s_mul_i32 s{T0}, s{T0}, 56")
        A(f"s_lshr_b32 s{T1}, s{SSB}, 3"); A(f"s_add_u32 s{T0}, s{T0}, s{T1}")
        A(f"s_and_b32 s{T1}, s{SKQ}, 1"); A(f"s_mul_i32 s{T1}, s{T1}, 24"); A(f"s_add_u32 s{T0}, s{T0}, s{T1}")
        A(f"s_and_b32 s{T1}, s{WV}, 4"); A(f"s_add_u32 s{T0}, s{T0}, s{T1}")
        A(f"v_and_b32 v{v}, 3, v1"); A(f"v_lshl_add_u32 v{v}, v{v}, 3, s{T0}")
    def id_p4(A, v):
        A(f"s_lshl_b32 s{T0}, s{SJR}, 5"); A(f"s_lshl_b32 s{T1}, s{WV}, 2"); A(f"s_add_u32 s{T0}, s{T0}, s{T1}")
        A(f"v_and_b32 v{v}, 3, v1"); A(f"v_add_u32 v{v}, s{T0}, v{v}")

    A.wait_vm(dma_tag[0])
    A("s_barrier")
    stamp(A, "g1_start", 1, 2, 5)
    tag = reads(0, 0, 0)
    fs = 0
    JV, JS_ = Jobs(), Jobs()
    for i, p in enumerate(dma_parts(2)): JV.add(1 + 4*i, atom(p))
    for s in range(4):
        for i, p in enumerate(dma_parts(s + 3)): JV.add(16*s + 13 + 4*i, atom(p))
    KO, F2 = OPT["ko"], OPT["f2"]
    ABL = OPT.get("abl", 0)
    if not ABL & 1: JS_.add(OPT["kvl"], kv_dma)
    else: tg["kvw"] = True; tg["kvs"] = A.vm_tag()
    if not ABL & 4: JS_.add(21 if OPT['rot2'] else 36, atom(cs_out))
    if not ABL & 1: JS_.add(OPT["kvc"], kv_comp)
    if not ABL & 4: JS_.add(OPT["csf"], atom(cs_flag))
    if not ABL & 1: JS_.add(max(OPT["sto"], 16*KO + 12), kv_out)
    if not ABL & 4: JS_.add(OPT["p1i"], atom(lambda: tg.__setitem__("p1", poll_issue(A, 8, id_p1, VP))))
    JS_.add(16*F2 + 12, atom(lambda: set_flag(A, 2, 48)))
    NW2 = OPT["nw2"]
    JS_.add(OPT["pwi"] if not ABL & 2 else 151, atom(lambda: tg.__setitem__("pw", poll_issue(A, 1, id_pw, VP))))
    def pwchk():
        poll_check(A, VP, tg["pw"])
        for k in range(NW2):
            JV.add(OPT["pwc"] + 1 + (k*(108 - OPT["pwc"])) // NW2, atom(lambda t=27-k: w2load(t)))
    JS_.add(OPT["pwc"] if not ABL & 2 else 152, atom(pwchk))
    if not ABL & 4: JS_.add(OPT["p1c"], atom(lambda: poll_check(A, VP, tg["p1"])))
    JS_.add(OPT["p1c"] if not ABL & 4 else 160, stat_operands)
    JS_.add(OPT["p2i"] if not ABL & 1 else 180, atom(lambda: tg.__setitem__("p2", poll_issue(A, 2, id_p2, VP))))
    assert KO < 5 or F2 == 6
    JS_.add((92 if KO < 5 else 108) if not ABL & 8 else 160, conv_prep)
    JS_.add(100 if not ABL & 4 else 170, epi_bm)
    JS_.add(OPT["p2c"] if not ABL & 1 else 190, p2_loads)
    for s in range(7):
        for ks in range(4):
            if ks < 3:
                ntag = reads(s, ks + 1, fs ^ 1)
                A.wait_lg(tag)
            else:
                for st_, need in ((KO, "kvw"), (F2, "kvs"), (KO + 1, "kvs")):
                    while st_ == s and need not in tg: JS_.step(16*s + 11)
                A("s_waitcnt lgkmcnt(0)")
                if s < 6:
                    t = dma_tag[s+1]
                    if s == F2: t = max(t, tg["kvs"])
                    A.wait_vm(t)
                    stamp(A, f"st{s}_prebar", 2)
                    A("s_barrier")
                    stamp(A, f"st{s}_postbar", 2)
                    ntag = reads(s + 1, 0, fs ^ 1)
                elif F2 == 6:
                    A.wait_vm(tg["kvs"])
                    A("s_barrier")
            b = FR[fs]
            for m in range(4):
                tt, nt = m >> 1, m & 1
                a = ACC + m*16
                c = "0" if (s == 0 and ks == 0) else f"v[{a}:{a+15}]"
                A(f"v_mfma_f32_32x32x16_bf16 v[{a}:{a+15}], v[{b+8+4*tt}:{b+11+4*tt}], v[{b+4*nt}:{b+4*nt+3}], {c}")
                now = 16*s + 4*ks + m
                JV.step(now); JS_.step(now)
            if s == 0 or (s == 1 and not OPT["rot2"]):
                lab = A.label("L_cs")
                if OPT["rot2"]: A(f"s_cmp_ge_u32 s{SCS}, 2")
                else: A(f"s_cmp_lg_u32 s{SCS}, {s}")
                A(f"s_cbranch_scc1 {lab}")
                for tt in range(2):
                    a = CACC + 16*tt
                    c = "0" if ks == 0 else f"v[{a}:{a+15}]"
                    A(f"v_mfma_f32_32x32x16_bf16 v[{a}:{a+15}], v[{ONES}:{ONES+3}], v[{b+8+4*tt}:{b+11+4*tt}], {c}")
                A(f"{lab}:")
            tag = ntag
            fs ^= 1
    JV.flush(999); JS_.flush(150)
    A(f"s_lshl_b32 s{T0}, s2, 2")
    A(f"s_load_dword s{SDV}, s[{SD}:{SD+1}], s{T0}")
    SH0, SH1 = 55, 56
    A(f"s_lshl_b32 s{T0}, s{SI}, 2"); A(f"s_lshl_b32 s{T1}, s{SSH}, 1"); A(f"s_add_u32 s{T0}, s{T0}, s{T1}"); A(f"s_mul_i32 s{T0}, s{T0}, 112")
    A(f"s_lshl_b32 s{T1}, s{SJ}, 3"); A(f"s_add_u32 s{T0}, s{T0}, s{T1}")
    A(f"s_lshl_b32 s{T1}, s{SKQ}, 1"); A(f"s_add_u32 s{T0}, s{T0}, s{T1}")
    A(f"s_lshl_b32 s{T0}, s{T0}, 10"); A(f"s_add_u32 s{SH0}, s{T0}, {WS_H}"); A(f"s_add_u32 s{SH1}, s{SH0}, {112*1024}")
    A("v_and_b32 v2, 15, v1"); A("v_lshrrev_b32 v3, 4, v1"); A("v_and_b32 v4, 1, v1")
    A("v_add_u32 v7, 1, v2"); A("v_and_b32 v5, 3, v7"); A("v_lshrrev_b32 v7, 2, v7")
    A("v_cmp_eq_u32 vcc, 0, v5")
    A(f"v_mul_u32_u24 v5, {HCP}, v5")
    A("v_add_u32 v7, v7, v3"); A("v_lshl_add_u32 v5, v7, 4, v5")
    A("v_cndmask_b32 v7, 0, 16, vcc"); A("v_sub_u32 v5, v5, v7")
    A(f"s_mul_i32 s{T0}, s{SSH}, {HS_}"); A(f"s_lshl_b32 s{T2}, s{SKQ}, 7"); A(f"s_add_u32 s{T0}, s{T0}, s{T2}"); A(f"s_add_u32 s{T0}, s{T0}, {HBC-64}")
    A(f"v_add_u32 v5, s{T0}, v5")
    A(f"v_mul_u32_u24 v6, {R1D}, v4"); A("v_lshl_add_u32 v6, v3, 4, v6")
    A("v_lshrrev_b32 v7, 1, v2"); A("v_lshlrev_b32 v13, 6, v7"); A("v_sub_u32 v6, v6, v13")
    A(f"s_mul_i32 s{T1}, s{SSH}, {RS}"); A(f"s_add_u32 s{T0}, s{T1}, s{T2}"); A(f"s_add_u32 s{T0}, s{T0}, {RB+4032-3584}")
    A(f"v_add_u32 v6, s{T0}, v6")
    A(f"s_lshl_b32 s{T2}, s{SKQ}, 10"); A(f"s_sub_u32 s{T2}, s{T1}, s{T2}"); A(f"s_add_u32 s{T2}, s{T2}, {RB+R1D+4080}")
    A(f"v_sub_u32 v13, s{T2}, v{VHL}")
    for tt in range(2):
        for nt in range(2):
            a = ACC + (tt*2 + nt)*16
            A(f"v_mfma_f32_32x32x16_bf16 v[{a}:{a+15}], v[{CS+4*tt}:{CS+4*tt+3}], v[{BM+4*nt}:{BM+4*nt+3}], v[{a}:{a+15}]")
    stamp(A, "g1_mfma_end", 1, 2, 3)
    JS_.flush(999 if OPT["stag"] else 200); JV.flush(999)
    def epilogue(pk, wl, mid=None):
        wl = list(wl); per = (len(wl) + 6) // 7
        def drain():
            for _ in range(per):
                if wl: w2load(wl.pop(0))
        for nt in range(2):
            A(f"v_mul_f32 v{KC+4*nt}, {hex(f2u(-1.4426950408889634))}, v{STT+2*nt+1}")
            A(f"v_mul_f32 v{KC+4*nt+2}, v{STT+2*nt+1}, v{STT+2*nt+1}")
            A(f"v_mov_b32 v{KC+4*nt+1}, v{KC+4*nt}")
            A(f"v_rcp_f32 v{KC+4*nt+2}, v{KC+4*nt+2}")
            A(f"v_mov_b32 v{KC+4*nt+3}, v{KC+4*nt+2}")
        for tt in range(2):
            for nt in range(2):
                a = ACC + (tt*2 + nt)*16
                k1 = f"v[{KC+4*nt}:{KC+4*nt+1}]"; kq = f"v[{KC+4*nt+2}:{KC+4*nt+3}]"
                if pk:
                    for r in range(0, 8, 2): A(f"v_pk_mul_f32 v[{T+r}:{T+r+1}], v[{a+r}:{a+r+1}], {k1}")
                else:
                    for r in range(8): A(f"v_mul_f32 v{T+r}, v{a+r}, v{KC+4*nt}")
                for r in range(8): A(f"v_exp_f32 v{T+r}, v{T+r}")
                if pk:
                    for r in range(0, 8, 2): A(f"v_pk_mul_f32 v[{a+r}:{a+r+1}], v[{a+r}:{a+r+1}], v[{a+8+r}:{a+9+r}]")
                    for r in range(0, 8, 2): A(f"v_pk_fma_f32 v[{T+r}:{T+r+1}], v[{T+r}:{T+r+1}], {kq}, {kq}")
                else:
                    for r in range(8): A(f"v_mul_f32 v{a+r}, v{a+r}, v{a+8+r}")
                    for r in range(8): A(f"v_fma_f32 v{T+r}, v{T+r}, v{KC+4*nt+2}, v{KC+4*nt+2}")
                drain()
                for r in range(8): A(f"v_rcp_f32 v{T+r}, v{T+r}")
                if pk:
                    for r in range(0, 8, 2): A(f"v_pk_mul_f32 v[{a+r}:{a+r+1}], v[{a+r}:{a+r+1}], v[{T+r}:{T+r+1}]")
                else:
                    for r in range(8): A(f"v_mul_f32 v{a+r}, v{a+r}, v{T+r}")
                for q in range(4): A(f"v_cvt_pk_bf16_f32 v{a+8+q}, v{a+2*q}, v{a+2*q+1}")
                A(f"buffer_store_dwordx4 v[{a+8}:{a+11}], v{VHL}, {srd(WS)}, s{SH0+nt} offen offset:{tt*1024} sc1")
                if tt*2 + nt < 3: drain()
                if tt*2 + nt == 2 and mid: mid()
        assert not wl
    if OPT["stag"]:
        lv1 = A.label("L_cv1"); lvj = A.label("L_cvj")
        A(f"s_cmp_ge_u32 s{WV}, 4"); A(f"s_cbranch_scc1 {lv1}")
        ns0 = Ctx.nstamp; nn0 = len(Ctx.names)
        rest = list(range(28 - NW2))
        wconv = rest; rest = []
        NLE = NHE = 0
        A.role = "lo"
        epilogue(True, rest[:NLE])
        stamp(A, "epi_end", 3)
        conv_kvwrite("lo")
        stamp(A, "bk", 3)
        A(f"s_branch {lvj}")
        Ctx.nstamp = ns0; del Ctx.names[nn0:]
        A(f"{lv1}:")
        A.role = "hi"
        for t in rest[NHE:]: w2load(t)
        conv_kvwrite("hi")
        if OPT["prof"] == 3: Ctx.nstamp += 1; Ctx.names.append("epi_end")
        stamp(A, "bk", 3)
        if OPT["prio"]: A("s_setprio 1")
        epilogue(OPT["pkhi"], rest[:NHE])
        if OPT["prio"]: A("s_setprio 0")
        if OPT["prof"] == 3: A(f"s_memtime s[{STAMP0+2*ns0}:{STAMP0+2*ns0+1}]")
        A.role = None
        A(f"{lvj}:")

    else:
        wconv = list(range(28 - NW2))
        epilogue(True, [], mid=lambda: JS_.flush(300))
        stamp(A, "epi_end", 3)
        tg["h0"] = A.vm_tag()
        JS_.flush(999)
        conv_kvwrite(None)
        stamp(A, "bk", 3)
    tg["h"] = tg.get("h0", A.vm_tag())
    TS = 1088
    Y = 16
    POOL = [240, 244, 248, 252] + list(range(64, 128, 4))
    ml = []
    for rr in range(2):
        for t in range(8):
            pairs = [(p, t) for p in range(t)] + [(t, q) for q in range(t + 1)]
            ml += [(rr, p, q) for p, q in pairs if p + q <= 7]
    loads = [(rr, k, t) for rr in range(2) for t in range(8) for k in "AB"]
    last_use = {}; first_use = {}
    for i, (rr, p, q) in enumerate(ml):
        for key in ((rr, "A", p), (rr, "B", q)):
            last_use[key] = i; first_use.setdefault(key, i)
    loads.sort(key=lambda k: first_use[k])
    free = list(POOL); slot = {}; ltag = {}
    st = dict(li=0, waited=0)
    seen = set()
    def issue(maxn):
        n = 0
        while st["li"] < len(loads) and free and n < maxn:
            key = loads[st["li"]]; rr, kind, t = key
            sl = free.pop(0); slot[key] = sl
            if kind == "A": A(f"ds_read_b128 v[{sl}:{sl+3}], v5 offset:{64*rr + 512*t}")
            else: A(f"ds_read_b128 v[{sl}:{sl+3}], v6 offset:{64*rr + 512*(7-t)}")
            ltag[key] = A.lg_tag(); st["li"] += 1; n += 1
    issue(10)
    for i, (rr, p, q) in enumerate(ml):
        ka, kb = (rr, "A", p), (rr, "B", q)
        while ka not in slot or kb not in slot: issue(1)
        need = max(ltag[ka], ltag[kb])
        if need > st["waited"]:
            A.wait_lg(need); st["waited"] = need
        j = p + q
        c = f"v[{Y+4*j}:{Y+4*j+3}]" if j in seen else "0"
        seen.add(j)
        A(f"v_mfma_f32_16x16x32_bf16 v[{Y+4*j}:{Y+4*j+3}], v[{slot[ka]}:{slot[ka]+3}], v[{slot[kb]}:{slot[kb]+3}], {c}")
        for key in (ka, kb):
            if last_use[key] == i: free.append(slot[key])
        issue(1)
        if wconv and i > OPT["ar0"] and i % 2 == 0: w2load(wconv.pop(0))
        if i == OPT["ar0"]:
            A.wait_vm(tg["h"])
            arrive_flag(A, 3, CNT_OFF, 8)
            st["waited"] = A.lg
            stamp(A, "arr3", 3)
    for t in wconv: w2load(t)
    A("ds_read_b128 v[8:11], v13")
    A(f"s_mul_i32 s{T0}, s{WV}, {8*TS}"); A(f"s_add_u32 s{T0}, s{T0}, {CX}")
    A("v_mul_u32_u24 v12, 544, v4"); A("v_lshl_add_u32 v12, v7, 6, v12"); A("v_lshl_add_u32 v12, v3, 4, v12")
    A(f"v_add_u32 v12, s{T0}, v12")
    for j in range(8): A(f"ds_write_b128 v12, v[{Y+4*j}:{Y+4*j+3}] offset:{j*TS}")
    stamp(A, "conv_mfma_end", 1, 3)
    A(f"v_mul_u32_u24 v12, {TS}, v15"); A("v_lshl_add_u32 v12, v14, 4, v12")
    A(f"s_mul_i32 s{T0}, s{SKQ}, {2*TS}"); A(f"s_mul_i32 s{T1}, s{SSH}, {8*TS}"); A(f"s_add_u32 s{T0}, s{T0}, s{T1}"); A(f"s_add_u32 s{T0}, s{T0}, {CX}")
    A(f"v_add_u32 v12, s{T0}, v12")
    tg["p3"] = poll_issue(A, 3, id_p3, VP)
    A("s_waitcnt lgkmcnt(0)")
    A(f"s_lshl_b32 s{T0}, s{SDV}, 16"); A(f"s_and_b32 s{T1}, s{SDV}, 0xffff0000")
    A(f"s_cmp_eq_u32 s{SSH}, 1"); A(f"s_cselect_b32 s{SDV}, s{T1}, s{T0}")
    A("s_barrier")
    for src in range(4):
        for w in range(2):
            A(f"ds_read_b128 v[{64+8*src+4*w}:{67+8*src+4*w}], v12 offset:{src*16*TS + w*544}")
    for q in range(4): unpack(A, 20+2*q, 21+2*q, 8 + q)
    A("s_waitcnt lgkmcnt(4)")
    for e in range(0, 8, 2): A(f"v_pk_add_f32 v[{64+e}:{65+e}], v[{64+e}:{65+e}], v[{72+e}:{73+e}]")
    for q in range(4):
        r = 3 - q
        A(f"v_fmac_f32 v{68+r}, s{SDV}, v{20+2*q}"); A(f"v_fmac_f32 v{64+r}, s{SDV}, v{21+2*q}")
    A("s_waitcnt lgkmcnt(0)")
    for e in range(0, 8, 2): A(f"v_pk_add_f32 v[{80+e}:{81+e}], v[{80+e}:{81+e}], v[{88+e}:{89+e}]")
    for e in range(0, 8, 2): A(f"v_pk_add_f32 v[{64+e}:{65+e}], v[{64+e}:{65+e}], v[{80+e}:{81+e}]")
    for r in range(4): A(f"v_cvt_pk_bf16_f32 v{8+r}, v{64+r}, v{68+r}")
    A(f"s_lshl_b32 s{T0}, s2, 13"); A(f"s_lshl_b32 s{T1}, s{SSH}, 12"); A(f"s_add_u32 s{T0}, s{T0}, s{T1}")
    A(f"s_lshl_b32 s{T1}, s{SKQ}, 10"); A(f"s_add_u32 s{T0}, s{T0}, s{T1}"); A(f"s_add_u32 s{T0}, s{T0}, {WS_ZT}")
    A(f"buffer_store_dwordx4 v[8:11], v{VHL}, {srd(WS)}, s{T0} offen sc1")
    stamp(A, "conv_end", 1, 3)
    HSL = [0, 126976, 49152]
    poll_check(A, VP, tg["p3"])
    stamp(A, "g2_go", 1, 3, 4)
    A(f"s_lshl_b32 s{SMX}, s{WV}, 12")
    htag = {}
    def hdma(sg, lo, n):
        A(f"s_add_u32 s{T5}, s{SOH}, {sg*4096}")
        A(f"s_add_u32 m0, s{SMX}, {HSL[sg % 3]}")
        for e in range(lo, lo + n):
            A(f"buffer_load_dwordx4 v{VHL}, {srd(WS)}, s{T5} offen offset:{e*1024} sc1 lds")
        htag[sg] = A.vm_tag()
    hdma(0, 0, 4); hdma(1, 0, 4)
    A("v_lshrrev_b32 v8, 3, v1"); A("v_and_b32 v11, 7, v1")
    A(f"s_lshl_b32 s{T0}, s{SSB}, 6"); A(f"s_lshl_b32 s{T1}, s{WV}, 3"); A(f"s_add_u32 s{T0}, s{T0}, s{T1}")
    A(f"v_add_u32 v9, s{T0}, v8")
    A("v_mul_u32_u24 v10, 896, v9"); A("v_lshl_add_u32 v3, v11, 4, v10")
    A("v_lshlrev_b32 v5, 3, v9")
    A("v_lshrrev_b32 v9, 3, v0"); A("v_lshlrev_b32 v9, 12, v9"); A("v_lshl_add_u32 v4, v11, 4, v9")
    A(f"s_lshl_b32 s{SNB}, s{SJR}, 7")
    A(f"s_lshl_b32 s{T0}, s{SKQ}, 13")
    A(f"v_add_u32 v6, s{T0}, v{VHL}"); A(f"v_add_u32 v7, {HSL[1]}, v6")
    FR2 = [16, 24]
    ACC2 = 64
    XR, STT2, ZR, XW = 32, 36, 40, 44
    XF, TT, ZF, TP, P = 96, 104, 112, 120, 128
    A(f"buffer_load_dwordx4 v[{XR}:{XR+3}], v3, {srd(Q)}, s{SNB} offen")
    A(f"s_mov_b32 s{T0}, {WS_STATS}")
    A(f"buffer_load_dwordx2 v[{STT2}:{STT2+1}], v5, {srd(WS)}, s{T0} offen sc1")
    tg["x"] = A.vm_tag()
    A("v_bfe_u32 v9, v1, 1, 2"); A("v_and_b32 v10, 1, v1"); A("v_lshl_add_u32 v9, v10, 2, v9")
    A("v_lshlrev_b32 v10, 2, v15"); A("v_xor_b32 v10, v10, v9")
    A(f"s_lshl_b32 s{T0}, s{WV}, 13"); A(f"s_add_u32 s{T0}, s{T0}, {X2}")
    A(f"v_lshl_add_u32 v9, v14, 7, s{T0}")
    for rho in range(4):
        A(f"v_xor_b32 v12, {rho}, v10"); A(f"v_lshl_add_u32 v{XW+rho}, v12, 4, v9")
    A(f"v_xor_b32 v2, s{WV}, v11"); A("v_lshlrev_b32 v2, 4, v2"); A("v_lshl_add_u32 v10, v8, 7, v2")
    A("v_lshl_add_u32 v2, v11, 10, v2"); A("v_lshl_add_u32 v2, v8, 1, v2"); A(f"v_add_u32 v2, {ZB}, v2")
    A(f"s_lshl_b32 s{T0}, s{WV}, 10"); A(f"s_add_u32 s{T1}, s{T0}, {ZB}"); A(f"v_add_u32 v10, s{T1}, v10")
    A("v_bfe_u32 v9, v1, 4, 2"); A("v_bfe_u32 v12, v1, 3, 1"); A("v_lshl_add_u32 v9, v12, 2, v9")
    A("v_and_b32 v13, 3, v1"); A("v_lshlrev_b32 v13, 1, v13"); A("v_xor_b32 v13, v13, v9")
    A("v_bfe_u32 v9, v1, 2, 1"); A("v_lshlrev_b32 v9, 13, v9"); A("v_lshl_add_u32 v9, v8, 7, v9")
    A(f"s_add_u32 s{T0}, s{T0}, {X2}"); A(f"v_add_u32 v9, s{T0}, v9")
    A("v_lshl_add_u32 v12, v13, 4, v9"); A("v_xor_b32 v13, 1, v13"); A("v_lshl_add_u32 v13, v13, 4, v9")
    def rndl(base):
        ls = [f"v_cvt_pk_bf16_f32 v{TP+q}, v{base+2*q}, v{base+2*q+1}" for q in range(4)]
        for q in range(4): ls += [f"v_lshlrev_b32 v{base+2*q}, 16, v{TP+q}", f"v_and_b32 v{base+2*q+1}, 0xffff0000, v{TP+q}"]
        return ls
    def upl(base, src):
        ls = []
        for q in range(4): ls += [f"v_lshlrev_b32 v{base+2*q}, 16, v{src+q}", f"v_and_b32 v{base+2*q+1}, 0xffff0000, v{src+q}"]
        return ls
    def hreads(sg, tl, fs):
        sl = sg % 3
        for st_ in range(2):
            A(f"ds_read_b128 v[{FR2[fs]+4*st_}:{FR2[fs]+4*st_+3}], v{7 if sl == 1 else 6} offset:{(0 if sl == 1 else HSL[sl]) + st_*4096 + tl*1024}")
        return A.lg_tag()
    JV, JS_ = Jobs(), Jobs()
    JV.add(0, atom(lambda: hdma(2, 0, 2))); JV.add(2, atom(lambda: hdma(2, 2, 2)))
    for sg in range(4):
        JV.add(8*sg + 6, atom(lambda sg=sg: hdma(sg + 3, 0, 2))); JV.add(8*sg + 8, atom(lambda sg=sg: hdma(sg + 3, 2, 2)))
    JS_.add(0, atom(lambda: set_flag(A, 4, 48)))
    def xmath():
        A.wait_vm(tg["x"])
        ls = upl(XF, XR) + [f"v_sub_f32 v{TT+e}, v{XF+e}, v{STT2}" for e in range(8)] + rndl(TT)
        ls += [f"v_mul_f32 v{TT+e}, v{TT+e}, v{STT2+1}" for e in range(8)] + rndl(TT)
        yield from lines(A, ls, 4)
    JS_.add(8, xmath)
    TZ, TZW = OPT["tz"], OPT["tzw"]
    JS_.add(2*TZ, atom(lambda: tg.__setitem__("p4", poll_issue(A, 4, id_p4, VP))))
    def zload():
        poll_check(A, VP, tg["p4"])
        stamp(A, "zpoll", 4)
        A(f"s_lshl_b32 s{T0}, s{SJR}, 18"); A(f"s_lshl_b32 s{T1}, s{SSB}, 7"); A(f"s_add_u32 s{T0}, s{T0}, s{T1}"); A(f"s_add_u32 s{T0}, s{T0}, {WS_ZT}")
        A(f"buffer_load_dwordx4 v[{ZR}:{ZR+3}], v4, {srd(WS)}, s{T0} offen sc1")
        tg["z"] = A.vm_tag()
    JS_.add(2*TZ + 10, atom(zload))
    def zwrite():
        A.wait_vm(tg["z"])
        for e in range(8):
            op = "ds_write_b16" if e % 2 == 0 else "ds_write_b16_d16_hi"
            A(f"{op} v2, v{ZR + e//2} offset:{e*128}")
        tg["zw"] = True
    JS_.add(2*TZW, atom(zwrite))
    def zmath():
        A(f"ds_read_b128 v[{ZR}:{ZR+3}], v10")
        t = A.lg_tag()
        yield; yield
        A.wait_lg(t)
        ls = upl(ZF, ZR) + [f"v_mul_f32 v{TT+e}, v{TT+e}, v{ZF+e}" for e in range(8)] + rndl(TT)
        ls += [f"v_add_f32 v{TT+e}, v{TT+e}, v{XF+e}" for e in range(8)] + rndl(TT)
        yield from lines(A, ls, 6)
    JS_.add(46, zmath)
    A.wait_vm(htag[0])
    A("s_barrier")
    stamp(A, "g2_first", 1, 4)
    tag = hreads(0, 0, 0)
    fs = 0
    for sg in range(7):
        for tl in range(4):
            t = 4*sg + tl
            if tl < 3:
                ntag = hreads(sg, tl + 1, fs ^ 1)
                A.wait_lg(tag)
            else:
                if sg == 5:
                    while "zw" not in tg: JS_.step(45)
                A("s_waitcnt lgkmcnt(0)")
                if sg < 6:
                    A.wait_vm(htag[sg+1])
                    A("s_barrier")
                    stamp(A, f"g2_b{sg}", 4)
                    ntag = hreads(sg + 1, 0, fs ^ 1)
            for st_ in range(2):
                a = ACC2 + 16*st_
                c = "0" if t == 0 else f"v[{a}:{a+15}]"
                A(f"v_mfma_f32_32x32x16_bf16 v[{a}:{a+15}], v[{WR+4*t}:{WR+4*t+3}], v[{FR2[fs]+4*st_}:{FR2[fs]+4*st_+3}], {c}")
                JV.step(2*t + st_); JS_.step(2*t + st_)
            tag = ntag
            fs ^= 1
    stamp(A, "g2_mfma_end", 1, 4)
    for st_ in range(2):
        for rho in range(4):
            a = ACC2 + 16*st_ + 4*rho
            A(f"ds_write_b128 v{XW+rho}, v[{a}:{a+3}] offset:{st_*4096}")
    JS_.flush(999)
    A("s_waitcnt lgkmcnt(0)")
    A("s_barrier")
    stamp(A, "xbar", 4)
    for src in range(4):
        for hf in range(2):
            A(f"ds_read_b128 v[{P+8*src+4*hf}:{P+8*src+4*hf+3}], v{12 + hf} offset:{src*16384}")
    A("s_waitcnt lgkmcnt(4)")
    for e in range(0, 8, 2): A(f"v_pk_add_f32 v[{P+e}:{P+e+1}], v[{P+e}:{P+e+1}], v[{P+8+e}:{P+9+e}]")
    A("s_waitcnt lgkmcnt(0)")
    for e in range(0, 8, 2): A(f"v_pk_add_f32 v[{P+16+e}:{P+17+e}], v[{P+16+e}:{P+17+e}], v[{P+24+e}:{P+25+e}]")
    for e in range(0, 8, 2): A(f"v_pk_add_f32 v[{P+e}:{P+e+1}], v[{P+e}:{P+e+1}], v[{P+16+e}:{P+17+e}]")
    for l in rndl(P): A(l)
    for e in range(0, 8, 2): A(f"v_pk_add_f32 v[{P+e}:{P+e+1}], v[{P+e}:{P+e+1}], v[{TT+e}:{TT+e+1}]")
    for q in range(4): A(f"v_cvt_pk_bf16_f32 v{TP+q}, v{P+2*q}, v{P+2*q+1}")
    A(f"buffer_store_dwordx4 v[{TP}:{TP+3}], v3, {srd(OUT)}, s{SNB} offen{['', ' sc1', ' nt', ' sc0 sc1'][OPT.get('ost', 0)]}")
    stamp(A, "end", 1, 3, 4)

def build():
    name = NAME + "_kernel"
    out = ["; @launch grid=(256,1,1) block=(512,1,1) lds=163840", '.amdgcn_target "amdgcn-amd-amdhsa--gfx950"', ".text"]
    A = Asm()
    A.vm_tag_big = lambda: (A.vm - 63, A.vm_lo, A.vm_hi)
    A(f".globl {name}"); A(".p2align 8"); A(f".type {name},@function"); A(f"{name}:")
    prologue(A)
    A("s_cmp_ge_u32 s2, 224"); A("s_cbranch_scc1 L_free")
    busy_path(A)
    stamp_dump(A)
    A("s_endpgm")
    A("L_free:")
    free_path(A)
    A("L_exit:")
    A("s_endpgm")
    A("L_codeend:")
    out.append(A.text())
    out.append('.section .rodata,"a"'); out.append(".p2align 6")
    out.append(f""".amdhsa_kernel {name}
  .amdhsa_next_free_vgpr 256
  .amdhsa_next_free_sgpr 102
  .amdhsa_accum_offset 256
  .amdhsa_group_segment_fixed_size 0
  .amdhsa_kernarg_size 104
  .amdhsa_user_sgpr_count 2
  .amdhsa_user_sgpr_kernarg_segment_ptr 1
  .amdhsa_system_sgpr_workgroup_id_x 1
.end_amdhsa_kernel
""")
    return "\n".join(out)

if __name__ == "__main__":
    for a in sys.argv[2:]:
        k, v = a.split("="); OPT[k] = int(v)
    open(sys.argv[1], "w").write(build())
    if OPT["prof"]: open(sys.argv[1] + ".names", "w").write(",".join(Ctx.names))
```
